```python
import torch

def _softmax(x, axis=-1):
    return torch.softmax(x, dim=axis)

def _gelu(x):
    return torch.nn.functional.gelu(x, approximate='tanh')

def _silu(x):
    return torch.nn.functional.silu(x)

def _sigmoid(x):
    return torch.sigmoid(x)

def _layernorm(x, axis=-1, eps=1e-05):
    m = x.mean(dim=axis, keepdim=True)
    v = x.var(dim=axis, keepdim=True, unbiased=False)
    return (x - m) / torch.sqrt(v + eps)

def _scatter_add(tgt, idx, src, axis=0):
    return tgt.clone().index_add_(axis, idx, src)

def _segment_sum(src, seg, n):
    out = torch.zeros((n,) + src.shape[1:], dtype=src.dtype)
    return out.index_add_(0, seg, src)

def _pad(x, pw):
    flat = tuple((v for pair in reversed(pw) for v in pair))
    return torch.nn.functional.pad(x, flat)
kernel_name = 'recurrent_scan__memory_aug_recurrent_mem_tr__mixer_channel_mlp__prompt'

def setup_inputs():

    _w = lambda a: (lambda t: t.to(torch.bfloat16) if t.is_floating_point() else t)(torch.as_tensor(a))

    def _A_setup():
        B, S, Dm = (1, 2048, 640)
        H, Dh = (32, 192)
        M, seg = (8, 32)
        seg = min(seg, S)
        S = S // seg * seg
        return {'x': _w((lambda *s: torch.randn(*s, dtype=torch.bfloat16) * 0.05)(B, S, Dm)), 'mem0': _w((lambda *s: torch.randn(*s, dtype=torch.bfloat16) * 0.8)(B, M, Dm)), 'Wq': _w((lambda *s: torch.randn(*s, dtype=torch.bfloat16) * 0.8)(Dm, H, Dh) * Dm ** (-0.5)), 'Wk': _w((lambda *s: torch.randn(*s, dtype=torch.bfloat16) * 0.8)(Dm, H, Dh) * Dm ** (-0.5)), 'Wv': _w((lambda *s: torch.randn(*s, dtype=torch.bfloat16) * 0.8)(Dm, H, Dh) * Dm ** (-0.5)), 'Wo': _w((lambda *s: torch.randn(*s, dtype=torch.bfloat16) * 0.8)(H, Dh, Dm) * (H * Dh) ** (-0.5)), 'seg_len': seg}
    _A_in = _A_setup()

    def _B_setup():
        B, S, D, F = (1, 2048, 640, 1536)
        return {'x': _w((lambda *s: torch.randn(*s, dtype=torch.bfloat16) * 0.05)(B, S, D)), 'w1': _w((lambda *s: torch.randn(*s, dtype=torch.bfloat16) * 1.6)(D, F) * D ** (-0.5)), 'b1': _w((lambda *s: torch.randn(*s, dtype=torch.bfloat16) * 0.4)(F)), 'w2': _w((lambda *s: torch.randn(*s, dtype=torch.bfloat16) * 0.2)(F, D) * F ** (-0.5)), 'b2': _w((lambda *s: torch.randn(*s, dtype=torch.bfloat16) * 0.2)(D))}
    _B_in = _B_setup()
    return {'A_x': _A_in['x'], 'A_mem0': _A_in['mem0'], 'A_Wq': _A_in['Wq'], 'A_Wk': _A_in['Wk'], 'A_Wv': _A_in['Wv'], 'A_Wo': _A_in['Wo'], 'A_seg_len': _A_in['seg_len'], 'B_x': _B_in['x'], 'B_w1': _B_in['w1'], 'B_b1': _B_in['b1'], 'B_w2': _B_in['w2'], 'B_b2': _B_in['b2']}

def reference(A_x, A_mem0, A_Wq, A_Wk, A_Wv, A_Wo, A_seg_len, B_x, B_w1, B_b1, B_w2, B_b2):

    def _A_ref(x, mem0, Wq, Wk, Wv, Wo, seg_len):
        B, S, Dm = x.shape
        H, Dh = (Wq.shape[1], Wq.shape[2])
        M = mem0.shape[1]
        scale = Dh ** (-0.5)
        n_seg = S // seg_len
        L = M + seg_len
        idx = torch.arange(L)
        mask = (idx[:, None] < M) | (idx[:, None] >= idx[None, :])
        mem = mem0
        outs = []
        for s in range(n_seg):
            xs = x[:, s * seg_len:(s + 1) * seg_len, :].clone()
            h = torch.concatenate([mem, xs], axis=1)
            q = torch.einsum('btd,dhe->bhte', h, Wq)
            k = torch.einsum('btd,dhe->bhte', h, Wk)
            v = torch.einsum('btd,dhe->bhte', h, Wv)
            scores = torch.einsum('bhqe,bhke->bhqk', q, k) * scale
            scores = torch.where(mask[None, None], scores, -1000000000.0)
            p = _softmax(scores, axis=-1)
            o = torch.einsum('bhqk,bhke->bhqe', p, v)
            o = torch.einsum('bhte,hed->btd', o, Wo)
            mem = o[:, :M, :].clone()
            outs.append(o[:, M:, :])
        return torch.concatenate(outs, axis=1)

    def _B_ref(x, w1, b1, w2, b2):
        y = _layernorm(x, axis=-1)
        h = _gelu(torch.einsum('bsd,df->bsf', y, w1) + b1)
        return torch.einsum('bsf,fd->bsd', h, w2) + b2
    x = A_x
    xn = _layernorm(x, axis=-1)
    s = _A_ref(xn, A_mem0, A_Wq, A_Wk, A_Wv, A_Wo, A_seg_len)
    g = _silu(_B_ref(xn, B_w1, B_b1, B_w2, B_b2))
    return x + s * g
```

```python
class Asm:
    def __init__(self):
        self.lines = []
        self._uid = 0
    def __call__(self, s):
        for ln in s.strip('\n').split('\n'):
            ln = ln.strip()
            if ln:
                self.lines.append('    ' + ln)
    def label(self, l):
        self.lines.append(l + ':')
    def raw(self, s):
        self.lines.append(s)
    def uid(self, p='L'):
        self._uid += 1
        return '%s_%d' % (p, self._uid)
    def text(self):
        return '\n'.join(self.lines) + '\n'

def kernel_header(name):
    return f""".globl {name}
.p2align 8
.type {name},@function
{name}:
"""

def kernel_desc(name, vgpr=256, sgpr=102, accum=256, nptrs=15):
    return f""".amdhsa_kernel {name}
  .amdhsa_next_free_vgpr {vgpr}
  .amdhsa_next_free_sgpr {sgpr}
  .amdhsa_accum_offset {accum}
  .amdhsa_group_segment_fixed_size 0
  .amdhsa_kernarg_size {nptrs*8}
  .amdhsa_user_sgpr_count 2
  .amdhsa_user_sgpr_kernarg_segment_ptr 1
  .amdhsa_system_sgpr_workgroup_id_x 1
.end_amdhsa_kernel
"""

def srd(a, d, base, nbytes):
    a(f"s_mov_b32 s{d}, s{base}")
    a(f"s_mov_b32 s{d+1}, s{base+1}")
    a(f"s_mov_b32 s{d+2}, {nbytes}")
    a(f"s_mov_b32 s{d+3}, 0x00020000")
```

```python
from asmlib import *
from layout import *
import math, struct

def f32(x):
    return hex(struct.unpack('<I', struct.pack('<f', x))[0])

SLOT = 40 * KB
NSLOT = 4
WF = 0
ACC = (160, 176)
FB = 192
NFB = 6
BIAS = 216
VT = 232
V_LANE16 = 240
V_LDSRD = 241
V_ST = 242
V_TMP = 243

def big_body(a, pfx, setup_role):
    L = lambda n: f"{pfx}_{n}"
    a(f"""
    s_load_dwordx2 s[4:5], s[0:1], {KA['ws']}
    s_load_dwordx2 s[24:25], s[0:1], {KA['b1']}
    s_cmp_ge_u32 s16, 72
    s_cbranch_scc1 {L('rw1')}
    s_mul_i32 s26, s16, 2731
    s_lshr_b32 s26, s26, 16
    s_mul_i32 s27, s26, 24
    s_sub_u32 s27, s16, s27            ; role%24
    s_lshl_b32 s28, s26, 3
    s_add_u32 s28, s28, {KA['wq']}
    s_load_dwordx2 s[6:7], s[0:1], s28
    s_mov_b32 s18, 12288
    s_mov_b32 s10, {DM*H*DH*2}
    s_mov_b32 s20, {XN_OFF}
    s_mul_i32 s21, s26, {NSEG*P_SEG}
    s_add_u32 s21, s21, {Q_OFF}
    s_mov_b32 s22, {P_SEG}
    s_branch {L('rdone')}
    """)
    a.label(L('rw1'))
    a(f"""
    s_sub_u32 s27, s16, 72
    s_load_dwordx2 s[6:7], s[0:1], {KA['w1']}
    s_mov_b32 s18, 3072
    s_mov_b32 s10, {DM*F*2}
    s_mov_b32 s20, {YN_OFF}
    s_mov_b32 s21, {HID_OFF}
    s_mov_b32 s22, {HID_SEG}
    """)
    a.label(L('rdone'))
    a(f"""
    s_lshl_b32 s19, s27, 9
    s_lshl_b32 s28, s27, 3
    s_add_u32 s28, s28, s17            ; gt
    s_lshl_b32 s29, s28, 11
    s_add_u32 s21, s21, s29
    s_waitcnt lgkmcnt(0)
    s_mov_b32 s8, s6
    s_mov_b32 s9, s7
    s_mov_b32 s11, 0x00020000
    """)
    srd(a, 12, 4, WS_BYTES)
    a(f"""
    v_lshrrev_b32 v{VT}, 5, v255               ; lane>>5
    s_lshl_b32 s30, s17, 1
    v_add_u32 v{VT}, s30, v{VT}
    v_and_b32 v{VT+1}, 3, v{VT}
    v_lshlrev_b32 v{VT+1}, 2, v{VT+1}
    v_and_b32 v{VT+2}, 31, v255
    v_xor_b32 v{VT+2}, v{VT+2}, v{VT+1}
    v_lshlrev_b32 v{VT+2}, 4, v{VT+2}
    v_mul_lo_u32 v{VT}, v{VT}, s18
    v_add_u32 v{VT}, v{VT}, v{VT+2}
    v_lshrrev_b32 v{VT+1}, 5, v255             ; G>>1
    v_lshlrev_b32 v{VT+1}, 3, v{VT+1}
    v_bfe_u32 v{VT+2}, v255, 2, 2              ; r
    v_add_u32 v{VT+1}, v{VT+1}, v{VT+2}
    v_lshlrev_b32 v{VT+1}, 9, v{VT+1}
    v_xor_b32 v{VT+2}, s17, v{VT+2}
    v_lshl_add_u32 v{VT+1}, v{VT+2}, 6, v{VT+1}
    v_bfe_u32 v{VT+2}, v255, 4, 1
    v_lshl_add_u32 v{VT+1}, v{VT+2}, 5, v{VT+1}
    v_and_b32 v{VT+2}, 3, v255
    v_lshl_add_u32 v{VT+1}, v{VT+2}, 3, v{VT+1}
    s_lshl_b32 s31, s18, 4
    s_mul_i32 s32, s18, 80
    """)
    def stage_issue(q):
        a(f"s_mul_i32 s33, s32, {q}\ns_add_u32 s33, s33, s19")
        for n in range(5):
            a(f"s_lshl_b32 s34, s17, 10")
            a(f"s_add_u32 s34, s34, {(q % NSLOT) * SLOT + n * 8192}")
            a(f"s_mov_b32 m0, s34")
            a("s_nop 0")
            a(f"buffer_load_dwordx4 v{VT}, s[8:11], s33 offen lds")
            if n < 4:
                a("s_add_u32 s33, s33, s31")
    for q in range(NSLOT):
        stage_issue(q)
    for q in range(8):
        outstanding = 5 * (min(q + NSLOT, 8) - q - 1)
        a(f"s_waitcnt vmcnt({outstanding})")
        a("s_barrier")
        a(f"v_add_u32 v{VT+2}, {(q % NSLOT) * SLOT}, v{VT+1}")
        for ksl in range(5):
            ks = 5 * q + ksl
            for hr in range(2):
                a(f"ds_read_b64_tr_b16 v[{WF+4*ks+2*hr}:{WF+4*ks+2*hr+1}], v{VT+2} offset:{ksl*8192+hr*2048}")
        a("s_waitcnt lgkmcnt(0)")
        a("s_barrier")
        if q + NSLOT < 8:
            stage_issue(q + NSLOT)
    a("s_memtime s[52:53]")
    a(f"""
    v_lshlrev_b32 v{V_ST}, 4, v255
    s_mul_i32 s30, s17, 5120
    v_add_u32 v{V_LANE16}, s30, v{V_ST}
    """)
    a(f"s_cmp_lt_u32 s16, 72\ns_cbranch_scc1 {L('nobias')}")
    srd(a, 36, 24, F * 2)
    a(f"""
    v_lshrrev_b32 v{VT}, 5, v255
    v_lshlrev_b32 v{VT}, 3, v{VT}
    s_lshl_b32 s30, s28, 6
    v_add_u32 v{VT}, s30, v{VT}
    """)
    for q in range(4):
        a(f"buffer_load_dwordx2 v[{FB+2*q}:{FB+1+2*q}], v{VT}, s[36:39], 0 offen offset:{16*q}")
    a("s_waitcnt vmcnt(0)")
    for q in range(4):
        for j in range(2):
            a(f"v_lshlrev_b32 v{BIAS+4*q+2*j}, 16, v{FB+2*q+j}")
            a(f"v_and_b32 v{BIAS+4*q+2*j+1}, 0xffff0000, v{FB+2*q+j}")
    c0 = -2.0 * math.sqrt(2.0 / math.pi) * math.log2(math.e)
    a(f"s_mov_b32 s40, {f32(c0)}\ns_mov_b32 s41, {f32(c0*0.044715)}")
    a.label(L('nobias'))

    def dma(segreg_off):
        a(f"s_mul_i32 s34, s17, 5120\ns_add_u32 s34, s34, s35\ns_mov_b32 m0, s34\ns_nop 0")
        for n in range(4):
            a(f"buffer_load_dwordx4 v{V_LANE16}, s[12:15], s{segreg_off} offen offset:{1024*n} lds")
        a(f"s_add_u32 s34, s34, 4096\ns_mov_b32 m0, s34\ns_add_u32 s33, s{segreg_off}, 4096")
        a(f"buffer_load_dwordx4 v{V_LANE16}, s[12:15], s33 offen lds")

    PD = 2
    a(f"s_mov_b32 s43, s20")
    for p in range(PD):
        a(f"s_mov_b32 s35, {p*SLOT}")
        dma(43)
        a(f"s_add_u32 s43, s43, {XN_SEG}")
    a(f"s_mov_b32 s42, 0\ns_sub_u32 s44, s21, s22")

    def epilogue_ops(acc, gelu):
        ops = []
        if not gelu:
            for i in range(8):
                ops.append(f"v_cvt_pk_bf16_f32 v{VT+i}, v{acc+2*i}, v{acc+2*i+1}")
        else:
            t = V_TMP
            for i in range(8):
                x0, x1 = acc + 2 * i, acc + 2 * i + 1
                ops.append(f"v_cvt_pk_bf16_f32 v{t}, v{x0}, v{x1}")
                ops.append(f"v_lshlrev_b32 v{x0}, 16, v{t}")
                ops.append(f"v_and_b32 v{x1}, 0xffff0000, v{t}")
                ops.append(f"v_add_f32 v{x0}, v{x0}, v{BIAS+2*i}")
                ops.append(f"v_add_f32 v{x1}, v{x1}, v{BIAS+2*i+1}")
                ops.append(f"v_cvt_pk_bf16_f32 v{t}, v{x0}, v{x1}")
                ops.append(f"v_lshlrev_b32 v{x0}, 16, v{t}")
                ops.append(f"v_and_b32 v{x1}, 0xffff0000, v{t}")
                for k, x in enumerate((x0, x1)):
                    u = t + 1 + k
                    ops.append(f"v_mul_f32 v{u}, v{x}, v{x}")
                    ops.append(f"v_mul_f32 v{u}, s41, v{u}")
                    ops.append(f"v_add_f32 v{u}, s40, v{u}")
                    ops.append(f"v_mul_f32 v{u}, v{u}, v{x}")
                    ops.append(f"v_exp_f32 v{u}, v{u}")
                for k, x in enumerate((x0, x1)):
                    u = t + 1 + k
                    ops.append(f"v_add_f32 v{u}, 1.0, v{u}")
                    ops.append(f"v_rcp_f32 v{u}, v{u}")
                for k, x in enumerate((x0, x1)):
                    u = t + 1 + k
                    ops.append(f"v_mul_f32 v{x}, v{x}, v{u}")
                ops.append(f"v_cvt_pk_bf16_f32 v{VT+i}, v{x0}, v{x1}")
        ops.append(f"buffer_store_dwordx4 v[{VT}:{VT+3}], v{V_ST}, s[12:15], s44 offen")
        ops.append(f"buffer_store_dwordx4 v[{VT+4}:{VT+7}], v{V_ST}, s[12:15], s44 offen offset:1024")
        return ops

    def seg_iter(par, gelu, first):
        acc = ACC[par]
        a("s_waitcnt vmcnt(0)")
        a("s_barrier")
        a(f"""
        s_and_b32 s35, s42, {NSLOT-1}
        s_mul_i32 s35, s35, {SLOT}
        v_add_u32 v{V_LDSRD}, s35, v{V_ST}
        """)
        for i in range(NFB - 1):
            a(f"ds_read_b128 v[{FB+4*i}:{FB+4*i+3}], v{V_LDSRD} offset:{1024*i}")
        sk = a.uid(pfx + '_nopf')
        a(f"""
        s_add_u32 s35, s42, {PD}
        s_cmp_ge_u32 s35, {NSEG}
        s_cbranch_scc1 {sk}
        s_and_b32 s35, s35, {NSLOT-1}
        s_mul_i32 s35, s35, {SLOT}
        """)
        dma(43)
        a(f"s_add_u32 s43, s43, {XN_SEG}")
        a.label(sk)
        ep = [] if first else epilogue_ops(ACC[par ^ 1], gelu)
        per = 6 if gelu else 2
        for ks in range(40):
            fb = FB + 4 * (ks % NFB)
            rem = min(NFB - 2, 39 - ks)
            a(f"s_waitcnt lgkmcnt({rem})")
            c = '0' if ks == 0 else f"v[{acc}:{acc+15}]"
            a(f"v_mfma_f32_32x32x16_bf16 v[{acc}:{acc+15}], v[{WF+4*ks}:{WF+4*ks+3}], v[{fb}:{fb+3}], {c}")
            nk = ks + NFB - 1
            if nk < 40:
                nb = FB + 4 * (nk % NFB)
                a(f"ds_read_b128 v[{nb}:{nb+3}], v{V_LDSRD} offset:{1024*nk}")
            if ks >= 1:
                for _ in range(per):
                    if ep: a(ep.pop(0))
        assert not ep
        a(f"s_add_u32 s42, s42, 1\ns_add_u32 s44, s44, s22")

    for gelu in (0, 1):
        lp = L(f'loop{gelu}')
        if gelu == 0:
            a(f"s_cmp_ge_u32 s16, 72\ns_cbranch_scc1 {L('gelu_path')}")
        else:
            a.label(L('gelu_path'))
        seg_iter(0, gelu, True)
        a.label(lp)
        seg_iter(1, gelu, False)
        a(f"s_cmp_ge_u32 s42, {NSEG}\ns_cbranch_scc1 {L(f'fin{gelu}')}")
        seg_iter(0, gelu, False)
        a(f"s_branch {lp}")
        a.label(L(f'fin{gelu}'))
        a("s_nop 15")
        for op in epilogue_ops(ACC[1], gelu):
            a(op)
        a(f"s_branch {L('done')}")
    a.label(L('done'))

def gen_big(a, name='big_kernel'):
    a.raw(kernel_header(name))
    a(f"""
    s_cmp_ge_u32 s2, 78
    s_cbranch_scc1 BIG_end
    s_mov_b32 s16, s2
    v_lshrrev_b32 v1, 6, v0
    v_and_b32 v255, 63, v0
    s_nop 0
    v_readfirstlane_b32 s17, v1
    s_nop 3
    """)
    a("s_memtime s[50:51]")
    big_body(a, 'BIG', None)
    a(f"""
    s_memtime s[54:55]
    s_load_dwordx2 s[56:57], s[0:1], {KA['dbg']}
    s_waitcnt lgkmcnt(0)
    s_sub_u32 s54, s54, s52
    s_sub_u32 s52, s52, s50
    s_mov_b32 s58, 256
    s_mov_b32 s59, 0x00020000
    v_mov_b32 v4, s52
    v_mov_b32 v5, s54
    s_cmp_eq_u32 s16, 0
    s_cselect_b32 s60, 0, 256
    s_cmp_eq_u32 s16, 75
    s_cselect_b32 s60, 8, s60
    v_mov_b32 v3, s60
    buffer_store_dwordx2 v[4:5], v3, s[56:59], 0 offen
    """)
    a.label('BIG_end')
    a("s_endpgm")
    return kernel_desc(name)
```

```python
from asmlib import *
from layout import *

def dpp_allreduce16(a, v, t):
    for n in (8, 4, 2, 1):
        a("s_nop 1")
        a(f"v_add_f32_dpp v{t}, v{v}, v{v} row_ror:{n} row_mask:0xf bank_mask:0xf")
        a(f"v_mov_b32 v{v}, v{t}")

def round_bf16(a, d, s):
    a(f"v_cvt_pk_bf16_f32 v{d}, v{s}, v{s}")
    a(f"v_lshlrev_b32 v{d}, 16, v{d}")

def ln_pass(a, X, P, T):
    s, t, m, mb, r = T, T + 1, T + 2, T + 3, T + 4
    a(f"v_add_f32 v{s}, v{X}, v{X+1}")
    for i in range(2, 40):
        a(f"v_add_f32 v{s}, v{s}, v{X+i}")
    dpp_allreduce16(a, s, t)
    a(f"v_mul_f32 v{m}, s20, v{s}")
    a(f"v_sub_f32 v{t}, v{X}, v{m}")
    a(f"v_mul_f32 v{s}, v{t}, v{t}")
    for i in range(1, 40):
        a(f"v_sub_f32 v{t}, v{X+i}, v{m}")
        a(f"v_fmac_f32 v{s}, v{t}, v{t}")
    dpp_allreduce16(a, s, t)
    a(f"v_mul_f32 v{s}, s20, v{s}")
    round_bf16(a, s, s)
    a(f"v_add_f32 v{s}, s21, v{s}")
    round_bf16(a, s, s)
    a(f"v_sqrt_f32 v{s}, v{s}")
    a("s_nop 0")
    round_bf16(a, s, s)
    a(f"v_rcp_f32 v{r}, v{s}")
    round_bf16(a, mb, m)
    for i in range(0, 40, 2):
        a(f"v_sub_f32 v{X+i}, v{X+i}, v{mb}")
        a(f"v_sub_f32 v{X+i+1}, v{X+i+1}, v{mb}")
        a(f"v_cvt_pk_bf16_f32 v{t}, v{X+i}, v{X+i+1}")
        a(f"v_lshlrev_b32 v{X+i}, 16, v{t}")
        a(f"v_and_b32 v{X+i+1}, 0xffff0000, v{t}")
        for j in (X + i, X + i + 1):
            a(f"v_mul_f32 v{t}, v{j}, v{r}")
            a(f"v_fma_f32 v{j}, -v{t}, v{s}, v{j}")
            a(f"v_fma_f32 v{j}, v{j}, v{r}, v{t}")
        a(f"v_cvt_pk_bf16_f32 v{P+i//2}, v{X+i}, v{X+i+1}")
        a(f"v_lshlrev_b32 v{X+i}, 16, v{P+i//2}")
        a(f"v_and_b32 v{X+i+1}, 0xffff0000, v{P+i//2}")

def cwindow(a, sd, wslo):
    a(f"s_sub_u32 s{sd}, 0, s{wslo}\ns_and_b32 s{sd}, s{sd}, 0x1fffff")

def init_ctl(a):
    NT = 128 * 256
    cwindow(a, 24, 6)
    a(f"""
    s_lshl_b32 s3, s2, 8
    v_add_u32 v1, s3, v0
    v_lshlrev_b32 v2, 4, v1
    v_mov_b32 v8, -1
    v_mov_b32 v9, -1
    v_mov_b32 v10, -1
    v_mov_b32 v11, -1
    v_mov_b32 v12, 0
    v_mov_b32 v13, 0
    v_mov_b32 v14, 0
    v_mov_b32 v15, 0
    """)
    def fill(base_s, base_imm, nbytes, vdata):
        units = nbytes // 16
        k = 0
        while k * NT < units:
            if base_s is not None:
                a(f"s_add_u32 s25, s{base_s}, {base_imm + k*NT*16}")
            else:
                a(f"s_mov_b32 s25, {base_imm + k*NT*16}")
            rem = units - k * NT
            if rem < NT:
                sk = a.uid('LN_sk')
                a(f"v_cmp_gt_u32 vcc, {rem}, v1\ns_and_saveexec_b64 s[26:27], vcc\ns_cbranch_execz {sk}")
                a(f"buffer_store_dwordx4 v[{vdata}:{vdata+3}], v2, s[12:15], s25 offen")
                a.label(sk)
                a("s_mov_b64 exec, s[26:27]")
            else:
                a(f"buffer_store_dwordx4 v[{vdata}:{vdata+3}], v2, s[12:15], s25 offen")
            k += 1
    fill(24, 0, C_BYTES, 8)
    fill(None, A_OFF, NRING * A_SLOT, 8)
    fill(None, D_OFF + D_SLOT, (NRING - 1) * D_SLOT, 8)
    fill(None, TK_OFF, 1024, 12)
    fill(None, PROG_OFF, 1024, 12)
    fill(None, FLAG_OFF, 65536, 12)
    a(f"""
    s_cmp_ge_u32 s2, 10
    s_cbranch_scc1 LN_nod0
    s_load_dwordx2 s[28:29], s[0:1], {KA['mem0']}
    v_mul_u32_u24 v3, 52429, v1
    v_lshrrev_b32 v3, 25, v3
    v_mul_u32_u24 v3, 640, v3
    v_sub_u32 v3, v1, v3
    v_and_b32 v4, 7, v3
    v_mul_u32_u24 v4, 1280, v4           ; row*1280
    v_lshrrev_b32 v5, 5, v3
    v_lshl_add_u32 v4, v5, 6, v4
    v_bfe_u32 v5, v3, 3, 2
    v_lshl_add_u32 v4, v5, 3, v4         ; + g*8 bytes
    s_waitcnt lgkmcnt(0)
    s_mov_b32 s30, {M*DM*2}
    s_mov_b32 s31, 0x00020000
    buffer_load_dwordx2 v[16:17], v4, s[28:31], 0 offen
    buffer_load_dwordx2 v[18:19], v4, s[28:31], 0 offen offset:32
    s_mov_b32 s25, {D_OFF}
    s_mov_b32 s33, 0xfffffffe
    s_waitcnt vmcnt(0)
    v_min_u32 v16, s33, v16
    v_min_u32 v17, s33, v17
    v_min_u32 v18, s33, v18
    v_min_u32 v19, s33, v19
    buffer_store_dwordx4 v[16:19], v2, s[12:15], s25 offen
    """)
    a.label('LN_nod0')
    a(f"""
    s_cmp_lg_u32 s2, 127
    s_cbranch_scc1 LN_end
    v_readfirstlane_b32 s3, v0
    s_cmp_lg_u32 s3, 0
    s_cbranch_scc1 LN_end
    s_waitcnt vmcnt(0)
    v_mov_b32 v3, 0
    s_mov_b32 s34, 0x7fffffff
    s_mov_b32 s35, 0x7fffffff
    """)
    for it in range(6):
        for par in range(2):
            a(f"""
            s_add_u32 s25, s24, {it*16384*5 + par*8192 + it*1024}
            buffer_store_dword v8, v3, s[12:15], s25 offen sc1
            s_waitcnt vmcnt(0)
            s_memtime s[36:37]
            s_waitcnt lgkmcnt(0)
            buffer_load_dword v5, v3, s[12:15], s25 offen sc1
            s_waitcnt vmcnt(0)
            s_memtime s[38:39]
            s_waitcnt lgkmcnt(0)
            s_sub_u32 s38, s38, s36
            s_min_u32 s{34+par}, s{34+par}, s38
            """)
    a(f"""
    s_getreg_b32 s36, hwreg(HW_REG_XCC_ID)
    s_lshr_b32 s36, s36, 2
    s_and_b32 s36, s36, 1
    s_cmp_lt_u32 s35, s34
    s_cselect_b32 s37, 1, 0
    s_xor_b32 s37, s37, s36
    s_lshl_b32 s37, s37, 13
    v_mov_b32 v4, s37
    v_mov_b32 v5, s34
    v_mov_b32 v6, s35
    v_mov_b32 v7, s36
    s_mov_b32 s25, {PAR_OFF}
    buffer_store_dwordx4 v[4:7], v3, s[12:15], s25 offen
    """)

def gen_ln(a, name='ln_kernel'):
    a.raw(kernel_header(name))
    a(f"""
    s_cmp_ge_u32 s2, 128
    s_cbranch_scc1 LN_end
    s_load_dwordx2 s[4:5], s[0:1], {KA['x']}
    s_load_dwordx2 s[6:7], s[0:1], {KA['ws']}
    s_mov_b32 s20, 0x3acccccd
    s_mov_b32 s21, 0x3727c5ac
    v_lshrrev_b32 v1, 4, v0
    v_and_b32 v2, 15, v0                 ; j
    s_lshl_b32 s3, s2, 4
    v_add_u32 v1, s3, v1
    v_mul_u32_u24 v3, 1280, v1
    v_lshl_add_u32 v3, v2, 4, v3
    s_waitcnt lgkmcnt(0)
    """)
    srd(a, 8, 4, S * DM * 2)
    srd(a, 12, 6, WS_BYTES)
    for i in range(5):
        a(f"buffer_load_dwordx4 v[{12+4*i}:{15+4*i}], v3, s[8:11], 0 offen offset:{256*i}")
    a(f"""
    v_lshrrev_b32 v4, 5, v1
    v_mul_u32_u24 v4, {XN_SEG}, v4
    v_and_b32 v5, 31, v1
    v_lshl_add_u32 v4, v5, 4, v4
    v_lshrrev_b32 v5, 1, v2
    v_lshl_add_u32 v4, v5, 10, v4
    v_and_b32 v5, 1, v2
    v_lshl_add_u32 v4, v5, 9, v4
    s_mov_b32 s22, {XN_OFF}
    s_mov_b32 s23, {YN_OFF}
    s_waitcnt vmcnt(0)
    """)
    X, P, T = 32, 72, 92
    for i in range(20):
        a(f"v_lshlrev_b32 v{X+2*i}, 16, v{12+i}")
        a(f"v_and_b32 v{X+2*i+1}, 0xffff0000, v{12+i}")
    ln_pass(a, X, P, T)
    for i in range(5):
        a(f"v_add_u32 v5, {8192*i}, v4")
        a(f"buffer_store_dwordx4 v[{P+4*i}:{P+4*i+3}], v5, s[12:15], s22 offen")
    P2 = 12
    ln_pass(a, X, P2, T)
    for i in range(5):
        a(f"v_add_u32 v5, {8192*i}, v4")
        a(f"buffer_store_dwordx4 v[{P2+4*i}:{P2+4*i+3}], v5, s[12:15], s23 offen")
    init_ctl(a)
    a.label('LN_end')
    a("s_endpgm")
    return kernel_desc(name, vgpr=104, sgpr=48, accum=104)
```

```python
from asmlib import *
from layout import *
import math, struct

def f32(x):
    return hex(struct.unpack('<I', struct.pack('<f', x))[0])

LP_HEAD = 2560

def post_body(a, pfx):
    L = lambda n: f"{pfx}_{n}"
    QF, KF, MFR = 0, 48, 96
    SX, SM = 144, 160
    T = 176
    cs = DH ** -0.5 * math.log2(math.e)
    a(f"""
    v_lshlrev_b32 v254, 4, v255                 ; lane*16
    v_lshrrev_b32 v253, 5, v255                 ; h
    v_and_b32 v252, 31, v255
    v_and_b32 v251, 7, v255
    v_lshlrev_b32 v251, 4, v251
    v_lshl_add_u32 v251, v253, 7, v251
    v_lshlrev_b32 v250, 3, v255                 ; lane*8
    v_lshlrev_b32 v249, 2, v253
    v_sub_u32 v249, v252, v249
    v_mov_b32 v248, 0xff800000                  ; -inf
    s_mov_b32 s53, {f32(cs)}
    s_lshl_b32 s20, s17, 2
    s_mul_i32 s21, s16, {P_SEG}
    s_mul_i32 s40, s20, {PH}
    s_add_u32 s21, s21, s40
    s_add_u32 s22, s21, {K_OFF}
    s_add_u32 s21, s21, {Q_OFF}
    s_mul_i32 s23, s16, {KM_SEG}
    s_mul_i32 s40, s20, {KMH}
    s_add_u32 s23, s23, s40
    s_add_u32 s23, s23, {KM_OFF}
    s_mul_i32 s24, s20, {LP_HEAD}
    v_add_u32 v247, s24, v254
    v_add_u32 v246, s24, v250
    s_mov_b32 s25, 0
    """)
    def head_loads():
        for b in range(12):
            if b % 4 == 0 and b:
                a(f"s_add_u32 s21, s21, 4096\ns_add_u32 s22, s22, 4096")
            a(f"buffer_load_dwordx4 v[{QF+4*b}:{QF+4*b+3}], v254, s[12:15], s21 offen offset:{1024*(b%4)}")
            a(f"buffer_load_dwordx4 v[{KF+4*b}:{KF+4*b+3}], v254, s[12:15], s22 offen offset:{1024*(b%4)}")
            a(f"buffer_load_dwordx4 v[{MFR+4*b}:{MFR+4*b+3}], v251, s[12:15], s23 offen offset:{256*b}")
        a(f"s_add_u32 s21, s21, 4096\ns_add_u32 s22, s22, 4096\ns_add_u32 s23, s23, {KMH}")
    head_loads()
    a.label(L('ploop'))
    for b in range(12):
        a(f"s_waitcnt vmcnt({3*(11-b)})")
        c = '0' if b == 0 else f"v[{SX}:{SX+15}]"
        a(f"v_mfma_f32_32x32x16_bf16 v[{SX}:{SX+15}], v[{KF+4*b}:{KF+4*b+3}], v[{QF+4*b}:{QF+4*b+3}], {c}")
        c = '0' if b == 0 else f"v[{SM}:{SM+15}]"
        a(f"v_mfma_f32_32x32x16_bf16 v[{SM}:{SM+15}], v[{MFR+4*b}:{MFR+4*b+3}], v[{QF+4*b}:{QF+4*b+3}], {c}")
    a(f"s_cmp_eq_u32 s25, 3\ns_cbranch_scc1 {L('nopf')}")
    head_loads()
    a.label(L('nopf'))
    a("s_nop 15")
    for r in range(16):
        key = 8 * (r >> 2) + (r & 3)
        a(f"v_cmp_le_i32 vcc, {key}, v249")
        a("s_nop 1")
        a(f"v_cndmask_b32 v{SX+r}, v248, v{SX+r}, vcc")
    vals = [SX + r for r in range(16)] + [SM + j for j in range(4)]
    mx, t2, sm = T, T + 1, T + 2
    a(f"v_max3_f32 v{mx}, v{vals[0]}, v{vals[1]}, v{vals[2]}")
    for i in range(3, 19, 2):
        a(f"v_max3_f32 v{mx}, v{mx}, v{vals[i]}, v{vals[i+1]}")
    a(f"""
    v_max_f32 v{mx}, v{mx}, v{vals[19]}
    v_mov_b32 v{t2}, v{mx}
    s_nop 1
    v_permlane32_swap_b32 v{mx}, v{t2}
    v_max_f32 v{mx}, v{mx}, v{t2}
    v_mul_f32 v{mx}, s53, v{mx}
    """)
    for v in vals: a(f"v_fma_f32 v{v}, v{v}, s53, -v{mx}")
    for v in vals: a(f"v_exp_f32 v{v}, v{v}")
    a(f"v_add_f32 v{sm}, v{vals[0]}, v{vals[1]}")
    for v in vals[2:]: a(f"v_add_f32 v{sm}, v{sm}, v{v}")
    a(f"""
    v_mov_b32 v{t2}, v{sm}
    s_nop 1
    v_permlane32_swap_b32 v{sm}, v{t2}
    v_add_f32 v{sm}, v{sm}, v{t2}
    v_rcp_f32 v{sm}, v{sm}
    s_nop 0
    """)
    for v in vals: a(f"v_mul_f32 v{v}, v{v}, v{sm}")
    PO = T + 4
    for i in range(10):
        a(f"v_cvt_pk_bf16_f32 v{PO+i}, v{vals[2*i]}, v{vals[2*i+1]}")
    a(f"""
    ds_write_b128 v247, v[{PO}:{PO+3}]
    ds_write_b128 v247, v[{PO+4}:{PO+7}] offset:1024
    ds_write_b64 v246, v[{PO+8}:{PO+9}] offset:2048
    v_add_u32 v247, {LP_HEAD}, v247
    v_add_u32 v246, {LP_HEAD}, v246
    s_add_u32 s25, s25, 1
    s_cmp_lt_u32 s25, 4
    s_cbranch_scc1 {L('ploop')}
    """)
    a(f"""
    s_mul_i32 s28, s17, 3
    s_lshl_b32 s29, s17, 1
    s_add_u32 s29, s29, 4
    s_cmp_lt_u32 s17, 4
    s_cselect_b32 s28, s28, s29
    s_mul_i32 s21, s16, {U_SEG}
    s_lshl_b32 s40, s28, 11
    s_add_u32 s21, s21, s40
    s_add_u32 s21, s21, {U_OFF}
    s_mul_i32 s22, s16, {Y_SEG}
    s_lshl_b32 s40, s28, 9
    s_add_u32 s22, s22, s40
    s_add_u32 s22, s22, {Y_OFF}
    s_load_dwordx2 s[4:5], s[0:1], {KA['x']}
    s_load_dwordx2 s[6:7], s[0:1], {KA['out']}
    s_load_dwordx2 s[30:31], s[0:1], {KA['b2']}
    s_cmp_ge_u32 s17, 4
    s_cbranch_scc1 {L('z2')}
    """)
    ACC = 0
    ZB = 48
    PB = 200
    DEPTH = 4
    for nt in (3, 2):
        if nt == 2: a.label(L('z2'))
        def zb(d, t): return ZB + (d * nt + t) * 12
        for d in range(DEPTH):
            for t in range(nt):
                a(f"v_mov_b32 v{zb(d,t)+10}, 0\nv_mov_b32 v{zb(d,t)+11}, 0")
        for k in range(2):
            a(f"v_mov_b32 v{PB+12*k+10}, 0\nv_mov_b32 v{PB+12*k+11}, 0")
        def zloads(d):
            for t in range(nt):
                b = zb(d, t)
                if t == 2:
                    a(f"s_add_u32 s40, s21, 4096")
                    a(f"buffer_load_dwordx4 v[{b}:{b+3}], v254, s[12:15], s40 offen")
                    a(f"buffer_load_dwordx4 v[{b+4}:{b+7}], v254, s[12:15], s40 offen offset:1024")
                else:
                    a(f"buffer_load_dwordx4 v[{b}:{b+3}], v254, s[12:15], s21 offen offset:{2048*t}")
                    a(f"buffer_load_dwordx4 v[{b+4}:{b+7}], v254, s[12:15], s21 offen offset:{2048*t+1024}")
                a(f"buffer_load_dwordx2 v[{b+8}:{b+9}], v250, s[12:15], s22 offen offset:{512*t}")
            a(f"s_add_u32 s21, s21, {UH}\ns_add_u32 s22, s22, {YH}")
        for d in range(DEPTH): zloads(d)
        a("s_waitcnt lgkmcnt(0)\ns_barrier")
        def ploads(k, h):
            a(f"ds_read_b128 v[{PB+12*k}:{PB+12*k+3}], v245 offset:{h*LP_HEAD}")
            a(f"ds_read_b128 v[{PB+12*k+4}:{PB+12*k+7}], v245 offset:{h*LP_HEAD+1024}")
            a(f"ds_read_b64 v[{PB+12*k+8}:{PB+12*k+9}], v244 offset:{h*LP_HEAD+2048}")
        a("v_mov_b32 v245, v254\nv_mov_b32 v244, v250\ns_mov_b32 s25, 0")
        for t in range(nt):
            for r in range(16): a(f"v_mov_b32 v{ACC+16*t+r}, 0")
        ploads(0, 0)
        lp = L(f'zloop{nt}')
        a.label(lp)
        for last in (0, 1):
            if last: a.label(L(f'zlast{nt}'))
            for d in range(DEPTH):
                k = d & 1
                if not (last and d == DEPTH - 1):
                    ploads(k ^ 1, d + 1)
                    a("s_waitcnt lgkmcnt(3)")
                else:
                    a("s_waitcnt lgkmcnt(0)")
                outstanding = 3 * nt * ((DEPTH - 1) if not last else (DEPTH - 1 - d))
                a(f"s_waitcnt vmcnt({outstanding})")
                for t in range(nt):
                    b = zb(d, t); ac = ACC + 16 * t; p = PB + 12 * k
                    for q in range(3):
                        a(f"v_mfma_f32_32x32x16_bf16 v[{ac}:{ac+15}], v[{b+4*q}:{b+4*q+3}], v[{p+4*q}:{p+4*q+3}], v[{ac}:{ac+15}]")
                if not last: zloads(d)
            if not last:
                a(f"""
                v_add_u32 v245, {DEPTH*LP_HEAD}, v245
                v_add_u32 v244, {DEPTH*LP_HEAD}, v244
                s_add_u32 s25, s25, 1
                s_cmp_lt_u32 s25, {H//DEPTH-1}
                s_cbranch_scc1 {lp}
                """)
        a(f"""
        s_mov_b32 s8, s4
        s_mov_b32 s9, s5
        s_mov_b32 s10, {S*DM*2}
        s_mov_b32 s11, 0x00020000
        s_mov_b32 s36, s6
        s_mov_b32 s37, s7
        s_mov_b32 s38, {S*DM*2}
        s_mov_b32 s39, 0x00020000
        s_mov_b32 s32, s30
        s_mov_b32 s33, s31
        s_mov_b32 s34, {DM*2}
        s_mov_b32 s35, 0x00020000
        s_mul_i32 s21, s16, {G_SEG}
        s_lshl_b32 s40, s28, 12
        s_add_u32 s21, s21, s40
        s_add_u32 s21, s21, {G_OFF}
        s_lshl_b32 s40, s16, 5
        v_add_u32 v243, s40, v252
        v_mul_u32_u24 v243, 1280, v243
        v_lshl_add_u32 v243, v253, 3, v243         ; row*1280 + h*8
        v_lshlrev_b32 v242, 3, v253                ; h*8
        s_lshl_b32 s22, s28, 6
        s_mov_b32 s41, {f32(-math.log2(math.e))}
        """)
        GB = 48; XB = 180; BB = 188; E = 196
        for t in range(nt):
            ac = ACC + 16 * t
            for sl in range(8):
                a(f"s_add_u32 s40, s21, {sl*GH + t*4096}")
                for q in range(4):
                    a(f"buffer_load_dwordx4 v[{GB+16*sl+4*q}:{GB+16*sl+4*q+3}], v254, s[12:15], s40 offen offset:{1024*q}")
            for q in range(4):
                a(f"buffer_load_dwordx2 v[{XB+2*q}:{XB+2*q+1}], v243, s[8:11], s22 offen offset:{64*t+16*q}")
                a(f"buffer_load_dwordx2 v[{BB+2*q}:{BB+2*q+1}], v242, s[32:35], s22 offen offset:{64*t+16*q}")
            for sl in range(1, 8):
                a(f"s_waitcnt vmcnt({8+4*(7-sl)})")
                for r in range(0, 16, 2):
                    a(f"v_pk_add_f32 v[{GB+r}:{GB+r+1}], v[{GB+r}:{GB+r+1}], v[{GB+16*sl+r}:{GB+16*sl+r+1}]")
            a("s_waitcnt vmcnt(0)")
            for i in range(8):
                g0, g1 = GB + 2 * i, GB + 2 * i + 1
                s0, s1 = ac + 2 * i, ac + 2 * i + 1
                a(f"""
                v_cvt_pk_bf16_f32 v{E}, v{g0}, v{g1}
                v_lshlrev_b32 v{g0}, 16, v{E}
                v_and_b32 v{g1}, 0xffff0000, v{E}
                v_lshlrev_b32 v{E+1}, 16, v{BB+i}
                v_and_b32 v{E+2}, 0xffff0000, v{BB+i}
                v_add_f32 v{g0}, v{g0}, v{E+1}
                v_add_f32 v{g1}, v{g1}, v{E+2}
                v_cvt_pk_bf16_f32 v{E}, v{g0}, v{g1}
                v_lshlrev_b32 v{g0}, 16, v{E}
                v_and_b32 v{g1}, 0xffff0000, v{E}
                v_mul_f32 v{E+1}, s41, v{g0}
                v_mul_f32 v{E+2}, s41, v{g1}
                v_exp_f32 v{E+1}, v{E+1}
                v_exp_f32 v{E+2}, v{E+2}
                v_cvt_pk_bf16_f32 v{E}, v{s0}, v{s1}
                v_add_f32 v{E+1}, 1.0, v{E+1}
                v_add_f32 v{E+2}, 1.0, v{E+2}
                v_rcp_f32 v{E+1}, v{E+1}
                v_rcp_f32 v{E+2}, v{E+2}
                v_lshlrev_b32 v{s0}, 16, v{E}
                v_and_b32 v{s1}, 0xffff0000, v{E}
                v_mul_f32 v{g0}, v{g0}, v{E+1}
                v_mul_f32 v{g1}, v{g1}, v{E+2}
                v_cvt_pk_bf16_f32 v{E}, v{g0}, v{g1}
                v_lshlrev_b32 v{g0}, 16, v{E}
                v_and_b32 v{g1}, 0xffff0000, v{E}
                v_mul_f32 v{g0}, v{g0}, v{s0}
                v_mul_f32 v{g1}, v{g1}, v{s1}
                v_cvt_pk_bf16_f32 v{E}, v{g0}, v{g1}
                v_lshlrev_b32 v{g0}, 16, v{E}
                v_and_b32 v{g1}, 0xffff0000, v{E}
                v_lshlrev_b32 v{E+1}, 16, v{XB+i}
                v_and_b32 v{E+2}, 0xffff0000, v{XB+i}
                v_add_f32 v{g0}, v{g0}, v{E+1}
                v_add_f32 v{g1}, v{g1}, v{E+2}
                v_cvt_pk_bf16_f32 v{E+4+i}, v{g0}, v{g1}
                """)
            for q in range(4):
                a(f"buffer_store_dwordx2 v[{E+4+2*q}:{E+5+2*q}], v243, s[36:39], s22 offen offset:{64*t+16*q}")
        a(f"s_branch {L('done')}")
    a.label(L('done'))

def gen_post(a, name='post_kernel'):
    a.raw(kernel_header(name))
    a(f"""
    s_cmp_ge_u32 s2, 64
    s_cbranch_scc1 POST_end
    s_load_dwordx2 s[4:5], s[0:1], {KA['ws']}
    s_mov_b32 s16, s2
    v_lshrrev_b32 v1, 6, v0
    v_and_b32 v255, 63, v0
    s_nop 0
    v_readfirstlane_b32 s17, v1
    s_waitcnt lgkmcnt(0)
    """)
    srd(a, 12, 4, WS_BYTES)
    post_body(a, 'POST')
    a.label('POST_end')
    a("s_endpgm")
    return kernel_desc(name)
```

```python
from asmlib import *
from layout import *
import math, struct
from k_ln import cwindow

def f32(x):
    return hex(struct.unpack('<I', struct.pack('<f', x))[0])

L_MEMX = 0
L_SX = 10240
L_R2 = 22528
RP2 = 272
L_RL = 31232
L_ZM = 31744
L_DUMMY = 35840
L_WO = 40960
RP = 208
OOB = 0x7f000000
import os
NST = int(os.environ.get('REC_NST', NSEG))

STAMP = int(os.environ.get('REC_STAMP', -1))
def stamp(a, i):
    if STAMP < 0: return
    sk = a.uid('STMP')
    a(f"s_cmp_lg_u32 s27, {STAMP}\ns_cbranch_scc1 {sk}\ns_memtime s[98:99]\ns_waitcnt lgkmcnt(0)\ns_mov_b32 s{64+i}, s98")
    a.label(sk)

class R:
    def __init__(self, base): self.n = base
    def __call__(self, k=1, align=1):
        self.n = (self.n + align - 1) // align * align
        r = self.n; self.n += k
        assert self.n <= 250
        return r

def lane_fields(a):
    a("""
    v_and_b32 v250, 15, v255
    v_lshrrev_b32 v251, 4, v255
    v_and_b32 v252, 7, v255
    v_bfe_u32 v253, v255, 3, 1
    """)

def cphys(a, v, t):
    a(f"""
    v_lshrrev_b32 v{t}, 13, v{v}
    v_lshlrev_b32 v{t}, 13, v{t}
    v_add_u32 v{v}, v{v}, v{t}
    """)

def check_poison(a, regs, t):
    regs = list(regs)
    if len(regs) == 2:
        a(f"v_max_u32 v{t}, v{regs[0]}, v{regs[1]}")
    else:
        a(f"v_max3_u32 v{t}, v{regs[0]}, v{regs[1]}, v{regs[2]}")
        i = 3
        while i < len(regs):
            if i + 1 < len(regs):
                a(f"v_max3_u32 v{t}, v{t}, v{regs[i]}, v{regs[i+1]}"); i += 2
            else:
                a(f"v_max_u32 v{t}, v{t}, v{regs[i]}"); i += 1
    a(f"v_cmp_eq_u32 vcc, -1, v{t}")

def poll(a, pfx, loads, regs, t):
    lp = a.uid(pfx + '_poll'); dn = a.uid(pfx + '_pdone')
    a.label(lp)
    for ld in loads: a(ld)
    a(f"s_sub_u32 s46, s46, 1\ns_cbranch_scc1 {dn}_x")
    a("s_waitcnt vmcnt(0)")
    check_poison(a, regs, t)
    a(f"s_cbranch_vccnz {lp}")
    a(f"s_branch {dn}")
    a.label(dn + '_x')
    a("s_mov_b32 s46, 0\ns_waitcnt vmcnt(0)")
    a.label(dn)

def load_tile(a, kaoff, nbytes, sbase, raw, T):
    a(f"s_load_dwordx2 s[8:9], s[0:1], {kaoff}\ns_mov_b32 s10, {nbytes}\ns_mov_b32 s11, 0x00020000")
    a(f"""
    v_lshrrev_b32 v{T}, 1, v255
    v_mul_u32_u24 v{T}, 12288, v{T}
    v_and_b32 v{T+1}, 1, v255
    v_lshl_add_u32 v{T}, v{T+1}, 4, v{T}
    s_mov_b32 s40, s{sbase}
    s_waitcnt lgkmcnt(0)
    """)
    for n in range(20):
        a(f"buffer_load_dwordx4 v[{raw+4*n}:{raw+4*n+3}], v{T}, s[8:11], s40 offen")
        a(f"s_add_u32 s40, s40, {32*12288}")

def load_slice(a, kaoff, nbytes, sbase, pitch, nrows, raw, T):
    a(f"s_load_dwordx2 s[8:9], s[0:1], {kaoff}\ns_mov_b32 s10, {nbytes}\ns_mov_b32 s11, 0x00020000\ns_mov_b32 s40, {pitch}\ns_waitcnt lgkmcnt(0)")
    for n in range(nrows * 6 // 64):
        a(f"""
        v_add_u32 v{T}, {64*n}, v255
        v_mul_u32_u24 v{T+1}, 43691, v{T}
        v_lshrrev_b32 v{T+1}, 18, v{T+1}
        v_mul_u32_u24 v{T+2}, 6, v{T+1}
        v_sub_u32 v{T+2}, v{T}, v{T+2}
        v_mul_lo_u32 v{T+1}, v{T+1}, s40
        v_lshl_add_u32 v{T+1}, v{T+2}, 4, v{T+1}
        buffer_load_dwordx4 v[{raw+4*n}:{raw+4*n+3}], v{T+1}, s[8:11], s{sbase} offen
        """)


def slot_bases(a):
    a(f"""
    s_and_b32 s40, s27, 3
    s_add_u32 s41, s27, 2
    s_and_b32 s41, s41, 3
    s_mul_i32 s28, s40, {A_SLOT}
    s_add_u32 s28, s28, s47
    s_mul_i32 s29, s41, {A_SLOT}
    s_add_u32 s29, s29, s47
    s_mul_i32 s30, s40, {C_SLOT}
    s_add_u32 s30, s30, s24
    s_mul_i32 s31, s41, {C_SLOT}
    s_add_u32 s31, s31, s24
    s_mul_i32 s32, s40, {D_SLOT}
    s_add_u32 s32, s32, s48
    s_add_u32 s41, s27, 1
    s_and_b32 s41, s41, 3
    s_mul_i32 s33, s41, {D_SLOT}
    s_add_u32 s33, s33, s48
    s_add_u32 s41, s27, 3
    s_and_b32 s41, s41, 3
    s_mul_i32 s34, s41, {D_SLOT}
    s_add_u32 s34, s34, s48
    """)

def s3_setup(a, vCld, vDst, T):
    a(f"""
    v_lshrrev_b32 v{T}, 3, v255                 ; vgl
    v_mul_u32_u24 v{vCld}, 10240, v{T}
    s_lshl_b32 s40, s55, 9
    s_lshl_b32 s41, s23, 7
    s_add_u32 s41, s41, s40
    v_add_u32 v{vCld}, s41, v{vCld}
    v_lshl_add_u32 v{vCld}, v252, 4, v{vCld}
    """)
    cphys(a, vCld, T + 1)
    a(f"""
    v_lshrrev_b32 v{T}, 2, v252
    s_lshl_b32 s41, s23, 1
    v_add_u32 v{T}, s41, v{T}                   ; cq
    v_and_b32 v{T+1}, 3, v{T}
    v_lshlrev_b32 v{vDst}, 7, v{T+1}
    v_lshrrev_b32 v{T+1}, 2, v{T}
    v_lshl_add_u32 v{vDst}, v{T+1}, 3, v{vDst}
    v_and_b32 v{T+1}, 3, v255
    v_lshl_add_u32 v{vDst}, v{T+1}, 5, v{vDst}
    v_lshrrev_b32 v{T+1}, 5, v255
    v_lshl_add_u32 v{vDst}, v{T+1}, 4, v{vDst}
    v_bfe_u32 v{T+1}, v255, 4, 1
    v_lshl_add_u32 v{vDst}, v{T+1}, 2, v{vDst}
    v_add_u32 v{vDst}, s40, v{vDst}
    v_cmp_eq_u32 vcc, 0, v253
    s_nop 1
    v_cndmask_b32 v{vDst}, v242, v{vDst}, vcc
    """)

def s3_run(a, pfx, vCld, vDst, T):
    poll(a, pfx, [f"buffer_load_dwordx4 v[{T}:{T+3}], v{vCld}, s[12:15], s30 offen sc1"], range(T, T + 4), T + 4)
    V = T + 4
    for j in (0, 2, 1, 3):
        a(f"v_lshlrev_b32 v{V+2*j}, 16, v{T+j}")
        a(f"v_and_b32 v{V+2*j+1}, 0xffff0000, v{T+j}")
    for j in range(4):
        a(f"v_permlane32_swap_b32 v{V+j}, v{V+4+j}")
    a(f"v_pk_add_f32 v[{V}:{V+1}], v[{V}:{V+1}], v[{V+4}:{V+5}]")
    a(f"v_pk_add_f32 v[{V+2}:{V+3}], v[{V+2}:{V+3}], v[{V+6}:{V+7}]")
    a(f"""
    s_nop 1
    v_permlane16_swap_b32 v{V}, v{V+2}
    v_permlane16_swap_b32 v{V+1}, v{V+3}
    v_pk_add_f32 v[{V}:{V+1}], v[{V}:{V+1}], v[{V+2}:{V+3}]
    s_nop 1
    v_add_f32_dpp v{V}, v{V}, v{V} row_ror:8 row_mask:0xf bank_mask:0xf
    v_add_f32_dpp v{V+1}, v{V+1}, v{V+1} row_ror:8 row_mask:0xf bank_mask:0xf
    v_cvt_pk_bf16_f32 v{T}, v{V}, v{V+1}
    v_min_u32 v{T}, s49, v{T}
    buffer_store_dword v{T}, v{vDst}, s[12:15], s33 offen
    """)

CSLEEP = int(os.environ.get('REC_CSLEEP', 8))
CSLEEP0 = int(os.environ.get('REC_CSLEEP0', 4))
ASLEEP = int(os.environ.get('REC_ASLEEP', 6))
SSLEEP = int(os.environ.get('REC_SSLEEP', 0))
A_X2 = 1024
A_M = 1536
A_V = 2048
DSLEEP = int(os.environ.get('REC_DSLEEP', 16))
NOU = int(os.environ.get('REC_NOU', 0))
NOST = int(os.environ.get('REC_NOST', 0))

def rec_body(a, pfx):
    L = lambda n: f"{pfx}_{n}"
    lane_fields(a)
    cwindow(a, 24, 4)
    a(f"""
    s_mov_b32 s40, {PAR_OFF}
    s_load_dword s41, s[4:5], s40
    s_cmp_ge_u32 s16, 12
    s_cselect_b32 s19, 1, 0              ; vgl
    s_mul_i32 s40, s19, 12
    s_sub_u32 s20, s16, s40              ; m (0..11)
    s_mul_i32 s55, s19, 10
    s_add_u32 s55, s55, s20
    s_lshl_b32 s40, s18, 1
    s_add_u32 s19, s19, s40              ; vg
    s_mul_i32 s21, s20, 11
    s_lshr_b32 s21, s21, 5               ; hh = m/3
    s_mul_i32 s40, s21, 3
    s_sub_u32 s22, s20, s40              ; c = m%3
    s_and_b32 s23, s17, 3                ; kq
    s_lshl_b32 s25, s19, 2
    s_add_u32 s26, s25, s23              ; head2
    s_add_u32 s25, s25, s21              ; H1
    s_mul_i32 s47, s19, {A_VG}
    s_add_u32 s47, s47, {A_OFF}
    s_mul_i32 s48, s18, {D_X}
    s_add_u32 s48, s48, {D_OFF}
    s_mov_b32 s49, 0xfffffffe
    s_mov_b32 s46, 4000000
    s_mov_b32 s44, 0x00ff00ff
    s_mov_b32 s45, 0x00ff00ff
    s_waitcnt lgkmcnt(0)
    s_and_b32 s41, s41, 8192
    s_add_u32 s24, s24, s41
    s_lshl_b32 s56, s22, 2
    s_add_u32 s56, s56, s23
    s_mul_i32 s50, s25, 384
    s_lshl_b32 s40, s56, 5
    s_add_u32 s50, s50, s40
    s_mul_i32 s51, s17, 20480
    v_lshlrev_b32 v249, 4, v255
    v_add_u32 v248, s51, v249
    v_bfe_u32 v247, v255, 2, 2           ; r
    v_and_b32 v245, 3, v255
    v_lshl_add_u32 v246, v251, 2, v247   ; 4g + r
    v_lshlrev_b32 v246, 5, v246
    v_lshl_add_u32 v246, v245, 3, v246
    v_add_u32 v246, s51, v246
    v_lshl_add_u32 v244, v251, 3, v247   ; 8g + r
    v_lshlrev_b32 v244, 7, v244
    v_lshl_add_u32 v244, v245, 3, v244
    v_add_u32 v244, s51, v244
    v_lshlrev_b32 v243, 7, v251
    v_lshl_add_u32 v243, v252, 4, v243   ; g*128 + row*16
    v_mov_b32 v242, {OOB}
    s_mov_b32 s27, 0
    """)
    WB = DM * H * DH * 2
    T = 236
    def transpose_tile(raw):
        for n in range(20):
            a(f"ds_write_b128 v248, v[{raw+4*n}:{raw+4*n+3}] offset:{1024*n}")
        a("s_waitcnt lgkmcnt(0)")
        for ks in range(20):
            for hr in range(2):
                r = raw + ks * 4 + 2 * hr
                a(f"ds_read_b64_tr_b16 v[{r}:{r+1}], v246 offset:{ks*1024+hr*512}")
        a("s_waitcnt lgkmcnt(0)")
    NFB = 6
    def job(tiles, FB, AC, barrier_at=None, extra=(), late=()):
        late = list(late)
        for j in range(NFB - 1):
            a(f"ds_read_b128 v[{FB+4*j}:{FB+4*j+3}], v243 offset:{L_MEMX+512*j}")
        for e in extra: a(e)
        for ks in range(20):
            fb = FB + 4 * (ks % NFB)
            if barrier_at is not None and ks == barrier_at:
                a("s_barrier")
            a(f"s_waitcnt lgkmcnt({min(NFB-2, 19-ks)})")
            for ti, wb in enumerate(tiles):
                c = '0' if ks == 0 else f"v[{AC+4*ti}:{AC+4*ti+3}]"
                a(f"v_mfma_f32_16x16x32_bf16 v[{AC+4*ti}:{AC+4*ti+3}], v[{wb+4*ks}:{wb+4*ks+3}], v[{fb}:{fb+3}], {c}")
            nk = ks + NFB - 1
            if nk < 20:
                nb = FB + 4 * (nk % NFB)
                a(f"ds_read_b128 v[{nb}:{nb+3}], v243 offset:{L_MEMX+512*nk}")
            if late and ks >= 1: a(late.pop(0))

    a(f"s_cmp_ge_u32 s17, 4\ns_cbranch_scc1 {L('s2w')}")

    load_tile(a, KA['wq'], WB, 50, 0, T)
    load_tile(a, KA['wk'], WB, 50, 80, T)
    a("s_waitcnt vmcnt(20)")
    transpose_tile(0)
    a("s_waitcnt vmcnt(0)")
    transpose_tile(80)
    FB, AC = 160, 184
    MF = 160
    VF, OD = 160, 172
    ZA = 184
    WOB = 200
    ZFR = [228, 230, 232, 246]
    QF, KF = 192, 244
    SD = 160; SR = 172
    TT = 200
    KX = 234; KXN = 238
    al = R(212)
    vD, vD3, vVld, vZw, vWo, vCld, vDst, vY, vK0, vSXw, vSXr, vSst, vKM, vR2r, vRLr, vCst = [al() for _ in range(16)]
    a(f"""
    s_mul_i32 s40, s23, 2560
    v_add_u32 v{vD3}, s40, v243
    v_lshl_add_u32 v{vD}, v253, 9, v{vD3}
    s_mul_i32 s40, s23, {A_HEAD}
    s_add_u32 s40, s40, {A_V}
    v_lshl_add_u32 v{vVld}, v253, 9, v243
    v_add_u32 v{vVld}, s40, v{vVld}
    s_lshl_b32 s40, s23, 10
    s_add_u32 s40, s40, {L_ZM}
    v_lshlrev_b32 v{vZw}, 7, v251
    v_lshl_add_u32 v{vZw}, v250, 2, v{vZw}
    v_add_u32 v{vZw}, s40, v{vZw}
    v_mov_b32 v{T+1}, {L_DUMMY}
    v_cmp_gt_u32 vcc, 2, v251
    s_mul_i32 s40, s23, 24576
    s_add_u32 s40, s40, {L_WO}
    v_cndmask_b32 v{vZw}, v{T+1}, v{vZw}, vcc
    v_add_u32 v{vWo}, s40, v249
    v_lshlrev_b32 v{vY}, 8, v251
    v_lshl_add_u32 v{vY}, v250, 3, v{vY}
    v_cndmask_b32 v{vY}, v242, v{vY}, vcc
    s_mul_i32 s38, s26, {YH}
    s_add_u32 s38, s38, {Y_OFF}
    s_lshl_b32 s40, s20, 10
    s_add_u32 s38, s38, s40
    ; K_x frags
    s_lshl_b32 s41, s56, 10
    v_lshl_add_u32 v{T}, v253, 4, v252
    v_lshlrev_b32 v{vK0}, 4, v{T}
    v_and_b32 v{T+1}, 1, v251
    v_lshrrev_b32 v{T+2}, 1, v251
    v_lshl_add_u32 v{vK0}, v{T+1}, 9, v{vK0}
    v_lshl_add_u32 v{vK0}, v{T+2}, 3, v{vK0}
    v_add_u32 v{vK0}, s41, v{vK0}
    s_lshl_b32 s41, s56, 8
    v_lshlrev_b32 v{vKM}, 7, v{T+1}
    v_lshl_add_u32 v{vKM}, v252, 4, v{vKM}
    v_lshl_add_u32 v{vKM}, v{T+2}, 3, v{vKM}
    v_add_u32 v{vKM}, s41, v{vKM}
    v_cmp_eq_u32 vcc, 0, v253
    s_nop 1
    v_cndmask_b32 v{vKM}, v242, v{vKM}, vcc
    s_mul_i32 s40, s17, 3072
    s_add_u32 s40, s40, {L_SX}
    v_add_u32 v{vSXw}, s40, v249
    s_lshl_b32 s40, s17, 10
    s_add_u32 s40, s40, {L_SX}
    v_add_u32 v{vSXr}, s40, v249
    s_mul_i32 s40, s21, {A_HEAD}
    s_cmp_ge_u32 s17, 2
    s_cbranch_scc1 {L('sst2')}
    v_lshl_add_u32 v{vSst}, v251, 4, v252
    s_lshl_b32 s41, s17, 3
    v_add_u32 v{vSst}, s41, v{vSst}
    s_cmp_eq_u32 s22, 2
    s_cbranch_scc1 {L('sstc2')}
    s_lshl_b32 s41, s22, 3
    s_add_u32 s40, s40, s41
    v_lshlrev_b32 v{vSst}, 4, v{vSst}
    s_branch {L('sstc')}
    """)
    a.label(L('sstc2'))
    a(f"s_add_u32 s40, s40, {A_X2}\nv_lshlrev_b32 v{vSst}, 3, v{vSst}")
    a.label(L('sstc'))
    a(f"""
    v_add_u32 v{vSst}, s40, v{vSst}
    v_cndmask_b32 v{vSst}, v242, v{vSst}, vcc
    s_branch {L('sstd')}
    """)
    a.label(L('sst2'))
    a(f"""
    s_lshl_b32 s41, s22, 2
    s_add_u32 s40, s40, s41
    s_add_u32 s40, s40, {A_M}
    v_lshlrev_b32 v{vSst}, 4, v252
    v_lshl_add_u32 v{vSst}, v251, 8, v{vSst}
    v_add_u32 v{vSst}, s40, v{vSst}
    v_cndmask_b32 v{vSst}, v242, v{vSst}, vcc
    v_cmp_gt_u32 vcc, 2, v251
    s_nop 1
    v_cndmask_b32 v{vSst}, v242, v{vSst}, vcc
    """)
    a.label(L('sstd'))
    a(f"""
    v_lshrrev_b32 v{T+4}, 3, v255
    v_mul_u32_u24 v{vR2r}, {RP2}, v252
    v_lshl_add_u32 v{vR2r}, v{T+4}, 4, v{vR2r}
    s_and_b32 s41, s17, 1
    s_lshl_b32 s40, s41, 7
    s_add_u32 s40, s40, {L_R2}
    v_add_u32 v{vR2r}, s40, v{vR2r}
    v_lshlrev_b32 v{vRLr}, 4, v252
    v_add_u32 v{vRLr}, {L_RL}, v{vRLr}
    s_mul_i32 s40, s19, 10240
    s_lshl_b32 s42, s20, 1
    s_add_u32 s42, s42, s41
    s_lshl_b32 s42, s42, 9
    s_add_u32 s40, s40, s42
    v_lshlrev_b32 v{vCst}, 3, v255
    v_add_u32 v{vCst}, s40, v{vCst}
    """)
    cphys(a, vCst, T + 4)
    a(f"""
    s_mul_i32 s37, s25, {KMH}
    s_add_u32 s37, s37, {KM_OFF - KM_SEG}
    s_sub_u32 s38, s38, {Y_SEG}
    s_cmp_lt_u32 s20, 10
    s_cbranch_scc1 {L('yok')}
    v_mov_b32 v{vY}, v242
    """)
    a.label(L('yok'))
    a(f"""
    s_mul_i32 s35, s25, {PH}
    s_add_u32 s35, s35, {K_OFF}
    buffer_load_dwordx2 v[{KXN}:{KXN+1}], v{vK0}, s[12:15], s35 offen
    buffer_load_dwordx2 v[{KXN+2}:{KXN+3}], v{vK0}, s[12:15], s35 offen offset:128
    s_add_u32 s35, s35, {P_SEG}
    s_barrier
    s_barrier
    s_memtime s[96:97]
    s_waitcnt lgkmcnt(0)
    s_setprio 3
    """)
    a.label(L('loopA'))
    slot_bases(a)
    stamp(a, 0)
    poll(a, pfx, [f"buffer_load_dwordx4 v[{MF}:{MF+3}], v{vD}, s[12:15], s32 offen sc1",
                  f"buffer_load_dwordx4 v[{MF+4}:{MF+7}], v{vD}, s[12:15], s32 offen offset:1024 sc1",
                  f"buffer_load_dwordx4 v[{MF+8}:{MF+11}], v{vD3}, s[12:15], s32 offen offset:2048 sc1"],
         range(MF, MF + 12), TT)
    stamp(a, 1)
    a(f"""
    ds_write_b128 v{vD}, v[{MF}:{MF+3}] offset:{L_MEMX}
    ds_write_b128 v{vD}, v[{MF+4}:{MF+7}] offset:{L_MEMX+1024}
    ds_write_b128 v{vD3}, v[{MF+8}:{MF+11}] offset:{L_MEMX+2048}
    s_waitcnt lgkmcnt(0)
    s_barrier
    """)
    stamp(a, 2)
    def deferred():
        ops = [f"buffer_store_dwordx2 v[{KF}:{KF+1}], v{vKM}, s[12:15], s37 offen sc1", f"s_add_u32 s37, s37, {KM_SEG}"]
        ops += [f"buffer_store_dwordx2 v[{ZFR[t]}:{ZFR[t]+1}], v{vY}, s[12:15], s38 offen offset:{(t>>1)*512+(t&1)*128} sc1" for t in range(4)]
        ops += [f"s_add_u32 s38, s38, {Y_SEG}"]
        return [] if NOST else ops
    job([0, 80], FB, AC, late=deferred(), extra=[f"v_mov_b32 v{KX+j}, v{KXN+j}" for j in range(4)] +
                               [f"buffer_load_dwordx2 v[{KXN}:{KXN+1}], v{vK0}, s[12:15], s35 offen",
                                f"buffer_load_dwordx2 v[{KXN+2}:{KXN+3}], v{vK0}, s[12:15], s35 offen offset:128",
                                f"s_add_u32 s35, s35, {0 if NOU else P_SEG}"])
    stamp(a, 3)
    a(f"""
    s_nop 6
    v_cvt_pk_bf16_f32 v{QF}, v{AC}, v{AC+1}
    v_cvt_pk_bf16_f32 v{QF+1}, v{AC+2}, v{AC+3}
    v_cvt_pk_bf16_f32 v{KF}, v{AC+4}, v{AC+5}
    v_cvt_pk_bf16_f32 v{KF+1}, v{AC+6}, v{AC+7}
    s_nop 0
    v_mfma_f32_16x16x16_bf16 v[{SD}:{SD+3}], v[{KX}:{KX+1}], v[{QF}:{QF+1}], 0
    v_mfma_f32_16x16x16_bf16 v[{SD+4}:{SD+7}], v[{KX+2}:{KX+3}], v[{QF}:{QF+1}], 0
    v_mfma_f32_16x16x16_bf16 v[{SD+8}:{SD+11}], v[{KF}:{KF+1}], v[{QF}:{QF+1}], 0
    s_nop 5
    ds_write_b128 v{vSXw}, v[{SD}:{SD+3}]
    ds_write_b128 v{vSXw}, v[{SD+4}:{SD+7}] offset:1024
    ds_write_b128 v{vSXw}, v[{SD+8}:{SD+11}] offset:2048
    s_waitcnt lgkmcnt(0)
    s_barrier
    """)
    stamp(a, 4)
    a(f"""
    s_cmp_eq_u32 s17, 3
    s_cbranch_scc1 {L('std')}
    ds_read_b128 v[{SD}:{SD+3}], v{vSXr}
    ds_read_b128 v[{SD+4}:{SD+7}], v{vSXr} offset:3072
    ds_read_b128 v[{SR}:{SR+3}], v{vSXr} offset:6144
    ds_read_b128 v[{SR+4}:{SR+7}], v{vSXr} offset:9216
    s_waitcnt lgkmcnt(2)
    v_pk_add_f32 v[{SD}:{SD+1}], v[{SD}:{SD+1}], v[{SD+4}:{SD+5}]
    v_pk_add_f32 v[{SD+2}:{SD+3}], v[{SD+2}:{SD+3}], v[{SD+6}:{SD+7}]
    s_waitcnt lgkmcnt(0)
    v_pk_add_f32 v[{SR}:{SR+1}], v[{SR}:{SR+1}], v[{SR+4}:{SR+5}]
    v_pk_add_f32 v[{SR+2}:{SR+3}], v[{SR+2}:{SR+3}], v[{SR+6}:{SR+7}]
    v_pk_add_f32 v[{SD}:{SD+1}], v[{SD}:{SD+1}], v[{SR}:{SR+1}]
    v_pk_add_f32 v[{SD+2}:{SD+3}], v[{SD+2}:{SD+3}], v[{SR+2}:{SR+3}]
    v_cvt_pk_bf16_f32 v{SR}, v{SD}, v{SD+1}
    v_cvt_pk_bf16_f32 v{SR+1}, v{SD+2}, v{SD+3}
    v_min_u32 v{SR}, s49, v{SR}
    v_min_u32 v{SR+1}, s49, v{SR+1}
    s_cmp_eq_u32 s17, 2
    s_cbranch_scc1 {L('st2')}
    buffer_store_dwordx2 v[{SR}:{SR+1}], v{vSst}, s[12:15], s28 offen
    s_branch {L('std')}
    """)
    a.label(L('st2'))
    a(f"""
    buffer_store_dword v{SR}, v{vSst}, s[12:15], s28 offen
    buffer_store_dword v{SR+1}, v{vSst}, s[12:15], s28 offen offset:128
    """)
    a.label(L('std'))
    stamp(a, 5)
    a(f"s_cmp_ge_u32 s20, 10\ns_cbranch_scc1 {L('endA')}")
    order = [(es, t) for es in (0, 2, 4, 1, 3, 5) for t in range(4)]
    for j in range(3):
        es, t = order[j]
        a(f"ds_read_b128 v[{WOB+4*j}:{WOB+4*j+3}], v{vWo} offset:{1024*(es*4+t)}")
    a(f"s_setprio 1\ns_sleep {ASLEEP}")
    poll(a, pfx, [f"buffer_load_dwordx4 v[{VF+4*j}:{VF+4*j+3}], v{vVld}, s[12:15], s28 offen offset:{1024*j} sc1" for j in range(3)],
         range(VF, VF + 12), 248)
    stamp(a, 7)
    movs = [f"v_mov_b32_dpp v{OD+j}, v{VF+j} row_ror:8 row_mask:0xf bank_mask:0xf" for j in range(12)]
    for j, (es, t) in enumerate(order):
        f = (VF if es % 2 == 0 else OD) + 4 * (es // 2)
        wb = WOB + 4 * (j % 3)
        a(f"s_waitcnt lgkmcnt({min(2, 23-j)})")
        c = '0' if es == 0 else f"v[{ZA+4*t}:{ZA+4*t+3}]"
        a(f"v_mfma_f32_16x16x32_bf16 v[{ZA+4*t}:{ZA+4*t+3}], v[{f}:{f+3}], v[{wb}:{wb+3}], {c}")
        if j + 3 < 24:
            e2, t2 = order[j + 3]
            a(f"ds_read_b128 v[{wb}:{wb+3}], v{vWo} offset:{1024*(e2*4+t2)}")
        if movs: a(movs.pop(0))
    a("s_nop 4")
    for t in range(4):
        a(f"v_cvt_pk_bf16_f32 v{ZFR[t]}, v{ZA+4*t}, v{ZA+4*t+1}")
        a(f"v_cvt_pk_bf16_f32 v{ZFR[t]+1}, v{ZA+4*t+2}, v{ZA+4*t+3}")
        a(f"ds_write2_b32 v{vZw}, v{ZFR[t]}, v{ZFR[t]+1} offset0:{64*t} offset1:{64*t+16}")
    stamp(a, 8)
    a("s_waitcnt lgkmcnt(0)\ns_barrier\ns_setprio 3")
    stamp(a, 9)
    a("s_barrier")
    stamp(a, 10)
    a(f"s_cmp_ge_u32 s17, 2\ns_cbranch_scc1 {L('w2c')}")
    XR = 168; RL = 184
    a(f"ds_read_b128 v[{RL}:{RL+3}], v{vRLr}")
    for hd in range(4):
        a(f"ds_read_b128 v[{XR+4*hd}:{XR+4*hd+3}], v{vR2r} offset:{hd*8*RP2}")
    a(f"""
    s_waitcnt lgkmcnt(3)
    v_pk_mul_f32 v[{XR}:{XR+1}], v[{XR}:{XR+1}], v[{RL}:{RL+1}] op_sel_hi:[1,0]
    v_pk_mul_f32 v[{XR+2}:{XR+3}], v[{XR+2}:{XR+3}], v[{RL}:{RL+1}] op_sel_hi:[1,0]
    s_waitcnt lgkmcnt(2)
    v_pk_fma_f32 v[{XR}:{XR+1}], v[{XR+4}:{XR+5}], v[{RL}:{RL+1}], v[{XR}:{XR+1}] op_sel:[0,1,0] op_sel_hi:[1,1,1]
    v_pk_fma_f32 v[{XR+2}:{XR+3}], v[{XR+6}:{XR+7}], v[{RL}:{RL+1}], v[{XR+2}:{XR+3}] op_sel:[0,1,0] op_sel_hi:[1,1,1]
    s_waitcnt lgkmcnt(1)
    v_pk_fma_f32 v[{XR}:{XR+1}], v[{XR+8}:{XR+9}], v[{RL+2}:{RL+3}], v[{XR}:{XR+1}] op_sel_hi:[1,0,1]
    v_pk_fma_f32 v[{XR+2}:{XR+3}], v[{XR+10}:{XR+11}], v[{RL+2}:{RL+3}], v[{XR+2}:{XR+3}] op_sel_hi:[1,0,1]
    s_waitcnt lgkmcnt(0)
    v_pk_fma_f32 v[{XR}:{XR+1}], v[{XR+12}:{XR+13}], v[{RL+2}:{RL+3}], v[{XR}:{XR+1}] op_sel:[0,1,0] op_sel_hi:[1,1,1]
    v_pk_fma_f32 v[{XR+2}:{XR+3}], v[{XR+14}:{XR+15}], v[{RL+2}:{RL+3}], v[{XR+2}:{XR+3}] op_sel:[0,1,0] op_sel_hi:[1,1,1]
    v_cvt_pk_bf16_f32 v{TT+8}, v{XR}, v{XR+1}
    v_cvt_pk_bf16_f32 v{TT+9}, v{XR+2}, v{XR+3}
    v_min_u32 v{TT+8}, s49, v{TT+8}
    v_min_u32 v{TT+9}, s49, v{TT+9}
    buffer_store_dwordx2 v[{TT+8}:{TT+9}], v{vCst}, s[12:15], s30 offen sc1
    """)
    a.label(L('w2c'))
    a(f"s_sleep {DSLEEP}")
    a.label(L('endA'))
    stamp(a, 11)
    a(f"""
    s_add_u32 s27, s27, 1
    s_cmp_lt_u32 s27, {NST}
    s_cbranch_scc1 {L('loopA')}
    """)
    for op in deferred(): a(op)
    a(f"s_branch {L('done')}")

    a.label(L('s2w'))
    load_tile(a, KA['wv'], WB, 50, 0, T)
    a(f"""
    s_load_dwordx2 s[8:9], s[0:1], {KA['wo']}
    s_mul_i32 s54, s26, {DH*DM*2}
    s_min_u32 s40, s20, 9
    s_lshl_b32 s40, s40, 7
    s_add_u32 s54, s54, s40
    v_lshrrev_b32 v{T}, 3, v255
    v_mul_u32_u24 v{T}, 1280, v{T}
    v_lshl_add_u32 v{T}, v252, 4, v{T}
    s_waitcnt lgkmcnt(0)
    """)
    for n in range(24):
        a(f"buffer_load_dwordx4 v[{80+4*n}:{80+4*n+3}], v{T}, s[8:11], s54 offen")
        a(f"s_add_u32 s54, s54, {8*1280}")
    a("s_waitcnt vmcnt(24)")
    transpose_tile(0)
    a("s_waitcnt vmcnt(0)")
    for half in range(2):
        for n in range(12):
            k = 12 * half + n
            a(f"ds_write_b128 v248, v[{80+4*k}:{80+4*k+3}] offset:{1024*n}")
        a("s_waitcnt lgkmcnt(0)")
        for e3 in range(3):
            for t in range(4):
                for hr in range(2):
                    rr = 80 + ((3 * half + e3) * 4 + t) * 4 + 2 * hr
                    a(f"ds_read_b64_tr_b16 v[{rr}:{rr+1}], v244 offset:{e3*4096+hr*512+t*32}")
        a("s_waitcnt lgkmcnt(0)")
    a(f"""
    s_barrier
    s_mul_i32 s40, s23, 24576
    s_add_u32 s40, s40, {L_WO}
    v_add_u32 v{T}, s40, v249
    """)
    for n in range(24):
        a(f"ds_write_b128 v{T}, v[{80+4*n}:{80+4*n+3}] offset:{1024*n}")
    a("s_waitcnt lgkmcnt(0)")
    al = R(200)
    vV, vAx, vAm, vR2w, vRLw, vZr, vCld, vDst, vU, vPr, vA2 = [al() for _ in range(11)]
    vP = al(5); vPo = al(4, 4)
    a(f"""
    s_lshl_b32 s40, s56, 8
    s_mul_i32 s41, s21, {A_HEAD}
    s_add_u32 s40, s40, s41
    s_add_u32 s40, s40, {A_V}
    v_lshrrev_b32 v{T}, 1, v251
    v_lshlrev_b32 v{vV}, 7, v{T}
    v_and_b32 v{T}, 1, v251
    v_lshl_add_u32 v{vV}, v{T}, 3, v{vV}
    v_lshl_add_u32 v{vV}, v252, 4, v{vV}
    v_add_u32 v{vV}, s40, v{vV}
    v_cmp_eq_u32 vcc, 0, v253
    s_nop 1
    v_cndmask_b32 v{vV}, v242, v{vV}, vcc
    s_mul_i32 s40, s23, {A_HEAD}
    v_add_u32 v{vAx}, s40, v249
    v_lshlrev_b32 v{vA2}, 3, v255
    v_add_u32 v{vA2}, s40, v{vA2}
    v_add_u32 v{vAm}, s40, v243
    s_mul_i32 s40, s23, {8*RP2}
    s_add_u32 s40, s40, {L_R2}
    v_mul_u32_u24 v{vR2w}, {RP2}, v252
    v_lshl_add_u32 v{vR2w}, v251, 4, v{vR2w}
    v_add_u32 v{vR2w}, s40, v{vR2w}
    s_lshl_b32 s40, s23, 2
    s_add_u32 s40, s40, {L_RL}
    v_lshlrev_b32 v{vRLw}, 4, v252
    v_add_u32 v{vRLw}, s40, v{vRLw}
    s_lshl_b32 s40, s23, 10
    s_add_u32 s40, s40, {L_ZM}
    v_lshlrev_b32 v{vZr}, 2, v255
    v_add_u32 v{vZr}, s40, v{vZr}
    v_lshlrev_b32 v{vU}, 9, v251
    v_lshl_add_u32 v{vU}, v250, 4, v{vU}
    s_mul_i32 s36, s26, {UH}
    s_add_u32 s36, s36, {U_OFF}
    s_lshl_b32 s40, s20, 12
    s_add_u32 s36, s36, s40
    s_mul_i32 s40, s21, {A_HEAD}
    s_lshl_b32 s42, s22, 3
    s_cmp_eq_u32 s22, 2
    s_cselect_b32 s42, {A_X2}, s42
    s_cselect_b32 s43, 3, 4
    s_add_u32 s42, s42, s40
    v_lshlrev_b32 v{vP}, s43, v255
    v_add_u32 v{vP}, s42, v{vP}
    s_lshl_b32 s42, s22, 2
    s_add_u32 s42, s42, s40
    s_add_u32 s42, s42, {A_M}
    v_add_u32 v{vP+1}, s42, v249
    v_cmp_gt_u32 vcc, 32, v255
    s_lshl_b32 s42, s22, 10
    s_add_u32 s42, s42, s40
    s_add_u32 s42, s42, {A_V}
    v_cndmask_b32 v{vP+1}, v242, v{vP+1}, vcc
    v_add_u32 v{vP+4}, s42, v249
    s_lshl_b32 s42, s55, 9
    v_add_u32 v{vP+3}, s42, v249
    v_cndmask_b32 v{vP+3}, v242, v{vP+3}, vcc
    s_mul_i32 s40, s19, 10240
    s_lshl_b32 s42, s20, 10
    s_add_u32 s40, s40, s42
    v_add_u32 v{vP+2}, s40, v249
    """)
    cphys(a, vP + 2, T)
    a(f"""
    v_mov_b32 v{vPo}, -1
    v_mov_b32 v{vPo+1}, -1
    v_mov_b32 v{vPo+2}, -1
    v_mov_b32 v{vPo+3}, -1
    s_lshl_b32 s40, s18, 7
    s_add_u32 s40, s40, {PROG_OFF}
    v_mov_b32 v{vPr}, s40
    """)
    s3_setup(a, vCld, vDst, T)
    UF = 80
    FB7, AC7 = 96, 120
    SC = 124
    SL = 136
    PF = 156
    ZR = 164
    OA = 180
    TT = 224
    cs = DH ** -0.5 * math.log2(math.e)
    a(f"s_mov_b32 s53, {f32(cs)}")
    for j in list(range(PF + 5, PF + 8)) + [ZR + 4 * t + k for t in range(4) for k in (1, 2, 3)]:
        a(f"v_mov_b32 v{j}, 0")
    a("s_barrier\ns_memtime s[96:97]\ns_waitcnt lgkmcnt(0)\ns_setprio 1")
    a.label(L('loopS'))
    slot_bases(a)
    stamp(a, 0)
    a("s_barrier")
    stamp(a, 2)
    a(f"s_cmp_ge_u32 s20, 10\ns_cbranch_scc1 {L('nou')}")
    for t in range(4):
        a(f"buffer_load_dwordx4 v[{UF+4*t}:{UF+4*t+3}], v{vU}, s[12:15], s36 offen offset:{(t>>1)*2048+(t&1)*256}")
    if not NOU: a(f"s_add_u32 s36, s36, {U_SEG}")
    a.label(L('nou'))
    a(f"s_cmp_lg_u32 s17, 6\ns_cbranch_scc1 {L('nopois')}")
    a(f"""
    buffer_store_dwordx2 v[{vPo}:{vPo+1}], v{vP}, s[12:15], s29 offen
    buffer_store_dword v{vPo}, v{vP+1}, s[12:15], s29 offen
    buffer_store_dwordx4 v[{vPo}:{vPo+3}], v{vP+4}, s[12:15], s29 offen
    s_cmp_ge_u32 s20, 10
    s_cbranch_scc1 {L('nopois')}
    buffer_store_dwordx4 v[{vPo}:{vPo+3}], v{vP+2}, s[12:15], s31 offen sc1
    buffer_store_dwordx4 v[{vPo}:{vPo+3}], v{vP+3}, s[12:15], s34 offen
    """)
    a.label(L('nopois'))
    a(f"""
    s_cmp_lg_u32 s17, 5
    s_cbranch_scc1 {L('noprog')}
    s_cmp_lg_u32 s16, 11
    s_cbranch_scc1 {L('noprog')}
    s_add_u32 s40, s27, 1
    v_mov_b32 v{TT}, s40
    buffer_store_dword v{TT}, v{vPr}, s[12:15], 0 offen sc1
    """)
    a.label(L('noprog'))
    job([0], FB7, AC7, barrier_at=int(os.environ.get('REC_B1S', 0)))
    a(f"""
    s_nop 7
    v_cvt_pk_bf16_f32 v{SC}, v{AC7}, v{AC7+1}
    v_cvt_pk_bf16_f32 v{SC+1}, v{AC7+2}, v{AC7+3}
    v_min_u32 v{SC}, s49, v{SC}
    v_min_u32 v{SC+1}, s49, v{SC+1}
    buffer_store_dwordx2 v[{SC}:{SC+1}], v{vV}, s[12:15], s28 offen
    """)
    stamp(a, 5)
    a(f"s_cmp_ge_u32 s20, 10\ns_cbranch_scc1 {L('endS')}")
    a("s_setprio 3")
    if SSLEEP: a(f"s_sleep {SSLEEP}")
    poll(a, pfx, [f"buffer_load_dwordx4 v[{SC}:{SC+3}], v{vAx}, s[12:15], s28 offen sc1",
                  f"buffer_load_dwordx2 v[{SC+4}:{SC+5}], v{vA2}, s[12:15], s28 offen offset:{A_X2} sc1",
                  f"buffer_load_dwordx3 v[{SC+8}:{SC+10}], v{vAm}, s[12:15], s28 offen offset:{A_M} sc1"],
         list(range(SC, SC + 6)) + list(range(SC + 8, SC + 11)), TT)
    stamp(a, 7)
    src = list(range(SC, SC + 6)) + list(range(SC + 8, SC + 11))
    for j, sreg in enumerate(src):
        a(f"v_lshlrev_b32 v{SL+2*j}, 16, v{sreg}")
        a(f"v_and_b32 v{SL+2*j+1}, 0xffff0000, v{sreg}")
    pk = lambda d, x, y: a(f"v_pk_add_f32 v[{d}:{d+1}], v[{x}:{x+1}], v[{y}:{y+1}]")
    pk(SL, SL, SL + 4); pk(SL + 2, SL + 2, SL + 6); pk(SL + 4, SL + 12, SL + 14)
    pk(SL, SL, SL + 8); pk(SL + 2, SL + 2, SL + 10); pk(SL + 4, SL + 4, SL + 16)
    mx, t2 = TT, TT + 1
    a(f"""
    v_max3_f32 v{mx}, v{SL}, v{SL+1}, v{SL+2}
    v_max3_f32 v{t2}, v{SL+3}, v{SL+4}, v{SL+5}
    v_max_f32 v{mx}, v{mx}, v{t2}
    s_nop 1
    v_max_f32_dpp v{mx}, v{mx}, v{mx} row_ror:8 row_mask:0xf bank_mask:0xf
    v_mov_b32 v{t2}, v{mx}
    s_nop 1
    v_permlane32_swap_b32 v{mx}, v{t2}
    v_max_f32 v{mx}, v{mx}, v{t2}
    v_mov_b32 v{t2}, v{mx}
    s_nop 1
    v_permlane16_swap_b32 v{mx}, v{t2}
    v_max_f32 v{mx}, v{mx}, v{t2}
    v_mul_f32 v{mx}, s53, v{mx}
    """)
    for j in range(6):
        a(f"v_fma_f32 v{SL+j}, v{SL+j}, s53, -v{mx}")
    for j in range(6):
        a(f"v_exp_f32 v{SL+j}, v{SL+j}")
    a(f"""
    v_cvt_pk_bf16_f32 v{PF}, v{SL}, v{SL+1}
    v_cvt_pk_bf16_f32 v{PF+1}, v{SL+2}, v{SL+3}
    v_cvt_pk_bf16_f32 v{PF+4}, v{SL+4}, v{SL+5}
    v_mov_b32_dpp v{PF+2}, v{PF} row_ror:8 row_mask:0xf bank_mask:0xf
    v_mov_b32_dpp v{PF+3}, v{PF+1} row_ror:8 row_mask:0xf bank_mask:0xf
    v_lshlrev_b32 v{SL}, 16, v{PF}
    v_and_b32 v{SL+1}, 0xffff0000, v{PF}
    """)
    sm = SL
    rest_sum = f"""v_lshlrev_b32 v{SL+2}, 16, v{PF+1}
    v_and_b32 v{SL+3}, 0xffff0000, v{PF+1}
    v_lshlrev_b32 v{SL+4}, 16, v{PF+4}
    v_and_b32 v{SL+5}, 0xffff0000, v{PF+4}
    v_pk_add_f32 v[{SL}:{SL+1}], v[{SL}:{SL+1}], v[{SL+2}:{SL+3}]
    v_add_f32 v{SL+4}, v{SL+4}, v{SL+5}
    v_add_f32 v{sm}, v{SL}, v{SL+1}
    v_fmac_f32 v{sm}, 0.5, v{SL+4}""".split('\n')
    for t in range(4):
        a(f"v_mfma_f32_16x16x32_bf16 v[{OA+4*t}:{OA+4*t+3}], v[{UF+4*t}:{UF+4*t+3}], v[{PF}:{PF+3}], 0")
        a(rest_sum[2 * t]); a(rest_sum[2 * t + 1])
    a(f"""
    s_nop 1
    v_add_f32_dpp v{sm}, v{sm}, v{sm} row_ror:8 row_mask:0xf bank_mask:0xf
    v_mov_b32 v{t2}, v{sm}
    s_nop 1
    v_permlane32_swap_b32 v{sm}, v{t2}
    v_add_f32 v{sm}, v{sm}, v{t2}
    v_mov_b32 v{t2}, v{sm}
    s_nop 1
    v_permlane16_swap_b32 v{sm}, v{t2}
    v_add_f32 v{sm}, v{sm}, v{t2}
    v_rcp_f32 v{sm}, v{sm}
    s_nop 0
    ds_write_b32 v{vRLw}, v{sm}
    """)
    stamp(a, 8)
    a("s_barrier")
    stamp(a, 9)
    for t in range(4):
        a(f"ds_read_b32 v{ZR+4*t}, v{vZr} offset:{256*t}")
    for t in range(4):
        a(f"s_waitcnt lgkmcnt({3-t})")
        a(f"v_mfma_f32_16x16x32_bf16 v[{OA+4*t}:{OA+4*t+3}], v[{ZR+4*t}:{ZR+4*t+3}], v[{PF+4}:{PF+7}], v[{OA+4*t}:{OA+4*t+3}]")
    a("s_mov_b64 exec, s[44:45]\ns_nop 0")
    for t in range(4):
        if t: a("s_nop 1")
        a(f"ds_write_b128 v{vR2w}, v[{OA+4*t}:{OA+4*t+3}] offset:{64*t}")
    a("s_mov_b64 exec, -1\ns_waitcnt lgkmcnt(0)\ns_barrier\ns_setprio 1")
    stamp(a, 10)
    a(f"s_cmp_eq_u32 s27, {NST-1}\ns_cbranch_scc1 {L('done')}\ns_sleep {CSLEEP}")
    s3_run(a, pfx, vCld, vDst, TT)
    a.label(L('endS'))
    stamp(a, 11)
    a(f"s_add_u32 s27, s27, 1\ns_cmp_lt_u32 s27, {NST}\ns_cbranch_scc1 {L('loopS')}")
    a.label(L('done'))

def helper_body(a, pfx):
    L = lambda n: f"{pfx}_{n}"
    PFD = int(os.environ.get('REC_PFD', 3))
    a(f"""
    s_sub_u32 s19, s16, 24
    s_lshl_b32 s19, s19, 3
    s_add_u32 s19, s19, s17              ; gw 0..31
    s_lshl_b32 s20, s18, 3
    s_mul_i32 s21, s20, {UH}
    s_mul_i32 s40, s19, 10240
    s_add_u32 s21, s21, s40
    s_add_u32 s21, s21, {U_OFF}
    s_mul_i32 s22, s20, {PH}
    s_mul_i32 s40, s19, 3072
    s_add_u32 s22, s22, s40
    s_add_u32 s22, s22, {K_OFF}
    v_lshlrev_b32 v1, 4, v255
    v_add_u32 v2, 4096, v1
    v_add_u32 v3, 8192, v1
    s_lshl_b32 s40, s18, 7
    s_add_u32 s40, s40, {PROG_OFF}
    v_mov_b32 v4, s40
    s_mov_b32 s27, 0
    s_mov_b32 s46, 4000000
    """)
    a.label(L('hloop'))
    a(f"s_cmp_lt_u32 s27, {PFD}\ns_cbranch_scc1 {L('hgo')}")
    a.label(L('hwait'))
    a(f"""
    buffer_load_dword v5, v4, s[12:15], 0 offen sc1
    s_sub_u32 s46, s46, 1
    s_cbranch_scc1 {L('hdone')}
    s_waitcnt vmcnt(0)
    v_readfirstlane_b32 s40, v5
    s_add_u32 s40, s40, {PFD}
    s_cmp_gt_u32 s40, s27
    s_cbranch_scc1 {L('hgo')}
    s_sleep 8
    s_branch {L('hwait')}
    """)
    a.label(L('hgo'))
    k = 0
    for j in range(3):
        a(f"buffer_load_dwordx4 v[{8+4*k}:{11+4*k}], v1, s[12:15], s22 offen offset:{1024*j}"); k += 1
    for j in range(10):
        a(f"buffer_load_dwordx4 v[{8+4*k}:{11+4*k}], v{1+j//4}, s[12:15], s21 offen offset:{1024*(j%4)}"); k += 1
    a(f"""
    s_add_u32 s21, s21, {U_SEG}
    s_add_u32 s22, s22, {P_SEG}
    s_add_u32 s27, s27, 1
    s_waitcnt vmcnt(0)
    s_cmp_lt_u32 s27, {NST}
    s_cbranch_scc1 {L('hloop')}
    """)
    a.label(L('hdone'))

def gen_rec(a, name='rec_kernel'):
    a.raw(kernel_header(name))
    a(f"""
    s_cmp_ge_u32 s2, 256
    s_cbranch_scc1 REC_end
    s_load_dwordx2 s[4:5], s[0:1], {KA['ws']}
    s_getreg_b32 s18, hwreg(HW_REG_XCC_ID)
    s_and_b32 s18, s18, 7
    v_lshrrev_b32 v1, 6, v0
    v_and_b32 v255, 63, v0
    s_nop 0
    v_readfirstlane_b32 s17, v1
    s_memtime s[60:61]
    s_waitcnt lgkmcnt(0)
    """)
    srd(a, 12, 4, WS_BYTES)
    a(f"""
    v_mov_b32 v3, 1
    s_lshl_b32 s16, s18, 7
    s_add_u32 s16, s16, {TK_OFF}
    v_mov_b32 v4, s16
    v_mov_b32 v5, 0
    v_cmp_eq_u32 vcc, 0, v0
    s_and_saveexec_b64 s[26:27], vcc
    s_cbranch_execz REC_notk
    buffer_atomic_add v3, v4, s[12:15], 0 offen sc0
    s_waitcnt vmcnt(0)
    ds_write_b32 v5, v3
    s_waitcnt lgkmcnt(0)
    """)
    a.label('REC_notk')
    a(f"""
    s_mov_b64 exec, s[26:27]
    s_barrier
    ds_read_b32 v3, v5
    s_waitcnt lgkmcnt(0)
    v_readfirstlane_b32 s16, v3
    s_barrier
    s_cmp_ge_u32 s18, 4
    s_cbranch_scc1 REC_end
    s_cmp_ge_u32 s16, 28
    s_cbranch_scc1 REC_end
    s_cmp_lt_u32 s16, 24
    s_cbranch_scc1 REC_main
    """)
    if not NOU: helper_body(a, 'HLP')
    a("s_branch REC_end")
    a.label('REC_main')
    if STAMP >= 0:
        for i in range(12): a(f"s_mov_b32 s{64+i}, 0")
    rec_body(a, 'REC')
    if STAMP >= 0:
        a(f"""
        s_lshl_b32 s61, s18, 5
        s_add_u32 s61, s61, s16
        s_lshl_b32 s61, s61, 3
        s_add_u32 s61, s61, s17
        s_lshl_b32 s61, s61, 6
        s_add_u32 s61, s61, {FLAG_OFF}
        v_mov_b32 v3, 0
        """)
        for i in range(12): a(f"v_mov_b32 v{4+i}, s{64+i}")
        for i in range(3): a(f"buffer_store_dwordx4 v[{4+4*i}:{7+4*i}], v3, s[12:15], s61 offen offset:{16*i}")
    a(f"""
    s_memtime s[62:63]
    s_load_dwordx2 s[56:57], s[0:1], {KA['dbg']}
    s_waitcnt lgkmcnt(0)
    s_sub_u32 s62, s62, s60
    s_mov_b32 s58, 256
    s_mov_b32 s59, 0x00020000
    v_mov_b32 v4, s62
    s_sub_u32 s96, s96, s60
    v_mov_b32 v5, s96
    s_lshl_b32 s60, s17, 3
    s_lshl_b32 s61, s18, 5
    s_add_u32 s61, s61, s16
    s_cmp_eq_u32 s61, 0
    s_cselect_b32 s60, s60, 256
    v_mov_b32 v3, s60
    buffer_store_dwordx2 v[4:5], v3, s[56:59], 0 offen
    """)
    a.label('REC_end')
    a("s_endpgm")
    return kernel_desc(name)
```

```python
from asmlib import *
from layout import *

SSLOT = 40 * KB
NSLOT = 4
VSLOT = 12 * KB
WF = 0
AF = 144
ACC = (192, 208)
VT = 224
V_L16 = 240
V_LDSRD = 241
V_DMA = 242

def small_body(a, pfx):
    L = lambda n: f"{pfx}_{n}"
    a(f"""
    s_load_dwordx2 s[4:5], s[0:1], {KA['ws']}
    s_cmp_ge_u32 s16, 32
    s_cbranch_scc1 {L('rg')}
    s_load_dwordx2 s[6:7], s[0:1], {KA['wo']}
    s_mov_b32 s10, {H*DH*DM*2}
    s_mov_b32 s27, s16
    s_mul_i32 s20, s16, {PH}
    s_add_u32 s20, s20, {V_OFF}
    s_mov_b32 s23, {P_SEG}
    s_mul_i32 s21, s16, {UH}
    s_add_u32 s21, s21, {U_OFF}
    s_mov_b32 s22, {U_SEG}
    s_mov_b32 s26, 2048
    s_branch {L('rdone')}
    """)
    a.label(L('rg'))
    a(f"""
    s_load_dwordx2 s[6:7], s[0:1], {KA['w2']}
    s_mov_b32 s10, {F*DM*2}
    s_sub_u32 s27, s16, 32
    s_mul_i32 s20, s27, {PH}
    s_add_u32 s20, s20, {HID_OFF}
    s_mov_b32 s23, {HID_SEG}
    s_mul_i32 s21, s27, {GH}
    s_add_u32 s21, s21, {G_OFF}
    s_mov_b32 s22, {G_SEG}
    s_mov_b32 s26, 4096
    """)
    a.label(L('rdone'))
    a(f"""
    s_mul_i32 s19, s27, {DH*DM*2}
    s_mul_i32 s28, s17, 3
    s_lshl_b32 s29, s17, 1
    s_add_u32 s29, s29, 4
    s_cmp_lt_u32 s17, 4
    s_cselect_b32 s28, s28, s29
    s_mul_i32 s29, s28, s26
    s_add_u32 s21, s21, s29
    s_waitcnt lgkmcnt(0)
    s_mov_b32 s8, s6
    s_mov_b32 s9, s7
    s_mov_b32 s11, 0x00020000
    """)
    srd(a, 12, 4, WS_BYTES)
    SV = AF
    for n in range(5):
        a(f"""
        s_lshl_b32 s30, s17, 6
        s_add_u32 s30, s30, {512*n}
        v_add_u32 v{VT}, s30, v255
        v_mul_u32_u24 v{VT+1}, 52429, v{VT}
        v_lshrrev_b32 v{VT+1}, 22, v{VT+1}
        v_mul_u32_u24 v{VT+2}, 80, v{VT+1}
        v_sub_u32 v{VT+2}, v{VT}, v{VT+2}
        v_and_b32 v{VT+3}, 3, v{VT+1}
        v_lshlrev_b32 v{VT+3}, 2, v{VT+3}
        v_xor_b32 v{VT+2}, v{VT+2}, v{VT+3}
        v_mul_u32_u24 v{VT+1}, 1280, v{VT+1}
        v_lshl_add_u32 v{SV+n}, v{VT+2}, 4, v{VT+1}
        """)
    TB = AF + 8
    a(f"""
    v_lshrrev_b32 v{VT}, 5, v255
    v_lshlrev_b32 v{VT}, 2, v{VT}
    v_bfe_u32 v{VT+1}, v255, 2, 2
    v_add_u32 v{VT}, v{VT}, v{VT+1}
    v_mul_u32_u24 v{VT}, 1280, v{VT}
    v_bfe_u32 v{VT+2}, v255, 4, 1
    v_lshl_add_u32 v{VT}, v{VT+2}, 5, v{VT}
    v_and_b32 v{VT+2}, 3, v255
    v_lshl_add_u32 v{VT}, v{VT+2}, 3, v{VT}
    """)
    for t in range(3):
        a(f"""
        s_add_u32 s30, s28, {t}
        s_min_u32 s30, s30, 19
        v_xor_b32 v{VT+2}, s30, v{VT+1}
        v_lshl_add_u32 v{TB+t}, v{VT+2}, 6, v{VT}
        """)
    def stage_issue(q):
        a(f"s_add_u32 s33, s19, {q*SSLOT}")
        for n in range(5):
            a(f"s_lshl_b32 s34, s17, 10\ns_add_u32 s34, s34, {(q % NSLOT)*SSLOT + n*8192}\ns_mov_b32 m0, s34\ns_nop 0")
            a(f"buffer_load_dwordx4 v{SV+n}, s[8:11], s33 offen lds")
    for q in range(NSLOT):
        stage_issue(q)
    for q in range(6):
        outstanding = 5 * (min(q + NSLOT, 6) - q - 1)
        a(f"s_waitcnt vmcnt({outstanding})\ns_barrier")
        for t in range(3):
            a(f"v_add_u32 v{VT+4}, {(q % NSLOT)*SSLOT}, v{TB+t}")
            for p in range(2):
                for hr in range(2):
                    r = WF + (t * 12 + 2 * q + p) * 4 + 2 * hr
                    a(f"ds_read_b64_tr_b16 v[{r}:{r+1}], v{VT+4} offset:{p*20480+hr*10240}")
        a("s_waitcnt lgkmcnt(0)\ns_barrier")
        if q + NSLOT < 6:
            stage_issue(q + NSLOT)
    a("s_memtime s[52:53]")
    a(f"""
    v_lshlrev_b32 v{V_L16}, 4, v255
    s_lshl_b32 s30, s17, 10
    v_add_u32 v{V_DMA}, s30, v{V_L16}
    """)
    def dma(nt):
        a(f"s_lshl_b32 s34, s17, 10\ns_add_u32 s34, s34, s35\ns_mov_b32 m0, s34\ns_nop 0")
        a(f"buffer_load_dwordx4 v{V_DMA}, s[12:15], s43 offen lds")
        if nt == 3:
            a(f"s_add_u32 s34, s34, 8192\ns_mov_b32 m0, s34\ns_add_u32 s33, s43, 8192")
            a(f"buffer_load_dwordx4 v{V_DMA}, s[12:15], s33 offen lds")
    PD = 2
    def epi(acc, gmode, soff, toff):
        ops = []
        if not gmode:
            for i in range(8):
                ops.append(f"v_cvt_pk_bf16_f32 v{VT+i}, v{acc+2*i}, v{acc+2*i+1}")
            ops.append(f"s_add_u32 s33, s{soff}, {toff*2048}")
            ops.append(f"buffer_store_dwordx4 v[{VT}:{VT+3}], v{V_L16}, s[12:15], s33 offen")
            ops.append(f"buffer_store_dwordx4 v[{VT+4}:{VT+7}], v{V_L16}, s[12:15], s33 offen offset:1024")
        else:
            ops.append(f"s_add_u32 s33, s{soff}, {toff*4096}")
            for q in range(4):
                ops.append(f"buffer_store_dwordx4 v[{acc+4*q}:{acc+4*q+3}], v{V_L16}, s[12:15], s33 offen offset:{1024*q}")
        return ops
    def mfma(acc, t, ks, gmode, first):
        w = WF + (t * 12 + ks) * 4; f = AF + 4 * ks
        c = '0' if first else f"v[{acc}:{acc+15}]"
        if gmode:
            a(f"v_mfma_f32_32x32x16_bf16 v[{acc}:{acc+15}], v[{w}:{w+3}], v[{f}:{f+3}], {c}")
        else:
            a(f"v_mfma_f32_32x32x16_bf16 v[{acc}:{acc+15}], v[{f}:{f+3}], v[{w}:{w+3}], {c}")
    for gmode in (0, 1):
        for nt in (3, 2):
            tag = f"{gmode}{nt}"
            a.label(L('v' + tag)) if (gmode, nt) != (0, 3) else None
            if (gmode, nt) == (0, 3):
                a(f"""
                s_cmp_ge_u32 s16, 32
                s_cbranch_scc1 {L('gsel')}
                s_cmp_ge_u32 s17, 4
                s_cbranch_scc1 {L('v02')}
                """)
            a("s_mov_b32 s43, s20")
            for p in range(PD):
                a(f"s_mov_b32 s35, {p*VSLOT}")
                dma(nt)
                a("s_add_u32 s43, s43, s23")
            a("s_mov_b32 s42, 0\ns_mov_b32 s44, s21")
            lp = L('loop' + tag)
            nun = 2 if nt == 3 else 1
            first_iter_label = L('body' + tag)
            def segment(par0, pending):
                a("s_waitcnt vmcnt(0)\ns_barrier")
                a(f"s_and_b32 s35, s42, {NSLOT-1}\ns_mul_i32 s35, s35, {VSLOT}\nv_add_u32 v{V_LDSRD}, s35, v{V_L16}")
                for ks in range(12):
                    a(f"ds_read_b128 v[{AF+4*ks}:{AF+4*ks+3}], v{V_LDSRD} offset:{1024*ks}")
                sk = a.uid(pfx + '_nopf')
                a(f"s_add_u32 s35, s42, {PD}\ns_cmp_ge_u32 s35, {NSEG}\ns_cbranch_scc1 {sk}")
                a(f"s_and_b32 s35, s35, {NSLOT-1}\ns_mul_i32 s35, s35, {VSLOT}")
                dma(nt)
                a("s_add_u32 s43, s43, s23")
                a.label(sk)
                for t in range(nt):
                    acc = ACC[(par0 + t) & 1]; prev = ACC[(par0 + t + 1) & 1]
                    if t == 0:
                        ep = epi(prev, gmode, 45, nt - 1) if pending else []
                    else:
                        ep = epi(prev, gmode, 44, t - 1)
                    for ks in range(12):
                        if t == 0:
                            a(f"s_waitcnt lgkmcnt({11-ks})")
                        mfma(acc, t, ks, gmode, ks == 0)
                        if ks >= 3:
                            if t > 0 and ks == 3:
                                a("s_nop 7")
                            for _ in range(2):
                                if ep: a(ep.pop(0))
                    assert not ep
                a("s_add_u32 s42, s42, 1\ns_mov_b32 s45, s44\ns_add_u32 s44, s44, s22")
            segment(0, False)
            a.label(lp)
            if nt == 3:
                segment(1, True)
                a(f"s_cmp_ge_u32 s42, {NSEG}\ns_cbranch_scc1 {L('fin'+tag)}")
                segment(0, True)
                a(f"s_branch {lp}")
                a.label(L('fin' + tag))
                last = ACC[(1 + 2) & 1]
            else:
                segment(0, True)
                a(f"s_cmp_lt_u32 s42, {NSEG}\ns_cbranch_scc1 {lp}")
                last = ACC[1]
            a("s_nop 15")
            for op in epi(last, gmode, 45, nt - 1): a(op)
            a(f"s_branch {L('done')}")
            if (gmode, nt) == (0, 2):
                a.label(L('gsel'))
                a(f"s_cmp_ge_u32 s17, 4\ns_cbranch_scc1 {L('v12')}")
    a.label(L('done'))

def gen_small(a, name='small_kernel'):
    a.raw(kernel_header(name))
    a(f"""
    s_cmp_ge_u32 s2, 40
    s_cbranch_scc1 SM_end
    s_mov_b32 s16, s2
    v_lshrrev_b32 v1, 6, v0
    v_and_b32 v255, 63, v0
    s_nop 0
    v_readfirstlane_b32 s17, v1
    s_nop 3
    s_memtime s[50:51]
    """)
    small_body(a, 'SM')
    a(f"""
    s_memtime s[54:55]
    s_load_dwordx2 s[56:57], s[0:1], {KA['dbg']}
    s_waitcnt lgkmcnt(0)
    s_sub_u32 s54, s54, s52
    s_sub_u32 s52, s52, s50
    s_mov_b32 s58, 256
    s_mov_b32 s59, 0x00020000
    v_mov_b32 v4, s52
    v_mov_b32 v5, s54
    s_cmp_eq_u32 s16, 0
    s_cselect_b32 s60, 0, 256
    s_cmp_eq_u32 s16, 35
    s_cselect_b32 s60, 8, s60
    v_mov_b32 v3, s60
    buffer_store_dwordx2 v[4:5], v3, s[56:59], 0 offen
    """)
    a.label('SM_end')
    a("s_endpgm")
    return kernel_desc(name)
```

```python
S, DM, H, DH, M, SEG, F = 2048, 640, 32, 192, 8, 32, 1536
NSEG = 64
WS_BYTES = 268435456
KB = 1024
XN_SEG = 40 * KB
XN_OFF = 4 << 20
YN_OFF = XN_OFF + NSEG * XN_SEG
PH = 12 * KB
P_SEG = H * PH
Q_OFF = YN_OFF + NSEG * XN_SEG
K_OFF = Q_OFF + NSEG * P_SEG
V_OFF = K_OFF + NSEG * P_SEG
HID_SEG = 8 * PH
HID_OFF = V_OFF + NSEG * P_SEG
UH = 40 * KB
U_SEG = H * UH
U_OFF = HID_OFF + NSEG * HID_SEG
GH = 80 * KB
G_SEG = 8 * GH
G_OFF = U_OFF + NSEG * U_SEG
KMH = 3 * KB
KM_SEG = H * KMH
KM_OFF = G_OFF + NSEG * G_SEG + KM_SEG
YH = 10 * KB
Y_SEG = H * YH
Y_OFF = KM_OFF + NSEG * KM_SEG + Y_SEG
WS_END = Y_OFF + NSEG * Y_SEG
assert WS_END <= WS_BYTES, WS_END
KA = dict(x=0, mem0=8, wq=16, wk=24, wv=32, wo=40, seglen=48, bx=56, w1=64, b1=72, w2=80, b2=88, out=96, dbg=104, ws=112)
if __name__ == '__main__':
    print(WS_END / 2**20)

NRING = 4
C_SLOT_L = 8 * 32 * 320
C_SLOT = 2 * C_SLOT_L
C_BYTES = NRING * C_SLOT
CTL_OFF = 3 << 20
A_HEAD = 5120
A_VG = 4 * A_HEAD
A_SLOT = 8 * A_VG
A_OFF = CTL_OFF
D_X = 10240
D_SLOT = 4 * D_X
D_OFF = A_OFF + NRING * A_SLOT
TK_OFF = D_OFF + NRING * D_SLOT
PAR_OFF = TK_OFF + 1024
PROG_OFF = TK_OFF + 2048
FLAG_OFF = TK_OFF + 4096
assert FLAG_OFF + 65536 <= (4 << 20), FLAG_OFF
```

```python
import sys
sys.path.insert(0, 'gen')
from asmlib import *
from layout import *
import k_ln, k_big

HEADER = open('recurrent_scan__memory_aug_recurrent_mem_tr__mixer_channel_mlp__prompt.s.ref').read().split('; Override launch')[0]

def build(parts):
    a = Asm()
    launches = []
    descs = []
    if 'ln' in parts:
        launches.append("; @launch kernel=ln_kernel grid=(128,1,1) block=(256,1,1) lds=0")
        descs.append(k_ln.gen_ln(a))
    if 'big' in parts:
        launches.append("; @launch kernel=big_kernel grid=(78,1,1) block=(512,1,1) lds=163840")
        descs.append(k_big.gen_big(a))
    if 'small' in parts:
        import k_small
        launches.append("; @launch kernel=small_kernel grid=(40,1,1) block=(512,1,1) lds=163840")
        descs.append(k_small.gen_small(a))
    if 'rec' in parts:
        import k_rec
        launches.append("; @launch kernel=rec_kernel grid=(256,1,1) block=(512,1,1) lds=163840")
        descs.append(k_rec.gen_rec(a))
    if 'post' in parts:
        import k_post
        launches.append("; @launch kernel=post_kernel grid=(64,1,1) block=(512,1,1) lds=163840")
        descs.append(k_post.gen_post(a))
    txt = HEADER + '\n'.join(launches) + '\n.amdgcn_target "amdgcn-amd-amdhsa--gfx950"\n.text\n' + a.text()
    txt += '.section .rodata,"a"\n' + ''.join('.p2align 6\n' + d for d in descs)
    return txt

if __name__ == '__main__':
    parts = sys.argv[2].split(',')
    open(sys.argv[1], 'w').write(build(parts))
```

```python
from asmlib import *
from layout import *
import math, struct

def f32(x):
    return hex(struct.unpack('<I', struct.pack('<f', x))[0])

SLOT = 40 * KB
NSLOT = 4
WF = 0
ACC = (160, 176)
FB = 192
NFB = 6
BIAS = 216
VT = 232
V_LANE16 = 240
V_LDSRD = 241
V_ST = 242
V_TMP = 243

def big_body(a, pfx, fused=False):
    L = lambda n: f"{pfx}_{n}"
    a(f"""
    s_load_dwordx2 s[4:5], s[0:1], {KA['ws']}
    s_load_dwordx2 s[24:25], s[0:1], {KA['b1']}
    s_cmp_ge_u32 s16, 72
    s_cbranch_scc1 {L('rw1')}
    s_mul_i32 s26, s16, 2731
    s_lshr_b32 s26, s26, 16
    s_mul_i32 s27, s26, 24
    s_sub_u32 s27, s16, s27            ; role%24
    s_lshl_b32 s28, s26, 3
    s_add_u32 s28, s28, {KA['wq']}
    s_load_dwordx2 s[6:7], s[0:1], s28
    s_mov_b32 s18, 12288
    s_mov_b32 s10, {DM*H*DH*2}
    s_mov_b32 s20, {XN_OFF}
    s_mul_i32 s21, s26, {NSEG*P_SEG}
    s_add_u32 s21, s21, {Q_OFF}
    s_mov_b32 s22, {P_SEG}
    s_mul_i32 s45, s26, 192
    s_branch {L('rdone')}
    """)
    a.label(L('rw1'))
    a(f"""
    s_sub_u32 s27, s16, 72
    s_load_dwordx2 s[6:7], s[0:1], {KA['w1']}
    s_mov_b32 s18, 3072
    s_mov_b32 s10, {DM*F*2}
    s_mov_b32 s20, {YN_OFF}
    s_mov_b32 s21, {HID_OFF}
    s_mov_b32 s22, {HID_SEG}
    s_mov_b32 s45, 576
    """)
    a.label(L('rdone'))
    a(f"""
    s_lshl_b32 s19, s27, 9
    s_lshl_b32 s28, s27, 3
    s_add_u32 s28, s28, s17            ; gt
    s_lshl_b32 s29, s28, 11
    s_add_u32 s21, s21, s29
    s_add_u32 s45, s45, s28
    s_lshl_b32 s45, s45, 2
    s_add_u32 s45, s45, {PB_OFF}
    s_waitcnt lgkmcnt(0)
    s_mov_b32 s8, s6
    s_mov_b32 s9, s7
    s_mov_b32 s11, 0x00020000
    """)
    srd(a, 12, 4, WS_BYTES)
    a(f"""
    v_lshrrev_b32 v{VT}, 5, v255               ; lane>>5
    s_lshl_b32 s30, s17, 1
    v_add_u32 v{VT}, s30, v{VT}
    v_and_b32 v{VT+1}, 3, v{VT}
    v_lshlrev_b32 v{VT+1}, 2, v{VT+1}
    v_and_b32 v{VT+2}, 31, v255
    v_xor_b32 v{VT+2}, v{VT+2}, v{VT+1}
    v_lshlrev_b32 v{VT+2}, 4, v{VT+2}
    v_mul_lo_u32 v{VT}, v{VT}, s18
    v_add_u32 v{VT}, v{VT}, v{VT+2}
    v_lshrrev_b32 v{VT+1}, 5, v255             ; G>>1
    v_lshlrev_b32 v{VT+1}, 3, v{VT+1}
    v_bfe_u32 v{VT+2}, v255, 2, 2              ; r
    v_add_u32 v{VT+1}, v{VT+1}, v{VT+2}
    v_lshlrev_b32 v{VT+1}, 9, v{VT+1}
    v_xor_b32 v{VT+2}, s17, v{VT+2}
    v_lshl_add_u32 v{VT+1}, v{VT+2}, 6, v{VT+1}
    v_bfe_u32 v{VT+2}, v255, 4, 1
    v_lshl_add_u32 v{VT+1}, v{VT+2}, 5, v{VT+1}
    v_and_b32 v{VT+2}, 3, v255
    v_lshl_add_u32 v{VT+1}, v{VT+2}, 3, v{VT+1}
    s_lshl_b32 s31, s18, 4
    s_mul_i32 s32, s18, 80
    """)
    def stage_issue(q):
        a(f"s_mul_i32 s33, s32, {q}\ns_add_u32 s33, s33, s19")
        for n in range(5):
            a(f"s_lshl_b32 s34, s17, 10")
            a(f"s_add_u32 s34, s34, {(q % NSLOT) * SLOT + n * 8192}")
            a(f"s_mov_b32 m0, s34")
            a("s_nop 0")
            a(f"buffer_load_dwordx4 v{VT}, s[8:11], s33 offen lds")
            if n < 4:
                a("s_add_u32 s33, s33, s31")
    for q in range(NSLOT):
        stage_issue(q)
    for q in range(8):
        outstanding = 5 * (min(q + NSLOT, 8) - q - 1)
        a(f"s_waitcnt vmcnt({outstanding})")
        a("s_barrier")
        a(f"v_add_u32 v{VT+2}, {(q % NSLOT) * SLOT}, v{VT+1}")
        for ksl in range(5):
            ks = 5 * q + ksl
            for hr in range(2):
                a(f"ds_read_b64_tr_b16 v[{WF+4*ks+2*hr}:{WF+4*ks+2*hr+1}], v{VT+2} offset:{ksl*8192+hr*2048}")
        a("s_waitcnt lgkmcnt(0)")
        a("s_barrier")
        if q + NSLOT < 8:
            stage_issue(q + NSLOT)
    if not fused: a("s_memtime s[52:53]")
    sc = ' sc1' if fused else ''
    def publish(delta):
        if not fused: return
        a(f"s_add_u32 s33, s42, {delta}" if delta >= 0 else f"s_sub_u32 s33, s42, {-delta}")
        a(f"v_mov_b32 v247, s33\nbuffer_store_dword v247, v246, s[12:15], 0 offen sc1")
    a("v_mov_b32 v246, s45")
    a(f"""
    v_lshlrev_b32 v{V_ST}, 4, v255
    s_mul_i32 s30, s17, 5120
    v_add_u32 v{V_LANE16}, s30, v{V_ST}
    """)
    a(f"s_cmp_lt_u32 s16, 72\ns_cbranch_scc1 {L('nobias')}")
    srd(a, 36, 24, F * 2)
    a(f"""
    v_lshrrev_b32 v{VT}, 5, v255
    v_lshlrev_b32 v{VT}, 3, v{VT}
    s_lshl_b32 s30, s28, 6
    v_add_u32 v{VT}, s30, v{VT}
    """)
    for q in range(4):
        a(f"buffer_load_dwordx2 v[{FB+2*q}:{FB+1+2*q}], v{VT}, s[36:39], 0 offen offset:{16*q}")
    a("s_waitcnt vmcnt(0)")
    for q in range(4):
        for j in range(2):
            a(f"v_lshlrev_b32 v{BIAS+4*q+2*j}, 16, v{FB+2*q+j}")
            a(f"v_and_b32 v{BIAS+4*q+2*j+1}, 0xffff0000, v{FB+2*q+j}")
    c0 = -2.0 * math.sqrt(2.0 / math.pi) * math.log2(math.e)
    a(f"s_mov_b32 s40, {f32(c0)}\ns_mov_b32 s41, {f32(c0*0.044715)}")
    a.label(L('nobias'))

    def dma(segreg_off):
        a(f"s_mul_i32 s34, s17, 5120\ns_add_u32 s34, s34, s35\ns_mov_b32 m0, s34\ns_nop 0")
        for n in range(4):
            a(f"buffer_load_dwordx4 v{V_LANE16}, s[12:15], s{segreg_off} offen offset:{1024*n} lds")
        a(f"s_add_u32 s34, s34, 4096\ns_mov_b32 m0, s34\ns_add_u32 s33, s{segreg_off}, 4096")
        a(f"buffer_load_dwordx4 v{V_LANE16}, s[12:15], s33 offen lds")

    PD = 2
    a(f"s_mov_b32 s43, s20")
    for p in range(PD):
        a(f"s_mov_b32 s35, {p*SLOT}")
        dma(43)
        a(f"s_add_u32 s43, s43, {XN_SEG}")
    a(f"s_mov_b32 s42, 0\ns_sub_u32 s44, s21, s22")

    def epilogue_ops(acc, gelu):
        ops = []
        if not gelu:
            for i in range(8):
                ops.append(f"v_cvt_pk_bf16_f32 v{VT+i}, v{acc+2*i}, v{acc+2*i+1}")
        else:
            t = V_TMP
            for i in range(8):
                x0, x1 = acc + 2 * i, acc + 2 * i + 1
                ops.append(f"v_cvt_pk_bf16_f32 v{t}, v{x0}, v{x1}")
                ops.append(f"v_lshlrev_b32 v{x0}, 16, v{t}")
                ops.append(f"v_and_b32 v{x1}, 0xffff0000, v{t}")
                ops.append(f"v_add_f32 v{x0}, v{x0}, v{BIAS+2*i}")
                ops.append(f"v_add_f32 v{x1}, v{x1}, v{BIAS+2*i+1}")
                ops.append(f"v_cvt_pk_bf16_f32 v{t}, v{x0}, v{x1}")
                ops.append(f"v_lshlrev_b32 v{x0}, 16, v{t}")
                ops.append(f"v_and_b32 v{x1}, 0xffff0000, v{t}")
                for k, x in enumerate((x0, x1)):
                    u = t + 1 + k
                    ops.append(f"v_mul_f32 v{u}, v{x}, v{x}")
                    ops.append(f"v_mul_f32 v{u}, s41, v{u}")
                    ops.append(f"v_add_f32 v{u}, s40, v{u}")
                    ops.append(f"v_mul_f32 v{u}, v{u}, v{x}")
                    ops.append(f"v_exp_f32 v{u}, v{u}")
                for k, x in enumerate((x0, x1)):
                    u = t + 1 + k
                    ops.append(f"v_add_f32 v{u}, 1.0, v{u}")
                    ops.append(f"v_rcp_f32 v{u}, v{u}")
                for k, x in enumerate((x0, x1)):
                    u = t + 1 + k
                    ops.append(f"v_mul_f32 v{x}, v{x}, v{u}")
                ops.append(f"v_cvt_pk_bf16_f32 v{VT+i}, v{x0}, v{x1}")
        ops.append(f"buffer_store_dwordx4 v[{VT}:{VT+3}], v{V_ST}, s[12:15], s44 offen{sc}")
        ops.append(f"buffer_store_dwordx4 v[{VT+4}:{VT+7}], v{V_ST}, s[12:15], s44 offen offset:1024{sc}")
        return ops

    def seg_iter(par, gelu, first, second=False):
        acc = ACC[par]
        a("s_waitcnt vmcnt(1)" if (fused and not gelu and not first and not second) else "s_waitcnt vmcnt(0)")
        a("s_barrier")
        if gelu and not first: publish(-1)
        a(f"""
        s_and_b32 s35, s42, {NSLOT-1}
        s_mul_i32 s35, s35, {SLOT}
        v_add_u32 v{V_LDSRD}, s35, v{V_ST}
        """)
        for i in range(NFB - 1):
            a(f"ds_read_b128 v[{FB+4*i}:{FB+4*i+3}], v{V_LDSRD} offset:{1024*i}")
        sk = a.uid(pfx + '_nopf')
        a(f"""
        s_add_u32 s35, s42, {PD}
        s_cmp_ge_u32 s35, {NSEG}
        s_cbranch_scc1 {sk}
        s_and_b32 s35, s35, {NSLOT-1}
        s_mul_i32 s35, s35, {SLOT}
        """)
        dma(43)
        a(f"s_add_u32 s43, s43, {XN_SEG}")
        a.label(sk)
        ep = [] if first else epilogue_ops(ACC[par ^ 1], gelu)
        per = 6 if gelu else 2
        for ks in range(40):
            fb = FB + 4 * (ks % NFB)
            rem = min(NFB - 2, 39 - ks)
            a(f"s_waitcnt lgkmcnt({rem})")
            c = '0' if ks == 0 else f"v[{acc}:{acc+15}]"
            a(f"v_mfma_f32_32x32x16_bf16 v[{acc}:{acc+15}], v[{WF+4*ks}:{WF+4*ks+3}], v[{fb}:{fb+3}], {c}")
            nk = ks + NFB - 1
            if nk < 40:
                nb = FB + 4 * (nk % NFB)
                a(f"ds_read_b128 v[{nb}:{nb+3}], v{V_LDSRD} offset:{1024*nk}")
            if ks >= 1:
                for _ in range(per):
                    if ep: a(ep.pop(0))
            if fused and ks == 28 and not gelu and not first:
                a("s_waitcnt vmcnt(0)")
                publish(0)
        assert not ep
        a(f"s_add_u32 s42, s42, 1\ns_add_u32 s44, s44, s22")

    for gelu in (0, 1):
        lp = L(f'loop{gelu}')
        if gelu == 0:
            a(f"s_cmp_ge_u32 s16, 72\ns_cbranch_scc1 {L('gelu_path')}")
        else:
            a.label(L('gelu_path'))
        seg_iter(0, gelu, True)
        if fused and not gelu: a("s_waitcnt vmcnt(0)")
        a.label(lp)
        seg_iter(1, gelu, False)
        a(f"s_cmp_ge_u32 s42, {NSEG}\ns_cbranch_scc1 {L(f'fin{gelu}')}")
        seg_iter(0, gelu, False)
        a(f"s_branch {lp}")
        a.label(L(f'fin{gelu}'))
        a("s_nop 15")
        for op in epilogue_ops(ACC[1], gelu):
            a(op)
        if fused:
            a("s_waitcnt vmcnt(0)")
            publish(0)
        a(f"s_branch {L('done')}")
    a.label(L('done'))

def gen_big(a, name='big_kernel'):
    a.raw(kernel_header(name))
    a(f"""
    s_cmp_ge_u32 s2, 78
    s_cbranch_scc1 BIG_end
    s_mov_b32 s16, s2
    v_lshrrev_b32 v1, 6, v0
    v_and_b32 v255, 63, v0
    s_nop 0
    v_readfirstlane_b32 s17, v1
    s_nop 3
    """)
    a("s_memtime s[50:51]")
    big_body(a, 'BIG')
    a(f"""
    s_memtime s[54:55]
    s_load_dwordx2 s[56:57], s[0:1], {KA['dbg']}
    s_waitcnt lgkmcnt(0)
    s_sub_u32 s54, s54, s52
    s_sub_u32 s52, s52, s50
    s_mov_b32 s58, 256
    s_mov_b32 s59, 0x00020000
    v_mov_b32 v4, s52
    v_mov_b32 v5, s54
    s_cmp_eq_u32 s16, 0
    s_cselect_b32 s60, 0, 256
    s_cmp_eq_u32 s16, 75
    s_cselect_b32 s60, 8, s60
    v_mov_b32 v3, s60
    buffer_store_dwordx2 v[4:5], v3, s[56:59], 0 offen
    """)
    a.label('BIG_end')
    a("s_endpgm")
    return kernel_desc(name)
```

```python
from asmlib import *
from layout import *
import k_big, k_small, k_rec, k_post2
import os

def gen_main(a, name='main_kernel'):
    a.raw(kernel_header(name))
    a(f"""
    s_cmp_ge_u32 s2, 256
    s_cbranch_scc1 MAIN_end
    s_load_dwordx2 s[4:5], s[0:1], {KA['ws']}
    s_getreg_b32 s18, hwreg(HW_REG_XCC_ID)
    s_and_b32 s18, s18, 7
    v_lshrrev_b32 v1, 6, v0
    v_and_b32 v255, 63, v0
    s_nop 0
    v_readfirstlane_b32 s17, v1
    s_memtime s[90:91]
    s_waitcnt lgkmcnt(0)
    """)
    srd(a, 12, 4, WS_BYTES)
    def ticket(off_s, lab):
        a(f"""
        v_mov_b32 v3, 1
        v_mov_b32 v4, s{off_s}
        v_mov_b32 v5, 0
        s_cmp_lg_u32 s17, 0
        s_cbranch_scc1 {lab}
        s_mov_b64 exec, 1
        buffer_atomic_add v3, v4, s[12:15], 0 offen sc0
        s_waitcnt vmcnt(0)
        ds_write_b32 v5, v3
        s_waitcnt lgkmcnt(0)
        s_mov_b64 exec, -1
        """)
        a.label(lab)
        a(f"""
        s_barrier
        ds_read_b32 v3, v5
        s_waitcnt lgkmcnt(0)
        v_readfirstlane_b32 s16, v3
        s_barrier
        """)
    a(f"s_lshl_b32 s16, s18, 7\ns_add_u32 s16, s16, {TK_OFF}")
    ticket(16, 'MAIN_tk1')
    if k_rec.STAMP >= 0:
        for i in range(12): a(f"s_mov_b32 s{64+i}, 0")
    a(f"""
    s_mov_b32 s96, 0
    s_mov_b32 s92, s16
    s_cmp_ge_u32 s16, 32
    s_cbranch_scc1 MAIN_post
    s_cmp_ge_u32 s18, 4
    s_cbranch_scc1 MAIN_gemm
    s_cmp_lt_u32 s16, 24
    s_cbranch_scc1 MAIN_rec
    s_cmp_ge_u32 s16, 28
    s_cbranch_scc1 MAIN_end
    """)
    k_rec.helper_body(a, 'HLP', fused=True)
    a("s_branch MAIN_end")
    a.label('MAIN_rec')
    k_rec.rec_body(a, 'REC', fused=True)
    a("s_setprio 0")
    dump(a)
    a("s_branch MAIN_post")
    a.label('MAIN_gemm')
    a(f"""
    s_lshl_b32 s16, s16, 2
    s_add_u32 s16, s16, s18
    s_sub_u32 s16, s16, 4
    s_cmp_ge_u32 s16, 118
    s_cbranch_scc1 MAIN_post
    s_cmp_ge_u32 s16, 78
    s_cbranch_scc1 MAIN_small
    """)
    k_big.big_body(a, 'BIG', fused=True)
    dump(a)
    a("s_branch MAIN_post")
    a.label('MAIN_small')
    a("s_sub_u32 s16, s16, 78")
    k_small.small_body(a, 'SM', fused=True)
    dump(a)
    a.label('MAIN_post')
    a(f"""
    s_load_dwordx2 s[4:5], s[0:1], {KA['ws']}
    s_waitcnt lgkmcnt(0) vmcnt(0)
    s_barrier
    s_mov_b32 s46, 8000000
    """)
    srd(a, 12, 4, WS_BYTES)
    NI = 15
    def wait_flags(tag, loads, regs, cmp_s, sleep):
        lp = f"MAIN_w{tag}"
        a.label(lp)
        for ld in loads: a(ld)
        a(f"s_sub_u32 s46, s46, 1\ns_cbranch_scc1 {lp}_x\ns_waitcnt vmcnt(0)")
        regs = list(regs)
        a(f"v_mov_b32 v4, v{regs[0]}")
        k = 1
        while k < len(regs):
            if k + 1 < len(regs):
                a(f"v_min3_u32 v4, v4, v{regs[k]}, v{regs[k+1]}"); k += 2
            else:
                a(f"v_min_u32 v4, v4, v{regs[k]}"); k += 1
        a(f"v_cmp_ge_u32 vcc, s{cmp_s}, v4\ns_cbranch_vccz {lp}_ok\ns_sleep {sleep}\ns_branch {lp}")
        a.label(lp + '_x')
        a("s_mov_b32 s46, 0\ns_waitcnt vmcnt(0)")
        a.label(lp + '_ok')
    a.label('MAIN_ploop')
    a(f"s_mov_b32 s16, {QUE_OFF}")
    ticket(16, 'MAIN_tk2')
    a(f"""
    s_cmp_ge_u32 s16, {NSEG*NI}
    s_cbranch_scc1 MAIN_end
    s_mul_i32 s40, s16, 4370
    s_lshr_b32 s40, s40, 16              ; seg = t/15
    s_mul_i32 s41, s40, {NI}
    s_sub_u32 s19, s16, s41              ; item
    s_mov_b32 s16, s40
    v_lshlrev_b32 v1, 4, v255
    v_min_u32 v2, {31*16}, v1
    v_min_u32 v3, {15*16}, v1
    s_cmp_eq_u32 s19, 0
    s_cbranch_scc1 MAIN_gi
    s_cmp_ge_u32 s19, 5
    s_cbranch_scc1 MAIN_zi
    """)
    a("s_sub_u32 s19, s19, 1\ns_cmp_lg_u32 s17, 0\ns_cbranch_scc1 MAIN_pgo")
    a(f"v_and_b32 v5, 3, v255\nv_lshlrev_b32 v5, 7, v5\ns_mov_b32 s42, {PROG_OFF}\ns_add_u32 s43, s16, 2")
    wait_flags('c', ["buffer_load_dword v8, v5, s[12:15], s42 offen sc1"], [8], 43, int(os.environ.get('POST_SLEEP', 24)))
    a(f"s_mov_b32 s42, {PR_OFF}\ns_mov_b32 s40, {PB_OFF}")
    a("v_lshlrev_b32 v5, 6, v255\nv_lshlrev_b32 v6, 2, v2\ns_add_u32 s43, s42, 4096")
    wait_flags('p', ["buffer_load_dword v24, v5, s[12:15], s42 offen sc1",
                     "buffer_load_dword v25, v6, s[12:15], s43 offen sc1",
                     "buffer_load_dwordx4 v[8:11], v1, s[12:15], s40 offen sc1",
                     "buffer_load_dwordx4 v[12:15], v2, s[12:15], s40 offen offset:1024 sc1"],
               [24, 25] + list(range(8, 16)), 16, 6)
    a.label('MAIN_pgo')
    a("s_barrier")
    k_post2.p_item(a, 'PI')
    a("s_branch MAIN_ploop")
    a.label('MAIN_gi')
    a("s_cmp_lg_u32 s17, 0\ns_cbranch_scc1 MAIN_ggo")
    a(f"s_mov_b32 s41, {PS_OFF+1024}")
    wait_flags('g', ["buffer_load_dwordx4 v[8:11], v3, s[12:15], s41 offen sc1"], range(8, 12), 16, 32)
    a.label('MAIN_ggo')
    a("s_barrier")
    k_post2.g_item(a, 'GI')
    a("s_branch MAIN_ploop")
    a.label('MAIN_zi')
    a("s_sub_u32 s19, s19, 5\ns_cmp_lg_u32 s17, 0\ns_cbranch_scc1 MAIN_zgo")
    a(f"v_and_b32 v5, 3, v255\nv_lshlrev_b32 v5, 7, v5\ns_mov_b32 s42, {PROG_OFF}\ns_add_u32 s43, s16, 2")
    wait_flags('zc', ["buffer_load_dword v8, v5, s[12:15], s42 offen sc1"], [8], 43, int(os.environ.get('POST_SLEEP', 24)))
    a(f"v_min_u32 v5, 4, v255\nv_lshlrev_b32 v5, 2, v5\ns_lshl_b32 s42, s16, 7\ns_add_u32 s42, s42, {PF_OFF}\ns_mov_b32 s43, 0")
    wait_flags('z', ["buffer_load_dword v8, v5, s[12:15], s42 offen sc1"], [8], 43, 6)
    a.label('MAIN_zgo')
    a("s_barrier")
    k_post2.z_item(a, 'ZI')
    a("s_branch MAIN_ploop")
    a.label('MAIN_end')
    a("s_endpgm")
    return kernel_desc(name)

def dump(a):
    if not os.environ.get('MAIN_DUMP'): return
    a(f"""
    s_memtime s[94:95]
    s_getreg_b32 s93, hwreg(HW_REG_XCC_ID)
    s_and_b32 s93, s93, 7
    s_waitcnt lgkmcnt(0)
    s_sub_u32 s94, s94, s90
    s_sub_u32 s95, s96, s90
    s_lshl_b32 s93, s93, 5
    s_add_u32 s93, s93, s92
    s_lshl_b32 s93, s93, 3
    s_add_u32 s93, s93, s17
    s_lshl_b32 s93, s93, 6
    s_add_u32 s93, s93, {WS_END}
    v_mov_b32 v3, 0
    """)
    for i in range(12): a(f"v_mov_b32 v{4+i}, s{64+i}" if k_rec.STAMP >= 0 else f"v_mov_b32 v{4+i}, 0")
    a("v_mov_b32 v16, s94\nv_mov_b32 v17, s95\nv_mov_b32 v18, 0\nv_mov_b32 v19, 0")
    for i in range(4): a(f"buffer_store_dwordx4 v[{4+4*i}:{7+4*i}], v3, s[12:15], s93 offen offset:{16*i}")
```

```python
from asmlib import *
from layout import *
import math, struct

def f32(x):
    return hex(struct.unpack('<I', struct.pack('<f', x))[0])

def common(a):
    a(f"""
    v_lshlrev_b32 v254, 4, v255                 ; lane*16
    v_lshrrev_b32 v253, 5, v255                 ; h
    v_and_b32 v252, 31, v255
    v_lshlrev_b32 v250, 3, v255                 ; lane*8
    """)

def set_flag(a, idx_s):
    sk = a.uid('PFL')
    a(f"""
    s_waitcnt vmcnt(0)
    s_barrier
    s_cmp_lg_u32 s17, 0
    s_cbranch_scc1 {sk}
    s_lshl_b32 s40, s16, 7
    s_lshl_b32 s41, s{idx_s}, 2
    s_add_u32 s40, s40, s41
    s_add_u32 s40, s40, {PF_OFF}
    v_mov_b32 v1, s40
    v_mov_b32 v2, 1
    buffer_store_dword v2, v1, s[12:15], 0 offen sc1
    """)
    a.label(sk)

def p_item(a, pfx):
    QF, KF, MFR = 0, 48, 96
    SX, SM = 144, 160
    T = 176
    cs = DH ** -0.5 * math.log2(math.e)
    common(a)
    a(f"""
    v_and_b32 v251, 7, v255
    v_lshlrev_b32 v251, 4, v251
    v_lshl_add_u32 v251, v253, 7, v251
    v_lshlrev_b32 v249, 2, v253
    v_sub_u32 v249, v252, v249
    v_mov_b32 v248, 0xff800000
    s_mov_b32 s53, {f32(cs)}
    s_lshl_b32 s20, s19, 3
    s_add_u32 s20, s20, s17                     ; head
    s_mul_i32 s21, s16, {P_SEG}
    s_mul_i32 s40, s20, {PH}
    s_add_u32 s21, s21, s40
    s_add_u32 s22, s21, {K_OFF}
    s_add_u32 s21, s21, {Q_OFF}
    s_mul_i32 s23, s16, {KM_SEG}
    s_mul_i32 s40, s20, {KMH}
    s_add_u32 s23, s23, s40
    s_add_u32 s23, s23, {KM_OFF}
    s_mul_i32 s24, s16, {PP_SEG}
    s_mul_i32 s40, s20, {PPH}
    s_add_u32 s24, s24, s40
    s_add_u32 s24, s24, {PP_OFF}
    """)
    for b in range(12):
        if b % 4 == 0 and b:
            a(f"s_add_u32 s21, s21, 4096\ns_add_u32 s22, s22, 4096")
        a(f"buffer_load_dwordx4 v[{QF+4*b}:{QF+4*b+3}], v254, s[12:15], s21 offen offset:{1024*(b%4)}")
        a(f"buffer_load_dwordx4 v[{KF+4*b}:{KF+4*b+3}], v254, s[12:15], s22 offen offset:{1024*(b%4)}")
        a(f"buffer_load_dwordx4 v[{MFR+4*b}:{MFR+4*b+3}], v251, s[12:15], s23 offen offset:{256*b}")
    for b in range(12):
        a(f"s_waitcnt vmcnt({3*(11-b)})")
        c = '0' if b == 0 else f"v[{SX}:{SX+15}]"
        a(f"v_mfma_f32_32x32x16_bf16 v[{SX}:{SX+15}], v[{KF+4*b}:{KF+4*b+3}], v[{QF+4*b}:{QF+4*b+3}], {c}")
        c = '0' if b == 0 else f"v[{SM}:{SM+15}]"
        a(f"v_mfma_f32_32x32x16_bf16 v[{SM}:{SM+15}], v[{MFR+4*b}:{MFR+4*b+3}], v[{QF+4*b}:{QF+4*b+3}], {c}")
    a("s_nop 15")
    for r in range(16):
        key = 8 * (r >> 2) + (r & 3)
        a(f"v_cmp_le_i32 vcc, {key}, v249")
        a("s_nop 1")
        a(f"v_cndmask_b32 v{SX+r}, v248, v{SX+r}, vcc")
    vals = [SX + r for r in range(16)] + [SM + j for j in range(4)]
    mx, t2, sm = T, T + 1, T + 2
    a(f"v_max3_f32 v{mx}, v{vals[0]}, v{vals[1]}, v{vals[2]}")
    for i in range(3, 19, 2):
        a(f"v_max3_f32 v{mx}, v{mx}, v{vals[i]}, v{vals[i+1]}")
    a(f"""
    v_max_f32 v{mx}, v{mx}, v{vals[19]}
    v_mov_b32 v{t2}, v{mx}
    s_nop 1
    v_permlane32_swap_b32 v{mx}, v{t2}
    v_max_f32 v{mx}, v{mx}, v{t2}
    v_mul_f32 v{mx}, s53, v{mx}
    """)
    for v in vals: a(f"v_fma_f32 v{v}, v{v}, s53, -v{mx}")
    for v in vals: a(f"v_exp_f32 v{v}, v{v}")
    a(f"v_add_f32 v{sm}, v{vals[0]}, v{vals[1]}")
    for v in vals[2:]: a(f"v_add_f32 v{sm}, v{sm}, v{v}")
    a(f"""
    v_mov_b32 v{t2}, v{sm}
    s_nop 1
    v_permlane32_swap_b32 v{sm}, v{t2}
    v_add_f32 v{sm}, v{sm}, v{t2}
    v_rcp_f32 v{sm}, v{sm}
    s_nop 0
    """)
    for v in vals: a(f"v_mul_f32 v{v}, v{v}, v{sm}")
    PO = T + 4
    for i in range(10):
        a(f"v_cvt_pk_bf16_f32 v{PO+i}, v{vals[2*i]}, v{vals[2*i+1]}")
    a(f"""
    buffer_store_dwordx4 v[{PO}:{PO+3}], v254, s[12:15], s24 offen sc1
    buffer_store_dwordx4 v[{PO+4}:{PO+7}], v254, s[12:15], s24 offen offset:1024 sc1
    buffer_store_dwordx2 v[{PO+8}:{PO+9}], v250, s[12:15], s24 offen offset:2048 sc1
    """)
    set_flag(a, 19)

def g_item(a, pfx):
    L = lambda n: f"{pfx}_{n}"
    common(a)
    a(f"""
    s_load_dwordx2 s[32:33], s[0:1], {KA['b2']}
    s_mov_b32 s34, {DM*2}
    s_mov_b32 s35, 0x00020000
    v_lshlrev_b32 v242, 3, v253
    s_mov_b32 s41, {f32(-math.log2(math.e))}
    s_mov_b32 s28, s17
    s_waitcnt lgkmcnt(0)
    """)
    GB = 0; BB = 128; E = 136
    a.label(L('gl'))
    a(f"""
    s_mul_i32 s21, s16, {G_SEG}
    s_lshl_b32 s40, s28, 12
    s_add_u32 s21, s21, s40
    s_add_u32 s21, s21, {G_OFF}
    s_lshl_b32 s22, s28, 6
    s_mul_i32 s23, s16, {GT_SEG}
    s_lshl_b32 s40, s28, 11
    s_add_u32 s23, s23, s40
    s_add_u32 s23, s23, {GT_OFF}
    """)
    for sl in range(8):
        a(f"s_add_u32 s40, s21, {sl*GH}")
        for q in range(4):
            a(f"buffer_load_dwordx4 v[{GB+16*sl+4*q}:{GB+16*sl+4*q+3}], v254, s[12:15], s40 offen offset:{1024*q}")
    for q in range(4):
        a(f"buffer_load_dwordx2 v[{BB+2*q}:{BB+2*q+1}], v242, s[32:35], s22 offen offset:{16*q}")
    for sl in range(1, 8):
        a(f"s_waitcnt vmcnt({4+4*(7-sl)})")
        for r in range(0, 16, 2):
            a(f"v_pk_add_f32 v[{GB+r}:{GB+r+1}], v[{GB+r}:{GB+r+1}], v[{GB+16*sl+r}:{GB+16*sl+r+1}]")
    a("s_waitcnt vmcnt(0)")
    for i in range(8):
        g0, g1 = GB + 2 * i, GB + 2 * i + 1
        a(f"""
        v_cvt_pk_bf16_f32 v{E}, v{g0}, v{g1}
        v_lshlrev_b32 v{g0}, 16, v{E}
        v_and_b32 v{g1}, 0xffff0000, v{E}
        v_lshlrev_b32 v{E+1}, 16, v{BB+i}
        v_and_b32 v{E+2}, 0xffff0000, v{BB+i}
        v_add_f32 v{g0}, v{g0}, v{E+1}
        v_add_f32 v{g1}, v{g1}, v{E+2}
        v_cvt_pk_bf16_f32 v{E}, v{g0}, v{g1}
        v_lshlrev_b32 v{g0}, 16, v{E}
        v_and_b32 v{g1}, 0xffff0000, v{E}
        v_mul_f32 v{E+1}, s41, v{g0}
        v_mul_f32 v{E+2}, s41, v{g1}
        v_exp_f32 v{E+1}, v{E+1}
        v_exp_f32 v{E+2}, v{E+2}
        s_nop 0
        v_add_f32 v{E+1}, 1.0, v{E+1}
        v_add_f32 v{E+2}, 1.0, v{E+2}
        v_rcp_f32 v{E+1}, v{E+1}
        v_rcp_f32 v{E+2}, v{E+2}
        s_nop 0
        v_mul_f32 v{g0}, v{g0}, v{E+1}
        v_mul_f32 v{g1}, v{g1}, v{E+2}
        v_cvt_pk_bf16_f32 v{E+4+i}, v{g0}, v{g1}
        """)
    a(f"""
    buffer_store_dwordx4 v[{E+4}:{E+7}], v254, s[12:15], s23 offen sc1
    buffer_store_dwordx4 v[{E+8}:{E+11}], v254, s[12:15], s23 offen offset:1024 sc1
    s_add_u32 s28, s28, 8
    s_cmp_lt_u32 s28, 20
    s_cbranch_scc1 {L('gl')}
    s_mov_b32 s19, 4
    """)
    set_flag(a, 19)

def z_item(a, pfx):
    L = lambda n: f"{pfx}_{n}"
    common(a)
    a(f"""
    s_load_dwordx2 s[8:9], s[0:1], {KA['x']}
    s_load_dwordx2 s[36:37], s[0:1], {KA['out']}
    s_and_b32 s28, s17, 1
    s_lshl_b32 s40, s19, 1
    s_add_u32 s28, s28, s40
    s_lshr_b32 s29, s17, 1
    s_lshl_b32 s20, s29, 3
    s_mul_i32 s21, s16, {U_SEG}
    s_mul_i32 s40, s20, {UH}
    s_add_u32 s21, s21, s40
    s_lshl_b32 s40, s28, 11
    s_add_u32 s21, s21, s40
    s_add_u32 s21, s21, {U_OFF}
    s_mul_i32 s22, s16, {Y_SEG}
    s_mul_i32 s40, s20, {YH}
    s_add_u32 s22, s22, s40
    s_lshl_b32 s40, s28, 9
    s_add_u32 s22, s22, s40
    s_add_u32 s22, s22, {Y_OFF}
    s_mul_i32 s24, s16, {PP_SEG}
    s_mul_i32 s40, s20, {PPH}
    s_add_u32 s24, s24, s40
    s_add_u32 s24, s24, {PP_OFF}
    """)
    ACC = 0; ZB = 16
    for hd in range(8):
        b = ZB + 24 * hd
        a(f"v_mov_b32 v{b+10}, 0\nv_mov_b32 v{b+11}, 0\nv_mov_b32 v{b+22}, 0\nv_mov_b32 v{b+23}, 0")
        a(f"buffer_load_dwordx4 v[{b}:{b+3}], v254, s[12:15], s21 offen")
        a(f"buffer_load_dwordx4 v[{b+4}:{b+7}], v254, s[12:15], s21 offen offset:1024")
        a(f"buffer_load_dwordx2 v[{b+8}:{b+9}], v250, s[12:15], s22 offen")
        a(f"buffer_load_dwordx4 v[{b+12}:{b+15}], v254, s[12:15], s24 offen")
        a(f"buffer_load_dwordx4 v[{b+16}:{b+19}], v254, s[12:15], s24 offen offset:1024")
        a(f"buffer_load_dwordx2 v[{b+20}:{b+21}], v250, s[12:15], s24 offen offset:2048")
        a(f"s_add_u32 s21, s21, {UH}\ns_add_u32 s22, s22, {YH}\ns_add_u32 s24, s24, {PPH}")
    XB, GTB = 216, 218
    a(f"""
    s_waitcnt lgkmcnt(0)
    s_mov_b32 s10, {S*DM*2}
    s_mov_b32 s11, 0x00020000
    s_mov_b32 s38, {S*DM*2}
    s_mov_b32 s39, 0x00020000
    s_lshl_b32 s40, s16, 5
    v_add_u32 v243, s40, v252
    v_mul_u32_u24 v243, 1280, v243
    v_lshl_add_u32 v243, v253, 3, v243
    s_lshl_b32 s22, s28, 6
    s_lshl_b32 s40, s29, 4
    s_add_u32 s22, s22, s40
    s_mul_i32 s23, s16, {GT_SEG}
    s_lshl_b32 s40, s28, 11
    s_add_u32 s23, s23, s40
    s_lshr_b32 s40, s29, 1
    s_lshl_b32 s40, s40, 10
    s_add_u32 s23, s23, s40
    s_and_b32 s40, s29, 1
    s_lshl_b32 s40, s40, 3
    s_add_u32 s23, s23, s40
    s_add_u32 s23, s23, {GT_OFF}
    buffer_load_dwordx2 v[{XB}:{XB+1}], v243, s[8:11], s22 offen
    buffer_load_dwordx2 v[{GTB}:{GTB+1}], v254, s[12:15], s23 offen
    s_lshl_b32 s40, s17, 12
    v_add_u32 v245, s40, v254
    s_and_b32 s40, s17, 1
    s_lshl_b32 s40, s40, 12
    s_lshl_b32 s41, s29, 10
    s_add_u32 s40, s40, s41
    v_add_u32 v244, s40, v254
    """)
    for hd in range(8):
        b = ZB + 24 * hd
        a(f"s_waitcnt vmcnt({6*(7-hd)+2})")
        for q in range(3):
            c = '0' if (hd == 0 and q == 0) else f"v[{ACC}:{ACC+15}]"
            a(f"v_mfma_f32_32x32x16_bf16 v[{ACC}:{ACC+15}], v[{b+4*q}:{b+4*q+3}], v[{b+12+4*q}:{b+15+4*q}], {c}")
    a("s_nop 11")
    for q in range(4):
        a(f"ds_write_b128 v245, v[{ACC+4*q}:{ACC+4*q+3}] offset:{1024*q}")
    a("s_waitcnt lgkmcnt(0)\ns_barrier")
    R = 16; E = 40
    for k in range(4):
        a(f"ds_read_b128 v[{R+4*k}:{R+4*k+3}], v244 offset:{8192*k}")
    a(f"""
    s_waitcnt lgkmcnt(0) vmcnt(0)
    v_pk_add_f32 v[{R}:{R+1}], v[{R}:{R+1}], v[{R+4}:{R+5}]
    v_pk_add_f32 v[{R+2}:{R+3}], v[{R+2}:{R+3}], v[{R+6}:{R+7}]
    v_pk_add_f32 v[{R+8}:{R+9}], v[{R+8}:{R+9}], v[{R+12}:{R+13}]
    v_pk_add_f32 v[{R+10}:{R+11}], v[{R+10}:{R+11}], v[{R+14}:{R+15}]
    v_pk_add_f32 v[{R}:{R+1}], v[{R}:{R+1}], v[{R+8}:{R+9}]
    v_pk_add_f32 v[{R+2}:{R+3}], v[{R+2}:{R+3}], v[{R+10}:{R+11}]
    """)
    for i in range(2):
        s0, s1 = R + 2 * i, R + 2 * i + 1
        a(f"""
        v_cvt_pk_bf16_f32 v{E}, v{s0}, v{s1}
        v_lshlrev_b32 v{s0}, 16, v{E}
        v_and_b32 v{s1}, 0xffff0000, v{E}
        v_lshlrev_b32 v{E+1}, 16, v{GTB+i}
        v_and_b32 v{E+2}, 0xffff0000, v{GTB+i}
        v_mul_f32 v{s0}, v{s0}, v{E+1}
        v_mul_f32 v{s1}, v{s1}, v{E+2}
        v_cvt_pk_bf16_f32 v{E}, v{s0}, v{s1}
        v_lshlrev_b32 v{s0}, 16, v{E}
        v_and_b32 v{s1}, 0xffff0000, v{E}
        v_lshlrev_b32 v{E+1}, 16, v{XB+i}
        v_and_b32 v{E+2}, 0xffff0000, v{XB+i}
        v_add_f32 v{s0}, v{s0}, v{E+1}
        v_add_f32 v{s1}, v{s1}, v{E+2}
        v_cvt_pk_bf16_f32 v{E+4+i}, v{s0}, v{s1}
        """)
    a(f"buffer_store_dwordx2 v[{E+4}:{E+5}], v243, s[36:39], s22 offen")
```

```python
from asmlib import *
from layout import *
import math, struct
from k_ln import cwindow

def f32(x):
    return hex(struct.unpack('<I', struct.pack('<f', x))[0])

L_MEMX = 0
L_SX = 10240
L_R2 = 22528
RP2 = 272
L_RL = 31232
L_ZM = 31744
L_DUMMY = 35840
L_Y = 139264
L_KM = 143360
L_WO = 40960
RP = 208
OOB = 0x7f000000
import os
NST = int(os.environ.get('REC_NST', NSEG))

STAMP = int(os.environ.get('REC_STAMP', -1))
def stamp(a, i):
    if STAMP < 0: return
    sk = a.uid('STMP')
    a(f"s_cmp_lg_u32 s27, {STAMP}\ns_cbranch_scc1 {sk}\ns_memtime s[98:99]\ns_waitcnt lgkmcnt(0)\ns_mov_b32 s{64+i}, s98")
    a.label(sk)

class R:
    def __init__(self, base): self.n = base
    def __call__(self, k=1, align=1):
        self.n = (self.n + align - 1) // align * align
        r = self.n; self.n += k
        assert self.n <= 250
        return r

def lane_fields(a):
    a("""
    v_and_b32 v250, 15, v255
    v_lshrrev_b32 v251, 4, v255
    v_and_b32 v252, 7, v255
    v_bfe_u32 v253, v255, 3, 1
    """)

def cphys(a, v, t):
    a(f"""
    v_lshrrev_b32 v{t}, 13, v{v}
    v_lshlrev_b32 v{t}, 13, v{t}
    v_add_u32 v{v}, v{v}, v{t}
    """)

def check_poison(a, regs, t):
    regs = list(regs)
    if len(regs) == 2:
        a(f"v_max_u32 v{t}, v{regs[0]}, v{regs[1]}")
    else:
        a(f"v_max3_u32 v{t}, v{regs[0]}, v{regs[1]}, v{regs[2]}")
        i = 3
        while i < len(regs):
            if i + 1 < len(regs):
                a(f"v_max3_u32 v{t}, v{t}, v{regs[i]}, v{regs[i+1]}"); i += 2
            else:
                a(f"v_max_u32 v{t}, v{t}, v{regs[i]}"); i += 1
    a(f"v_cmp_eq_u32 vcc, -1, v{t}")

def poll(a, pfx, loads, regs, t):
    lp = a.uid(pfx + '_poll'); dn = a.uid(pfx + '_pdone')
    a.label(lp)
    for ld in loads: a(ld)
    a(f"s_sub_u32 s46, s46, 1\ns_cbranch_scc1 {dn}_x")
    a("s_waitcnt vmcnt(0)")
    check_poison(a, regs, t)
    a(f"s_cbranch_vccnz {lp}")
    a(f"s_branch {dn}")
    a.label(dn + '_x')
    a("s_mov_b32 s46, 0\ns_waitcnt vmcnt(0)")
    a.label(dn)

def load_tile(a, kaoff, nbytes, sbase, raw, T):
    a(f"s_load_dwordx2 s[8:9], s[0:1], {kaoff}\ns_mov_b32 s10, {nbytes}\ns_mov_b32 s11, 0x00020000")
    a(f"""
    v_lshrrev_b32 v{T}, 1, v255
    v_mul_u32_u24 v{T}, 12288, v{T}
    v_and_b32 v{T+1}, 1, v255
    v_lshl_add_u32 v{T}, v{T+1}, 4, v{T}
    s_mov_b32 s40, s{sbase}
    s_waitcnt lgkmcnt(0)
    """)
    for n in range(20):
        a(f"buffer_load_dwordx4 v[{raw+4*n}:{raw+4*n+3}], v{T}, s[8:11], s40 offen")
        a(f"s_add_u32 s40, s40, {32*12288}")

def load_slice(a, kaoff, nbytes, sbase, pitch, nrows, raw, T):
    a(f"s_load_dwordx2 s[8:9], s[0:1], {kaoff}\ns_mov_b32 s10, {nbytes}\ns_mov_b32 s11, 0x00020000\ns_mov_b32 s40, {pitch}\ns_waitcnt lgkmcnt(0)")
    for n in range(nrows * 6 // 64):
        a(f"""
        v_add_u32 v{T}, {64*n}, v255
        v_mul_u32_u24 v{T+1}, 43691, v{T}
        v_lshrrev_b32 v{T+1}, 18, v{T+1}
        v_mul_u32_u24 v{T+2}, 6, v{T+1}
        v_sub_u32 v{T+2}, v{T}, v{T+2}
        v_mul_lo_u32 v{T+1}, v{T+1}, s40
        v_lshl_add_u32 v{T+1}, v{T+2}, 4, v{T+1}
        buffer_load_dwordx4 v[{raw+4*n}:{raw+4*n+3}], v{T+1}, s[8:11], s{sbase} offen
        """)


def slot_bases(a):
    a(f"""
    s_and_b32 s40, s27, 3
    s_add_u32 s41, s27, 2
    s_and_b32 s41, s41, 3
    s_mul_i32 s28, s40, {A_SLOT}
    s_add_u32 s28, s28, s47
    s_mul_i32 s29, s41, {A_SLOT}
    s_add_u32 s29, s29, s47
    s_mul_i32 s30, s40, {C_SLOT}
    s_add_u32 s30, s30, s24
    s_mul_i32 s31, s41, {C_SLOT}
    s_add_u32 s31, s31, s24
    s_mul_i32 s32, s40, {D_SLOT}
    s_add_u32 s32, s32, s48
    s_add_u32 s41, s27, 1
    s_and_b32 s41, s41, 3
    s_mul_i32 s33, s41, {D_SLOT}
    s_add_u32 s33, s33, s48
    s_add_u32 s41, s27, 3
    s_and_b32 s41, s41, 3
    s_mul_i32 s34, s41, {D_SLOT}
    s_add_u32 s34, s34, s48
    """)

def s3_setup(a, vCld, vDst, T):
    a(f"""
    v_lshrrev_b32 v{T}, 3, v255                 ; vgl
    v_mul_u32_u24 v{vCld}, 10240, v{T}
    s_lshl_b32 s40, s55, 9
    s_lshl_b32 s41, s23, 7
    s_add_u32 s41, s41, s40
    v_add_u32 v{vCld}, s41, v{vCld}
    v_lshl_add_u32 v{vCld}, v252, 4, v{vCld}
    """)
    cphys(a, vCld, T + 1)
    a(f"""
    v_lshrrev_b32 v{T}, 2, v252
    s_lshl_b32 s41, s23, 1
    v_add_u32 v{T}, s41, v{T}                   ; cq
    v_and_b32 v{T+1}, 3, v{T}
    v_lshlrev_b32 v{vDst}, 7, v{T+1}
    v_lshrrev_b32 v{T+1}, 2, v{T}
    v_lshl_add_u32 v{vDst}, v{T+1}, 3, v{vDst}
    v_and_b32 v{T+1}, 3, v255
    v_lshl_add_u32 v{vDst}, v{T+1}, 5, v{vDst}
    v_lshrrev_b32 v{T+1}, 5, v255
    v_lshl_add_u32 v{vDst}, v{T+1}, 4, v{vDst}
    v_bfe_u32 v{T+1}, v255, 4, 1
    v_lshl_add_u32 v{vDst}, v{T+1}, 2, v{vDst}
    v_add_u32 v{vDst}, s40, v{vDst}
    v_cmp_eq_u32 vcc, 0, v253
    s_nop 1
    v_cndmask_b32 v{vDst}, v242, v{vDst}, vcc
    """)

def s3_run(a, pfx, vCld, vDst, T):
    poll(a, pfx, [f"buffer_load_dwordx4 v[{T}:{T+3}], v{vCld}, s[12:15], s30 offen sc1"], range(T, T + 4), T + 4)
    V = T + 4
    for j in (0, 2, 1, 3):
        a(f"v_lshlrev_b32 v{V+2*j}, 16, v{T+j}")
        a(f"v_and_b32 v{V+2*j+1}, 0xffff0000, v{T+j}")
    for j in range(4):
        a(f"v_permlane32_swap_b32 v{V+j}, v{V+4+j}")
    a(f"v_pk_add_f32 v[{V}:{V+1}], v[{V}:{V+1}], v[{V+4}:{V+5}]")
    a(f"v_pk_add_f32 v[{V+2}:{V+3}], v[{V+2}:{V+3}], v[{V+6}:{V+7}]")
    a(f"""
    s_nop 1
    v_permlane16_swap_b32 v{V}, v{V+2}
    v_permlane16_swap_b32 v{V+1}, v{V+3}
    v_pk_add_f32 v[{V}:{V+1}], v[{V}:{V+1}], v[{V+2}:{V+3}]
    s_nop 1
    v_add_f32_dpp v{V}, v{V}, v{V} row_ror:8 row_mask:0xf bank_mask:0xf
    v_add_f32_dpp v{V+1}, v{V+1}, v{V+1} row_ror:8 row_mask:0xf bank_mask:0xf
    v_cvt_pk_bf16_f32 v{T}, v{V}, v{V+1}
    v_min_u32 v{T}, s49, v{T}
    buffer_store_dword v{T}, v{vDst}, s[12:15], s33 offen
    """)

CSLEEP = int(os.environ.get('REC_CSLEEP', 10))
CSLEEP0 = int(os.environ.get('REC_CSLEEP0', 4))
ASLEEP = int(os.environ.get('REC_ASLEEP', 6))
SSLEEP = int(os.environ.get('REC_SSLEEP', 0))
A_X2 = 1024
A_M = 1536
A_V = 2048
DSLEEP = int(os.environ.get('REC_DSLEEP', 16))
NOU = int(os.environ.get('REC_NOU', 0))
NOST = int(os.environ.get('REC_NOST', 0))

def rec_body(a, pfx, fused=False):
    L = lambda n: f"{pfx}_{n}"
    lane_fields(a)
    cwindow(a, 24, 4)
    a(f"""
    s_mov_b32 s40, {PAR_OFF}
    s_load_dword s41, s[4:5], s40
    s_cmp_ge_u32 s16, 12
    s_cselect_b32 s19, 1, 0              ; vgl
    s_mul_i32 s40, s19, 12
    s_sub_u32 s20, s16, s40              ; m (0..11)
    s_mul_i32 s55, s19, 10
    s_add_u32 s55, s55, s20
    s_lshl_b32 s40, s18, 1
    s_add_u32 s19, s19, s40              ; vg
    s_mul_i32 s21, s20, 11
    s_lshr_b32 s21, s21, 5               ; hh = m/3
    s_mul_i32 s40, s21, 3
    s_sub_u32 s22, s20, s40              ; c = m%3
    s_and_b32 s23, s17, 3                ; kq
    s_lshl_b32 s25, s19, 2
    s_add_u32 s26, s25, s23              ; head2
    s_add_u32 s25, s25, s21              ; H1
    s_mul_i32 s47, s19, {A_VG}
    s_add_u32 s47, s47, {A_OFF}
    s_mul_i32 s48, s18, {D_X}
    s_add_u32 s48, s48, {D_OFF}
    s_mov_b32 s49, 0xfffffffe
    s_mov_b32 s46, 4000000
    s_mov_b32 s44, 0x00ff00ff
    s_mov_b32 s45, 0x00ff00ff
    s_waitcnt lgkmcnt(0)
    s_and_b32 s41, s41, 8192
    s_add_u32 s24, s24, s41
    s_lshl_b32 s56, s22, 2
    s_add_u32 s56, s56, s23
    s_mul_i32 s50, s25, 384
    s_lshl_b32 s40, s56, 5
    s_add_u32 s50, s50, s40
    s_mul_i32 s51, s17, 20480
    v_lshlrev_b32 v249, 4, v255
    v_add_u32 v248, s51, v249
    v_bfe_u32 v247, v255, 2, 2           ; r
    v_and_b32 v245, 3, v255
    v_lshl_add_u32 v246, v251, 2, v247   ; 4g + r
    v_lshlrev_b32 v246, 5, v246
    v_lshl_add_u32 v246, v245, 3, v246
    v_add_u32 v246, s51, v246
    v_lshl_add_u32 v244, v251, 3, v247   ; 8g + r
    v_lshlrev_b32 v244, 7, v244
    v_lshl_add_u32 v244, v245, 3, v244
    v_add_u32 v244, s51, v244
    v_lshlrev_b32 v243, 7, v251
    v_lshl_add_u32 v243, v252, 4, v243   ; g*128 + row*16
    v_mov_b32 v242, {OOB}
    s_mov_b32 s27, 0
    """)
    WB = DM * H * DH * 2
    T = 236
    def transpose_tile(raw):
        for n in range(20):
            a(f"ds_write_b128 v248, v[{raw+4*n}:{raw+4*n+3}] offset:{1024*n}")
        a("s_waitcnt lgkmcnt(0)")
        for ks in range(20):
            for hr in range(2):
                r = raw + ks * 4 + 2 * hr
                a(f"ds_read_b64_tr_b16 v[{r}:{r+1}], v246 offset:{ks*1024+hr*512}")
        a("s_waitcnt lgkmcnt(0)")
    NFB = 6
    def job(tiles, FB, AC, barrier_at=None, extra=(), late=()):
        late = list(late)
        for j in range(NFB - 1):
            a(f"ds_read_b128 v[{FB+4*j}:{FB+4*j+3}], v243 offset:{L_MEMX+512*j}")
        for e in extra: a(e)
        for ks in range(20):
            fb = FB + 4 * (ks % NFB)
            if barrier_at is not None and ks == barrier_at:
                a("s_barrier")
            a(f"s_waitcnt lgkmcnt({min(NFB-2, 19-ks)})")
            for ti, wb in enumerate(tiles):
                c = '0' if ks == 0 else f"v[{AC+4*ti}:{AC+4*ti+3}]"
                a(f"v_mfma_f32_16x16x32_bf16 v[{AC+4*ti}:{AC+4*ti+3}], v[{wb+4*ks}:{wb+4*ks+3}], v[{fb}:{fb+3}], {c}")
            nk = ks + NFB - 1
            if nk < 20:
                nb = FB + 4 * (nk % NFB)
                a(f"ds_read_b128 v[{nb}:{nb+3}], v243 offset:{L_MEMX+512*nk}")
            if late and ks >= 1: a(late.pop(0))

    a(f"s_cmp_ge_u32 s17, 4\ns_cbranch_scc1 {L('s2w')}")

    load_tile(a, KA['wq'], WB, 50, 0, T)
    load_tile(a, KA['wk'], WB, 50, 80, T)
    a("s_waitcnt vmcnt(20)")
    transpose_tile(0)
    a("s_waitcnt vmcnt(0)")
    transpose_tile(80)
    FB, AC = 160, 184
    MF = 160
    VF, OD = 160, 172
    ZA = 184
    WOB = 200
    ZFR = [228, 230, 232, 246]
    QF, KF = 192, 244
    SD = 160; SR = 172
    TT = 200
    KX = 234; KXN = 238
    al = R(212)
    vD, vD3, vVld, vZw, vWo, vCld, vDst, vY, vK0, vSXw, vSXr, vSst, vKM, vR2r, vRLr, vCst = [al() for _ in range(16)]
    a(f"""
    s_mul_i32 s40, s23, 2560
    v_add_u32 v{vD3}, s40, v243
    v_lshl_add_u32 v{vD}, v253, 9, v{vD3}
    s_mul_i32 s40, s23, {A_HEAD}
    s_add_u32 s40, s40, {A_V}
    v_lshl_add_u32 v{vVld}, v253, 9, v243
    v_add_u32 v{vVld}, s40, v{vVld}
    s_lshl_b32 s40, s23, 10
    s_add_u32 s40, s40, {L_ZM}
    v_lshlrev_b32 v{vZw}, 7, v251
    v_lshl_add_u32 v{vZw}, v250, 2, v{vZw}
    v_add_u32 v{vZw}, s40, v{vZw}
    v_mov_b32 v{T+1}, {L_DUMMY}
    v_cmp_gt_u32 vcc, 2, v251
    s_mul_i32 s40, s23, 24576
    s_add_u32 s40, s40, {L_WO}
    v_cndmask_b32 v{vZw}, v{T+1}, v{vZw}, vcc
    v_add_u32 v{vWo}, s40, v249
    v_lshlrev_b32 v{vY}, 8, v251
    v_lshl_add_u32 v{vY}, v250, 3, v{vY}
    s_lshl_b32 s40, s23, 10
    s_add_u32 s40, s40, {L_Y}
    v_add_u32 v{vY}, s40, v{vY}
    v_cndmask_b32 v{vY}, v{T+1}, v{vY}, vcc
    ; K_x frags
    s_lshl_b32 s41, s56, 10
    v_lshl_add_u32 v{T}, v253, 4, v252
    v_lshlrev_b32 v{vK0}, 4, v{T}
    v_and_b32 v{T+1}, 1, v251
    v_lshrrev_b32 v{T+2}, 1, v251
    v_lshl_add_u32 v{vK0}, v{T+1}, 9, v{vK0}
    v_lshl_add_u32 v{vK0}, v{T+2}, 3, v{vK0}
    v_add_u32 v{vK0}, s41, v{vK0}
    s_lshl_b32 s41, s23, 8
    s_add_u32 s41, s41, {L_KM}
    v_lshlrev_b32 v{vKM}, 7, v{T+1}
    v_lshl_add_u32 v{vKM}, v252, 4, v{vKM}
    v_lshl_add_u32 v{vKM}, v{T+2}, 3, v{vKM}
    v_add_u32 v{vKM}, s41, v{vKM}
    v_mov_b32 v{T+3}, {L_DUMMY}
    v_cmp_eq_u32 vcc, 0, v253
    s_nop 1
    v_cndmask_b32 v{vKM}, v{T+3}, v{vKM}, vcc
    s_mul_i32 s40, s17, 3072
    s_add_u32 s40, s40, {L_SX}
    v_add_u32 v{vSXw}, s40, v249
    s_lshl_b32 s40, s17, 10
    s_add_u32 s40, s40, {L_SX}
    v_add_u32 v{vSXr}, s40, v249
    s_mul_i32 s40, s21, {A_HEAD}
    s_cmp_ge_u32 s17, 2
    s_cbranch_scc1 {L('sst2')}
    v_lshl_add_u32 v{vSst}, v251, 4, v252
    s_lshl_b32 s41, s17, 3
    v_add_u32 v{vSst}, s41, v{vSst}
    s_cmp_eq_u32 s22, 2
    s_cbranch_scc1 {L('sstc2')}
    s_lshl_b32 s41, s22, 3
    s_add_u32 s40, s40, s41
    v_lshlrev_b32 v{vSst}, 4, v{vSst}
    s_branch {L('sstc')}
    """)
    a.label(L('sstc2'))
    a(f"s_add_u32 s40, s40, {A_X2}\nv_lshlrev_b32 v{vSst}, 3, v{vSst}")
    a.label(L('sstc'))
    a(f"""
    v_add_u32 v{vSst}, s40, v{vSst}
    v_cndmask_b32 v{vSst}, v242, v{vSst}, vcc
    s_branch {L('sstd')}
    """)
    a.label(L('sst2'))
    a(f"""
    s_lshl_b32 s41, s22, 2
    s_add_u32 s40, s40, s41
    s_add_u32 s40, s40, {A_M}
    v_lshlrev_b32 v{vSst}, 4, v252
    v_lshl_add_u32 v{vSst}, v251, 8, v{vSst}
    v_add_u32 v{vSst}, s40, v{vSst}
    v_cndmask_b32 v{vSst}, v242, v{vSst}, vcc
    v_cmp_gt_u32 vcc, 2, v251
    s_nop 1
    v_cndmask_b32 v{vSst}, v242, v{vSst}, vcc
    """)
    a.label(L('sstd'))
    a(f"""
    v_lshrrev_b32 v{T+4}, 3, v255
    v_mul_u32_u24 v{vR2r}, {RP2}, v252
    v_lshl_add_u32 v{vR2r}, v{T+4}, 4, v{vR2r}
    s_and_b32 s41, s17, 1
    s_lshl_b32 s40, s41, 7
    s_add_u32 s40, s40, {L_R2}
    v_add_u32 v{vR2r}, s40, v{vR2r}
    v_lshlrev_b32 v{vRLr}, 4, v252
    v_add_u32 v{vRLr}, {L_RL}, v{vRLr}
    s_mul_i32 s40, s19, 10240
    s_lshl_b32 s42, s20, 1
    s_add_u32 s42, s42, s41
    s_lshl_b32 s42, s42, 9
    s_add_u32 s40, s40, s42
    v_lshlrev_b32 v{vCst}, 3, v255
    v_add_u32 v{vCst}, s40, v{vCst}
    """)
    cphys(a, vCst, T + 4)
    a(f"""
    s_mul_i32 s35, s25, {PH}
    s_add_u32 s35, s35, {K_OFF}
    s_barrier
    s_barrier
    buffer_load_dwordx2 v[{KXN}:{KXN+1}], v{vK0}, s[12:15], s35 offen
    buffer_load_dwordx2 v[{KXN+2}:{KXN+3}], v{vK0}, s[12:15], s35 offen offset:128
    s_add_u32 s35, s35, {P_SEG}
    s_memtime s[96:97]
    s_waitcnt lgkmcnt(0)
    s_setprio 3
    """)
    a.label(L('loopA'))
    slot_bases(a)
    stamp(a, 0)
    poll(a, pfx, [f"buffer_load_dwordx4 v[{MF}:{MF+3}], v{vD}, s[12:15], s32 offen sc1",
                  f"buffer_load_dwordx4 v[{MF+4}:{MF+7}], v{vD}, s[12:15], s32 offen offset:1024 sc1",
                  f"buffer_load_dwordx4 v[{MF+8}:{MF+11}], v{vD3}, s[12:15], s32 offen offset:2048 sc1"],
         range(MF, MF + 12), TT)
    stamp(a, 1)
    a(f"""
    ds_write_b128 v{vD}, v[{MF}:{MF+3}] offset:{L_MEMX}
    ds_write_b128 v{vD}, v[{MF+4}:{MF+7}] offset:{L_MEMX+1024}
    ds_write_b128 v{vD3}, v[{MF+8}:{MF+11}] offset:{L_MEMX+2048}
    s_waitcnt lgkmcnt(0)
    s_barrier
    """)
    stamp(a, 2)
    job([0, 80], FB, AC, extra=[f"v_mov_b32 v{KX+j}, v{KXN+j}" for j in range(4)] +
                               [f"buffer_load_dwordx2 v[{KXN}:{KXN+1}], v{vK0}, s[12:15], s35 offen",
                                f"buffer_load_dwordx2 v[{KXN+2}:{KXN+3}], v{vK0}, s[12:15], s35 offen offset:128",
                                f"s_add_u32 s35, s35, {0 if NOU else P_SEG}"])
    stamp(a, 3)
    a(f"""
    s_nop 6
    v_cvt_pk_bf16_f32 v{QF}, v{AC}, v{AC+1}
    v_cvt_pk_bf16_f32 v{QF+1}, v{AC+2}, v{AC+3}
    v_cvt_pk_bf16_f32 v{KF}, v{AC+4}, v{AC+5}
    v_cvt_pk_bf16_f32 v{KF+1}, v{AC+6}, v{AC+7}
    s_nop 0
    v_mfma_f32_16x16x16_bf16 v[{SD}:{SD+3}], v[{KX}:{KX+1}], v[{QF}:{QF+1}], 0
    v_mfma_f32_16x16x16_bf16 v[{SD+4}:{SD+7}], v[{KX+2}:{KX+3}], v[{QF}:{QF+1}], 0
    v_mfma_f32_16x16x16_bf16 v[{SD+8}:{SD+11}], v[{KF}:{KF+1}], v[{QF}:{QF+1}], 0
    s_nop 5
    ds_write_b128 v{vSXw}, v[{SD}:{SD+3}]
    ds_write_b128 v{vSXw}, v[{SD+4}:{SD+7}] offset:1024
    ds_write_b128 v{vSXw}, v[{SD+8}:{SD+11}] offset:2048
    s_waitcnt lgkmcnt(0)
    s_barrier
    """)
    stamp(a, 4)
    a(f"""
    s_cmp_eq_u32 s17, 3
    s_cbranch_scc1 {L('std')}
    ds_read_b128 v[{SD}:{SD+3}], v{vSXr}
    ds_read_b128 v[{SD+4}:{SD+7}], v{vSXr} offset:3072
    ds_read_b128 v[{SR}:{SR+3}], v{vSXr} offset:6144
    ds_read_b128 v[{SR+4}:{SR+7}], v{vSXr} offset:9216
    s_waitcnt lgkmcnt(2)
    v_pk_add_f32 v[{SD}:{SD+1}], v[{SD}:{SD+1}], v[{SD+4}:{SD+5}]
    v_pk_add_f32 v[{SD+2}:{SD+3}], v[{SD+2}:{SD+3}], v[{SD+6}:{SD+7}]
    s_waitcnt lgkmcnt(0)
    v_pk_add_f32 v[{SR}:{SR+1}], v[{SR}:{SR+1}], v[{SR+4}:{SR+5}]
    v_pk_add_f32 v[{SR+2}:{SR+3}], v[{SR+2}:{SR+3}], v[{SR+6}:{SR+7}]
    v_pk_add_f32 v[{SD}:{SD+1}], v[{SD}:{SD+1}], v[{SR}:{SR+1}]
    v_pk_add_f32 v[{SD+2}:{SD+3}], v[{SD+2}:{SD+3}], v[{SR+2}:{SR+3}]
    v_cvt_pk_bf16_f32 v{SR}, v{SD}, v{SD+1}
    v_cvt_pk_bf16_f32 v{SR+1}, v{SD+2}, v{SD+3}
    v_min_u32 v{SR}, s49, v{SR}
    v_min_u32 v{SR+1}, s49, v{SR+1}
    s_cmp_eq_u32 s17, 2
    s_cbranch_scc1 {L('st2')}
    buffer_store_dwordx2 v[{SR}:{SR+1}], v{vSst}, s[12:15], s28 offen
    s_branch {L('std')}
    """)
    a.label(L('st2'))
    a(f"""
    buffer_store_dword v{SR}, v{vSst}, s[12:15], s28 offen
    buffer_store_dword v{SR+1}, v{vSst}, s[12:15], s28 offen offset:128
    """)
    a.label(L('std'))
    stamp(a, 5)
    a(f"ds_write_b64 v{vKM}, v[{KF}:{KF+1}]")
    a(f"s_cmp_ge_u32 s20, 10\ns_cbranch_scc1 {L('endA')}")
    order = [(es, t) for es in (0, 2, 4, 1, 3, 5) for t in range(4)]
    for j in range(3):
        es, t = order[j]
        a(f"ds_read_b128 v[{WOB+4*j}:{WOB+4*j+3}], v{vWo} offset:{1024*(es*4+t)}")
    a(f"s_setprio 1\ns_sleep {ASLEEP}")
    poll(a, pfx, [f"buffer_load_dwordx4 v[{VF+4*j}:{VF+4*j+3}], v{vVld}, s[12:15], s28 offen offset:{1024*j} sc1" for j in range(3)],
         range(VF, VF + 12), 248)
    stamp(a, 7)
    movs = [f"v_mov_b32_dpp v{OD+j}, v{VF+j} row_ror:8 row_mask:0xf bank_mask:0xf" for j in range(12)]
    for j, (es, t) in enumerate(order):
        f = (VF if es % 2 == 0 else OD) + 4 * (es // 2)
        wb = WOB + 4 * (j % 3)
        a(f"s_waitcnt lgkmcnt({min(2, 23-j)})")
        c = '0' if es == 0 else f"v[{ZA+4*t}:{ZA+4*t+3}]"
        a(f"v_mfma_f32_16x16x32_bf16 v[{ZA+4*t}:{ZA+4*t+3}], v[{f}:{f+3}], v[{wb}:{wb+3}], {c}")
        if j + 3 < 24:
            e2, t2 = order[j + 3]
            a(f"ds_read_b128 v[{wb}:{wb+3}], v{vWo} offset:{1024*(e2*4+t2)}")
        if movs: a(movs.pop(0))
    a("s_nop 4")
    for t in range(4):
        a(f"v_cvt_pk_bf16_f32 v{ZFR[t]}, v{ZA+4*t}, v{ZA+4*t+1}")
        a(f"v_cvt_pk_bf16_f32 v{ZFR[t]+1}, v{ZA+4*t+2}, v{ZA+4*t+3}")
        a(f"ds_write2_b32 v{vZw}, v{ZFR[t]}, v{ZFR[t]+1} offset0:{64*t} offset1:{64*t+16}")
    stamp(a, 8)
    a("s_waitcnt lgkmcnt(0)\ns_barrier\ns_setprio 3")
    stamp(a, 9)
    for t in range(4):
        a(f"ds_write_b64 v{vY}, v[{ZFR[t]}:{ZFR[t]+1}] offset:{(t>>1)*512+(t&1)*128}")
    a("s_barrier")
    stamp(a, 10)
    a(f"s_cmp_ge_u32 s17, 2\ns_cbranch_scc1 {L('w2c')}")
    XR = 168; RL = 184
    a(f"ds_read_b128 v[{RL}:{RL+3}], v{vRLr}")
    for hd in range(4):
        a(f"ds_read_b128 v[{XR+4*hd}:{XR+4*hd+3}], v{vR2r} offset:{hd*8*RP2}")
    a(f"""
    s_waitcnt lgkmcnt(3)
    v_pk_mul_f32 v[{XR}:{XR+1}], v[{XR}:{XR+1}], v[{RL}:{RL+1}] op_sel_hi:[1,0]
    v_pk_mul_f32 v[{XR+2}:{XR+3}], v[{XR+2}:{XR+3}], v[{RL}:{RL+1}] op_sel_hi:[1,0]
    s_waitcnt lgkmcnt(2)
    v_pk_fma_f32 v[{XR}:{XR+1}], v[{XR+4}:{XR+5}], v[{RL}:{RL+1}], v[{XR}:{XR+1}] op_sel:[0,1,0] op_sel_hi:[1,1,1]
    v_pk_fma_f32 v[{XR+2}:{XR+3}], v[{XR+6}:{XR+7}], v[{RL}:{RL+1}], v[{XR+2}:{XR+3}] op_sel:[0,1,0] op_sel_hi:[1,1,1]
    s_waitcnt lgkmcnt(1)
    v_pk_fma_f32 v[{XR}:{XR+1}], v[{XR+8}:{XR+9}], v[{RL+2}:{RL+3}], v[{XR}:{XR+1}] op_sel_hi:[1,0,1]
    v_pk_fma_f32 v[{XR+2}:{XR+3}], v[{XR+10}:{XR+11}], v[{RL+2}:{RL+3}], v[{XR+2}:{XR+3}] op_sel_hi:[1,0,1]
    s_waitcnt lgkmcnt(0)
    v_pk_fma_f32 v[{XR}:{XR+1}], v[{XR+12}:{XR+13}], v[{RL+2}:{RL+3}], v[{XR}:{XR+1}] op_sel:[0,1,0] op_sel_hi:[1,1,1]
    v_pk_fma_f32 v[{XR+2}:{XR+3}], v[{XR+14}:{XR+15}], v[{RL+2}:{RL+3}], v[{XR+2}:{XR+3}] op_sel:[0,1,0] op_sel_hi:[1,1,1]
    v_cvt_pk_bf16_f32 v{TT+8}, v{XR}, v{XR+1}
    v_cvt_pk_bf16_f32 v{TT+9}, v{XR+2}, v{XR+3}
    v_min_u32 v{TT+8}, s49, v{TT+8}
    v_min_u32 v{TT+9}, s49, v{TT+9}
    buffer_store_dwordx2 v[{TT+8}:{TT+9}], v{vCst}, s[12:15], s30 offen sc1
    """)
    a.label(L('w2c'))
    a(f"s_sleep {DSLEEP}")
    a.label(L('endA'))
    stamp(a, 11)
    a(f"""
    s_add_u32 s27, s27, 1
    s_cmp_lt_u32 s27, {NST}
    s_cbranch_scc1 {L('loopA')}
    """)
    a(f"s_waitcnt lgkmcnt(0)\ns_barrier")
    if fused: a("s_barrier")
    a(f"s_branch {L('done')}")

    a.label(L('s2w'))
    load_tile(a, KA['wv'], WB, 50, 0, T)
    a(f"""
    s_load_dwordx2 s[8:9], s[0:1], {KA['wo']}
    s_mul_i32 s54, s26, {DH*DM*2}
    s_min_u32 s40, s20, 9
    s_lshl_b32 s40, s40, 7
    s_add_u32 s54, s54, s40
    v_lshrrev_b32 v{T}, 3, v255
    v_mul_u32_u24 v{T}, 1280, v{T}
    v_lshl_add_u32 v{T}, v252, 4, v{T}
    s_waitcnt lgkmcnt(0)
    """)
    for n in range(24):
        a(f"buffer_load_dwordx4 v[{80+4*n}:{80+4*n+3}], v{T}, s[8:11], s54 offen")
        a(f"s_add_u32 s54, s54, {8*1280}")
    a("s_waitcnt vmcnt(24)")
    transpose_tile(0)
    a("s_waitcnt vmcnt(0)")
    for half in range(2):
        for n in range(12):
            k = 12 * half + n
            a(f"ds_write_b128 v248, v[{80+4*k}:{80+4*k+3}] offset:{1024*n}")
        a("s_waitcnt lgkmcnt(0)")
        for e3 in range(3):
            for t in range(4):
                for hr in range(2):
                    rr = 80 + ((3 * half + e3) * 4 + t) * 4 + 2 * hr
                    a(f"ds_read_b64_tr_b16 v[{rr}:{rr+1}], v244 offset:{e3*4096+hr*512+t*32}")
        a("s_waitcnt lgkmcnt(0)")
    a(f"""
    s_barrier
    s_mul_i32 s40, s23, 24576
    s_add_u32 s40, s40, {L_WO}
    v_add_u32 v{T}, s40, v249
    """)
    for n in range(24):
        a(f"ds_write_b128 v{T}, v[{80+4*n}:{80+4*n+3}] offset:{1024*n}")
    a("s_waitcnt lgkmcnt(0)")
    al = R(200)
    vV, vAx, vAm, vR2w, vRLw, vZr, vCld, vDst, vU, vPr, vA2, vRd, vPR, vYr = [al() for _ in range(14)]
    vP = al(5); vPo = al(4, 4)
    TT = 224
    a(f"""
    s_lshl_b32 s40, s56, 8
    s_mul_i32 s41, s21, {A_HEAD}
    s_add_u32 s40, s40, s41
    s_add_u32 s40, s40, {A_V}
    v_lshrrev_b32 v{T}, 1, v251
    v_lshlrev_b32 v{vV}, 7, v{T}
    v_and_b32 v{T}, 1, v251
    v_lshl_add_u32 v{vV}, v{T}, 3, v{vV}
    v_lshl_add_u32 v{vV}, v252, 4, v{vV}
    v_add_u32 v{vV}, s40, v{vV}
    v_cmp_eq_u32 vcc, 0, v253
    s_nop 1
    v_cndmask_b32 v{vV}, v242, v{vV}, vcc
    s_mul_i32 s40, s23, {A_HEAD}
    v_add_u32 v{vAx}, s40, v249
    v_lshlrev_b32 v{vA2}, 3, v255
    v_add_u32 v{vA2}, s40, v{vA2}
    v_add_u32 v{vAm}, s40, v243
    s_mul_i32 s40, s23, {8*RP2}
    s_add_u32 s40, s40, {L_R2}
    v_mul_u32_u24 v{vR2w}, {RP2}, v252
    v_lshl_add_u32 v{vR2w}, v251, 4, v{vR2w}
    v_add_u32 v{vR2w}, s40, v{vR2w}
    s_lshl_b32 s40, s23, 2
    s_add_u32 s40, s40, {L_RL}
    v_lshlrev_b32 v{vRLw}, 4, v252
    v_add_u32 v{vRLw}, s40, v{vRLw}
    s_lshl_b32 s40, s23, 10
    s_add_u32 s40, s40, {L_ZM}
    v_lshlrev_b32 v{vZr}, 2, v255
    v_add_u32 v{vZr}, s40, v{vZr}
    v_lshlrev_b32 v{vU}, 9, v251
    v_lshl_add_u32 v{vU}, v250, 4, v{vU}
    s_mul_i32 s36, s26, {UH}
    s_add_u32 s36, s36, {U_OFF}
    s_lshl_b32 s40, s20, 12
    s_add_u32 s36, s36, s40
    s_mul_i32 s40, s21, {A_HEAD}
    s_lshl_b32 s42, s22, 3
    s_cmp_eq_u32 s22, 2
    s_cselect_b32 s42, {A_X2}, s42
    s_cselect_b32 s43, 3, 4
    s_add_u32 s42, s42, s40
    v_lshlrev_b32 v{vP}, s43, v255
    v_add_u32 v{vP}, s42, v{vP}
    s_lshl_b32 s42, s22, 2
    s_add_u32 s42, s42, s40
    s_add_u32 s42, s42, {A_M}
    v_add_u32 v{vP+1}, s42, v249
    v_cmp_gt_u32 vcc, 32, v255
    s_lshl_b32 s42, s22, 10
    s_add_u32 s42, s42, s40
    s_add_u32 s42, s42, {A_V}
    v_cndmask_b32 v{vP+1}, v242, v{vP+1}, vcc
    v_add_u32 v{vP+4}, s42, v249
    s_lshl_b32 s42, s55, 9
    v_add_u32 v{vP+3}, s42, v249
    v_cndmask_b32 v{vP+3}, v242, v{vP+3}, vcc
    s_mul_i32 s40, s19, 10240
    s_lshl_b32 s42, s20, 10
    s_add_u32 s40, s40, s42
    v_add_u32 v{vP+2}, s40, v249
    """)
    cphys(a, vP + 2, T)
    a(f"""
    v_mov_b32 v{vPo}, -1
    v_mov_b32 v{vPo+1}, -1
    v_mov_b32 v{vPo+2}, -1
    v_mov_b32 v{vPo+3}, -1
    s_lshl_b32 s40, s18, 7
    s_add_u32 s40, s40, {PROG_OFF}
    v_mov_b32 v{vPr}, s40
    v_and_b32 v{vRd}, 31, v255
    v_lshlrev_b32 v{vRd}, 2, v{vRd}
    s_lshl_b32 s40, s18, 7
    s_add_u32 s40, s40, {RDY_OFF}
    v_add_u32 v{vRd}, s40, v{vRd}
    s_mul_i32 s40, s18, 24
    s_add_u32 s40, s40, s16
    s_lshl_b32 s40, s40, 6
    s_add_u32 s40, s40, {PR_OFF}
    v_mov_b32 v{vPR}, s40
    s_lshl_b32 s40, s23, 10
    s_add_u32 s40, s40, {L_Y}
    v_add_u32 v{vYr}, s40, v249
    s_mul_i32 s38, s26, {YH}
    s_add_u32 s38, s38, {Y_OFF - Y_SEG}
    s_lshl_b32 s40, s20, 10
    s_add_u32 s38, s38, s40
    s_mul_i32 s37, s25, {KMH}
    s_add_u32 s37, s37, {KM_OFF - KM_SEG}
    s_lshl_b32 s40, s22, 10
    s_add_u32 s37, s37, s40
    """)
    def ready(need_expr):
        if not fused: return
        lp = a.uid(pfx + '_rlp'); ok = a.uid(pfx + '_rok')
        a(need_expr)
        a.label(lp)
        a(f"""
        buffer_load_dword v{TT}, v{vRd}, s[12:15], 0 offen sc1
        s_sub_u32 s46, s46, 1
        s_cbranch_scc1 {ok}_x
        s_waitcnt vmcnt(0)
        v_cmp_gt_u32 vcc, s57, v{TT}
        s_cbranch_vccz {ok}
        s_sleep 2
        s_branch {lp}
        """)
        a.label(ok + '_x')
        a("s_mov_b32 s46, 0")
        a.label(ok)
    def flush(FT):
        sk = a.uid(pfx + '_fl')
        a(f"ds_read_b128 v[{FT}:{FT+3}], v{vYr}")
        a(f"ds_read_b128 v[{FT+4}:{FT+7}], v249 offset:{L_KM - 131072}" if False else f"v_add_u32 v{FT+8}, {L_KM}, v249\nds_read_b128 v[{FT+4}:{FT+7}], v{FT+8}")
        a(f"s_waitcnt lgkmcnt(0)\ns_cmp_ge_u32 s20, 10\ns_cbranch_scc1 {sk}_a")
        a(f"buffer_store_dwordx4 v[{FT}:{FT+3}], v249, s[12:15], s38 offen sc1")
        a.label(sk + '_a')
        a(f"s_cmp_lg_u32 s17, 4\ns_cbranch_scc1 {sk}_b")
        a(f"buffer_store_dwordx4 v[{FT+4}:{FT+7}], v249, s[12:15], s37 offen sc1")
        a.label(sk + '_b')
        a(f"s_add_u32 s38, s38, {Y_SEG}\ns_add_u32 s37, s37, {KM_SEG}")
    s3_setup(a, vCld, vDst, T)
    UF = 80
    FB7, AC7 = 96, 120
    SC = 124
    SL = 136
    PF = 156
    ZR = 164
    OA = 180
    TT = 224
    cs = DH ** -0.5 * math.log2(math.e)
    a(f"s_mov_b32 s53, {f32(cs)}")
    for j in list(range(PF + 5, PF + 8)) + [ZR + 4 * t + k for t in range(4) for k in (1, 2, 3)]:
        a(f"v_mov_b32 v{j}, 0")
    ready("s_mov_b32 s57, 2")
    a("s_barrier\ns_memtime s[96:97]\ns_waitcnt lgkmcnt(0)\ns_setprio 1")
    a.label(L('loopS'))
    slot_bases(a)
    stamp(a, 0)
    a("s_barrier")
    stamp(a, 2)
    a(f"s_cmp_ge_u32 s20, 10\ns_cbranch_scc1 {L('nou')}")
    for t in range(4):
        a(f"buffer_load_dwordx4 v[{UF+4*t}:{UF+4*t+3}], v{vU}, s[12:15], s36 offen offset:{(t>>1)*2048+(t&1)*256}")
    if not NOU: a(f"s_add_u32 s36, s36, {U_SEG}")
    a.label(L('nou'))
    flush(SL)
    if fused:
        a(f"""
        s_cmp_lg_u32 s17, 7
        s_cbranch_scc1 {L('nopr')}
        s_cmp_lt_u32 s27, 2
        s_cbranch_scc1 {L('nopr')}
        s_sub_u32 s40, s27, 1
        v_mov_b32 v{TT}, s40
        buffer_store_dword v{TT}, v{vPR}, s[12:15], 0 offen sc1
        """)
        a.label(L('nopr'))
    a(f"s_cmp_lg_u32 s17, 6\ns_cbranch_scc1 {L('nopois')}")
    a(f"""
    buffer_store_dwordx2 v[{vPo}:{vPo+1}], v{vP}, s[12:15], s29 offen
    buffer_store_dword v{vPo}, v{vP+1}, s[12:15], s29 offen
    buffer_store_dwordx4 v[{vPo}:{vPo+3}], v{vP+4}, s[12:15], s29 offen
    s_cmp_ge_u32 s20, 10
    s_cbranch_scc1 {L('nopois')}
    buffer_store_dwordx4 v[{vPo}:{vPo+3}], v{vP+2}, s[12:15], s31 offen sc1
    buffer_store_dwordx4 v[{vPo}:{vPo+3}], v{vP+3}, s[12:15], s34 offen
    """)
    a.label(L('nopois'))
    a(f"""
    s_cmp_lg_u32 s17, 5
    s_cbranch_scc1 {L('noprog')}
    s_cmp_lg_u32 s16, 11
    s_cbranch_scc1 {L('noprog')}
    s_add_u32 s40, s27, 1
    v_mov_b32 v{TT}, s40
    buffer_store_dword v{TT}, v{vPr}, s[12:15], 0 offen sc1
    """)
    a.label(L('noprog'))
    job([0], FB7, AC7, barrier_at=int(os.environ.get('REC_B1S', 0)))
    a(f"""
    s_nop 7
    v_cvt_pk_bf16_f32 v{SC}, v{AC7}, v{AC7+1}
    v_cvt_pk_bf16_f32 v{SC+1}, v{AC7+2}, v{AC7+3}
    v_min_u32 v{SC}, s49, v{SC}
    v_min_u32 v{SC+1}, s49, v{SC+1}
    buffer_store_dwordx2 v[{SC}:{SC+1}], v{vV}, s[12:15], s28 offen
    """)
    stamp(a, 5)
    a(f"s_cmp_ge_u32 s20, 10\ns_cbranch_scc1 {L('endS')}")
    a("s_setprio 3")
    if SSLEEP: a(f"s_sleep {SSLEEP}")
    poll(a, pfx, [f"buffer_load_dwordx4 v[{SC}:{SC+3}], v{vAx}, s[12:15], s28 offen sc1",
                  f"buffer_load_dwordx2 v[{SC+4}:{SC+5}], v{vA2}, s[12:15], s28 offen offset:{A_X2} sc1",
                  f"buffer_load_dwordx3 v[{SC+8}:{SC+10}], v{vAm}, s[12:15], s28 offen offset:{A_M} sc1"],
         list(range(SC, SC + 6)) + list(range(SC + 8, SC + 11)), TT)
    stamp(a, 7)
    src = list(range(SC, SC + 6)) + list(range(SC + 8, SC + 11))
    for j, sreg in enumerate(src):
        a(f"v_lshlrev_b32 v{SL+2*j}, 16, v{sreg}")
        a(f"v_and_b32 v{SL+2*j+1}, 0xffff0000, v{sreg}")
    pk = lambda d, x, y: a(f"v_pk_add_f32 v[{d}:{d+1}], v[{x}:{x+1}], v[{y}:{y+1}]")
    pk(SL, SL, SL + 4); pk(SL + 2, SL + 2, SL + 6); pk(SL + 4, SL + 12, SL + 14)
    pk(SL, SL, SL + 8); pk(SL + 2, SL + 2, SL + 10); pk(SL + 4, SL + 4, SL + 16)
    mx, t2 = TT, TT + 1
    a(f"""
    v_max3_f32 v{mx}, v{SL}, v{SL+1}, v{SL+2}
    v_max3_f32 v{t2}, v{SL+3}, v{SL+4}, v{SL+5}
    v_max_f32 v{mx}, v{mx}, v{t2}
    s_nop 1
    v_max_f32_dpp v{mx}, v{mx}, v{mx} row_ror:8 row_mask:0xf bank_mask:0xf
    v_mov_b32 v{t2}, v{mx}
    s_nop 1
    v_permlane32_swap_b32 v{mx}, v{t2}
    v_max_f32 v{mx}, v{mx}, v{t2}
    v_mov_b32 v{t2}, v{mx}
    s_nop 1
    v_permlane16_swap_b32 v{mx}, v{t2}
    v_max_f32 v{mx}, v{mx}, v{t2}
    v_mul_f32 v{mx}, s53, v{mx}
    """)
    for j in range(6):
        a(f"v_fma_f32 v{SL+j}, v{SL+j}, s53, -v{mx}")
    for j in range(6):
        a(f"v_exp_f32 v{SL+j}, v{SL+j}")
    a(f"""
    v_cvt_pk_bf16_f32 v{PF}, v{SL}, v{SL+1}
    v_cvt_pk_bf16_f32 v{PF+1}, v{SL+2}, v{SL+3}
    v_cvt_pk_bf16_f32 v{PF+4}, v{SL+4}, v{SL+5}
    v_mov_b32_dpp v{PF+2}, v{PF} row_ror:8 row_mask:0xf bank_mask:0xf
    v_mov_b32_dpp v{PF+3}, v{PF+1} row_ror:8 row_mask:0xf bank_mask:0xf
    v_lshlrev_b32 v{SL}, 16, v{PF}
    v_and_b32 v{SL+1}, 0xffff0000, v{PF}
    """)
    sm = SL
    rest_sum = f"""v_lshlrev_b32 v{SL+2}, 16, v{PF+1}
    v_and_b32 v{SL+3}, 0xffff0000, v{PF+1}
    v_lshlrev_b32 v{SL+4}, 16, v{PF+4}
    v_and_b32 v{SL+5}, 0xffff0000, v{PF+4}
    v_pk_add_f32 v[{SL}:{SL+1}], v[{SL}:{SL+1}], v[{SL+2}:{SL+3}]
    v_add_f32 v{SL+4}, v{SL+4}, v{SL+5}
    v_add_f32 v{sm}, v{SL}, v{SL+1}
    v_fmac_f32 v{sm}, 0.5, v{SL+4}""".split('\n')
    for t in range(4):
        a(f"v_mfma_f32_16x16x32_bf16 v[{OA+4*t}:{OA+4*t+3}], v[{UF+4*t}:{UF+4*t+3}], v[{PF}:{PF+3}], 0")
        a(rest_sum[2 * t]); a(rest_sum[2 * t + 1])
    a(f"""
    s_nop 1
    v_add_f32_dpp v{sm}, v{sm}, v{sm} row_ror:8 row_mask:0xf bank_mask:0xf
    v_mov_b32 v{t2}, v{sm}
    s_nop 1
    v_permlane32_swap_b32 v{sm}, v{t2}
    v_add_f32 v{sm}, v{sm}, v{t2}
    v_mov_b32 v{t2}, v{sm}
    s_nop 1
    v_permlane16_swap_b32 v{sm}, v{t2}
    v_add_f32 v{sm}, v{sm}, v{t2}
    v_rcp_f32 v{sm}, v{sm}
    s_nop 0
    ds_write_b32 v{vRLw}, v{sm}
    """)
    stamp(a, 8)
    a("s_barrier")
    stamp(a, 9)
    for t in range(4):
        a(f"ds_read_b32 v{ZR+4*t}, v{vZr} offset:{256*t}")
    for t in range(4):
        a(f"s_waitcnt lgkmcnt({3-t})")
        a(f"v_mfma_f32_16x16x32_bf16 v[{OA+4*t}:{OA+4*t+3}], v[{ZR+4*t}:{ZR+4*t+3}], v[{PF+4}:{PF+7}], v[{OA+4*t}:{OA+4*t+3}]")
    a("s_mov_b64 exec, s[44:45]\ns_nop 0")
    for t in range(4):
        if t: a("s_nop 1")
        a(f"ds_write_b128 v{vR2w}, v[{OA+4*t}:{OA+4*t+3}] offset:{64*t}")
    a("s_mov_b64 exec, -1\ns_waitcnt lgkmcnt(0)\ns_barrier\ns_setprio 1")
    stamp(a, 10)
    a(f"s_cmp_eq_u32 s27, {NST-1}\ns_cbranch_scc1 {L('endS')}\ns_sleep {CSLEEP}")
    s3_run(a, pfx, vCld, vDst, TT)
    a.label(L('endS'))
    stamp(a, 11)
    ready(f"s_add_u32 s57, s27, 3\ns_min_u32 s57, s57, {NSEG}")
    a(f"s_add_u32 s27, s27, 1\ns_cmp_lt_u32 s27, {NST}\ns_cbranch_scc1 {L('loopS')}")
    a("s_barrier")
    flush(SL)
    if fused:
        a(f"v_mov_b32 v{TT+1}, {NSEG+2}\ns_cmp_lg_u32 s17, 5\ns_cbranch_scc1 {L('nofp')}\ns_cmp_lg_u32 s16, 11\ns_cbranch_scc1 {L('nofp')}")
        a(f"buffer_store_dword v{TT+1}, v{vPr}, s[12:15], 0 offen sc1")
        a.label(L('nofp'))
        a(f"s_waitcnt vmcnt(0)\ns_barrier\ns_cmp_lg_u32 s17, 7\ns_cbranch_scc1 {L('done')}")
        a(f"v_mov_b32 v{TT}, s27\nbuffer_store_dword v{TT}, v{vPR}, s[12:15], 0 offen sc1")
    a.label(L('done'))

def helper_body(a, pfx, fused=False):
    L = lambda n: f"{pfx}_{n}"
    PFD = int(os.environ.get('REC_PFD', 5))
    a(f"""
    s_sub_u32 s19, s16, 24
    s_lshl_b32 s19, s19, 3
    s_add_u32 s19, s19, s17              ; gw 0..31
    s_lshl_b32 s20, s18, 3
    s_mul_i32 s21, s20, {UH}
    s_mul_i32 s40, s19, 10240
    s_add_u32 s21, s21, s40
    s_add_u32 s21, s21, {U_OFF}
    s_mul_i32 s22, s20, {PH}
    s_mul_i32 s40, s19, 3072
    s_add_u32 s22, s22, s40
    s_add_u32 s22, s22, {K_OFF}
    v_lshlrev_b32 v1, 4, v255
    v_add_u32 v2, 4096, v1
    v_add_u32 v3, 8192, v1
    s_lshl_b32 s40, s18, 7
    s_add_u32 s40, s40, {PROG_OFF}
    v_mov_b32 v4, s40
    s_mov_b32 s27, 0
    s_mov_b32 s46, 4000000
    s_lshr_b32 s23, s19, 2
    s_add_u32 s23, s23, s20              ; head
    s_lshl_b32 s40, s23, 5
    s_add_u32 s40, s40, {PS_OFF}
    v_and_b32 v6, 7, v255
    v_lshlrev_b32 v6, 2, v6
    v_add_u32 v6, s40, v6
    s_mul_i32 s40, s23, 24
    s_add_u32 s40, s40, {PB_OFF + 192*4 - 32}
    v_lshlrev_b32 v7, 2, v255
    v_add_u32 v7, s40, v7
    v_cmp_gt_u32 vcc, 8, v255
    v_cmp_lt_u32 s[42:43], 13, v255
    s_or_b64 vcc, vcc, s[42:43]
    s_nop 1
    v_cndmask_b32 v6, v7, v6, vcc
    s_lshl_b32 s40, s18, 7
    s_lshl_b32 s41, s19, 2
    s_add_u32 s40, s40, s41
    s_add_u32 s40, s40, {RDY_OFF}
    v_mov_b32 v7, s40
    """)
    a.label(L('hloop'))
    a(f"s_cmp_lt_u32 s27, {PFD}\ns_cbranch_scc1 {L('hgo')}")
    a.label(L('hwait'))
    a(f"""
    buffer_load_dword v5, v4, s[12:15], 0 offen sc1
    s_sub_u32 s46, s46, 1
    s_cbranch_scc1 {L('hdone')}
    s_waitcnt vmcnt(0)
    v_readfirstlane_b32 s40, v5
    s_add_u32 s40, s40, {PFD}
    s_cmp_gt_u32 s40, s27
    s_cbranch_scc1 {L('hgo')}
    s_sleep 8
    s_branch {L('hwait')}
    """)
    a.label(L('hgo'))
    if fused:
        a(f"""
        buffer_load_dword v5, v6, s[12:15], 0 offen sc1
        s_sub_u32 s46, s46, 1
        s_cbranch_scc1 {L('hdone')}
        s_waitcnt vmcnt(0)
        v_cmp_ge_u32 vcc, s27, v5
        s_cbranch_vccz {L('hgo2')}
        s_sleep 16
        s_branch {L('hgo')}
        """)
        a.label(L('hgo2'))
    k = 0
    for j in range(3):
        a(f"buffer_load_dwordx4 v[{8+4*k}:{11+4*k}], v1, s[12:15], s22 offen offset:{1024*j}"); k += 1
    for j in range(10):
        a(f"buffer_load_dwordx4 v[{8+4*k}:{11+4*k}], v{1+j//4}, s[12:15], s21 offen offset:{1024*(j%4)}"); k += 1
    a(f"""
    s_add_u32 s21, s21, {U_SEG}
    s_add_u32 s22, s22, {P_SEG}
    s_add_u32 s27, s27, 1
    v_mov_b32 v5, s27
    s_waitcnt vmcnt(0)
    buffer_store_dword v5, v7, s[12:15], 0 offen
    s_cmp_lt_u32 s27, {NST}
    s_cbranch_scc1 {L('hloop')}
    """)
    a.label(L('hdone'))

def gen_rec(a, name='rec_kernel'):
    a.raw(kernel_header(name))
    a(f"""
    s_cmp_ge_u32 s2, 256
    s_cbranch_scc1 REC_end
    s_load_dwordx2 s[4:5], s[0:1], {KA['ws']}
    s_getreg_b32 s18, hwreg(HW_REG_XCC_ID)
    s_and_b32 s18, s18, 7
    v_lshrrev_b32 v1, 6, v0
    v_and_b32 v255, 63, v0
    s_nop 0
    v_readfirstlane_b32 s17, v1
    s_memtime s[60:61]
    s_waitcnt lgkmcnt(0)
    """)
    srd(a, 12, 4, WS_BYTES)
    a(f"""
    v_mov_b32 v3, 1
    s_lshl_b32 s16, s18, 7
    s_add_u32 s16, s16, {TK_OFF}
    v_mov_b32 v4, s16
    v_mov_b32 v5, 0
    v_cmp_eq_u32 vcc, 0, v0
    s_and_saveexec_b64 s[26:27], vcc
    s_cbranch_execz REC_notk
    buffer_atomic_add v3, v4, s[12:15], 0 offen sc0
    s_waitcnt vmcnt(0)
    ds_write_b32 v5, v3
    s_waitcnt lgkmcnt(0)
    """)
    a.label('REC_notk')
    a(f"""
    s_mov_b64 exec, s[26:27]
    s_barrier
    ds_read_b32 v3, v5
    s_waitcnt lgkmcnt(0)
    v_readfirstlane_b32 s16, v3
    s_barrier
    s_cmp_ge_u32 s18, 4
    s_cbranch_scc1 REC_end
    s_cmp_ge_u32 s16, 28
    s_cbranch_scc1 REC_end
    s_cmp_lt_u32 s16, 24
    s_cbranch_scc1 REC_main
    """)
    if not NOU: helper_body(a, 'HLP')
    a("s_branch REC_end")
    a.label('REC_main')
    if STAMP >= 0:
        for i in range(12): a(f"s_mov_b32 s{64+i}, 0")
    rec_body(a, 'REC')
    if STAMP >= 0:
        a(f"""
        s_lshl_b32 s61, s18, 5
        s_add_u32 s61, s61, s16
        s_lshl_b32 s61, s61, 3
        s_add_u32 s61, s61, s17
        s_lshl_b32 s61, s61, 6
        s_add_u32 s61, s61, {WS_END}
        v_mov_b32 v3, 0
        """)
        for i in range(12): a(f"v_mov_b32 v{4+i}, s{64+i}")
        for i in range(3): a(f"buffer_store_dwordx4 v[{4+4*i}:{7+4*i}], v3, s[12:15], s61 offen offset:{16*i}")
    a(f"""
    s_memtime s[62:63]
    s_load_dwordx2 s[56:57], s[0:1], {KA['dbg']}
    s_waitcnt lgkmcnt(0)
    s_sub_u32 s62, s62, s60
    s_mov_b32 s58, 256
    s_mov_b32 s59, 0x00020000
    v_mov_b32 v4, s62
    s_sub_u32 s96, s96, s60
    v_mov_b32 v5, s96
    s_lshl_b32 s60, s17, 3
    s_lshl_b32 s61, s18, 5
    s_add_u32 s61, s61, s16
    s_cmp_eq_u32 s61, 0
    s_cselect_b32 s60, s60, 256
    v_mov_b32 v3, s60
    buffer_store_dwordx2 v[4:5], v3, s[56:59], 0 offen
    """)
    a.label('REC_end')
    a("s_endpgm")
    return kernel_desc(name)
```

```python
from asmlib import *
from layout import *

SSLOT = 40 * KB
NSLOT = 4
VSLOT = 12 * KB
WF = 0
AF = 144
ACC = (192, 208)
VT = 224
V_L16 = 240
V_LDSRD = 241
V_DMA = 242

def small_body(a, pfx, fused=False):
    L = lambda n: f"{pfx}_{n}"
    a(f"""
    s_load_dwordx2 s[4:5], s[0:1], {KA['ws']}
    s_cmp_ge_u32 s16, 32
    s_cbranch_scc1 {L('rg')}
    s_load_dwordx2 s[6:7], s[0:1], {KA['wo']}
    s_mov_b32 s10, {H*DH*DM*2}
    s_mov_b32 s27, s16
    s_mul_i32 s20, s16, {PH}
    s_add_u32 s20, s20, {V_OFF}
    s_mov_b32 s23, {P_SEG}
    s_mul_i32 s21, s16, {UH}
    s_add_u32 s21, s21, {U_OFF}
    s_mov_b32 s22, {U_SEG}
    s_mov_b32 s26, 2048
    s_mul_i32 s46, s16, 6
    s_add_u32 s46, s46, 384
    s_branch {L('rdone')}
    """)
    a.label(L('rg'))
    a(f"""
    s_load_dwordx2 s[6:7], s[0:1], {KA['w2']}
    s_mov_b32 s10, {F*DM*2}
    s_sub_u32 s27, s16, 32
    s_mul_i32 s20, s27, {PH}
    s_add_u32 s20, s20, {HID_OFF}
    s_mov_b32 s23, {HID_SEG}
    s_mul_i32 s21, s27, {GH}
    s_add_u32 s21, s21, {G_OFF}
    s_mov_b32 s22, {G_SEG}
    s_mov_b32 s26, 4096
    s_mul_i32 s46, s27, 6
    s_add_u32 s46, s46, 576
    """)
    a.label(L('rdone'))
    a(f"""
    s_mul_i32 s19, s27, {DH*DM*2}
    s_mul_i32 s28, s17, 3
    s_lshl_b32 s29, s17, 1
    s_add_u32 s29, s29, 4
    s_cmp_lt_u32 s17, 4
    s_cselect_b32 s28, s28, s29
    s_mul_i32 s29, s28, s26
    s_add_u32 s21, s21, s29
    s_waitcnt lgkmcnt(0)
    s_mov_b32 s8, s6
    s_mov_b32 s9, s7
    s_mov_b32 s11, 0x00020000
    """)
    srd(a, 12, 4, WS_BYTES)
    SV = AF
    for n in range(5):
        a(f"""
        s_lshl_b32 s30, s17, 6
        s_add_u32 s30, s30, {512*n}
        v_add_u32 v{VT}, s30, v255
        v_mul_u32_u24 v{VT+1}, 52429, v{VT}
        v_lshrrev_b32 v{VT+1}, 22, v{VT+1}
        v_mul_u32_u24 v{VT+2}, 80, v{VT+1}
        v_sub_u32 v{VT+2}, v{VT}, v{VT+2}
        v_and_b32 v{VT+3}, 3, v{VT+1}
        v_lshlrev_b32 v{VT+3}, 2, v{VT+3}
        v_xor_b32 v{VT+2}, v{VT+2}, v{VT+3}
        v_mul_u32_u24 v{VT+1}, 1280, v{VT+1}
        v_lshl_add_u32 v{SV+n}, v{VT+2}, 4, v{VT+1}
        """)
    TB = AF + 8
    a(f"""
    v_lshrrev_b32 v{VT}, 5, v255
    v_lshlrev_b32 v{VT}, 2, v{VT}
    v_bfe_u32 v{VT+1}, v255, 2, 2
    v_add_u32 v{VT}, v{VT}, v{VT+1}
    v_mul_u32_u24 v{VT}, 1280, v{VT}
    v_bfe_u32 v{VT+2}, v255, 4, 1
    v_lshl_add_u32 v{VT}, v{VT+2}, 5, v{VT}
    v_and_b32 v{VT+2}, 3, v255
    v_lshl_add_u32 v{VT}, v{VT+2}, 3, v{VT}
    """)
    for t in range(3):
        a(f"""
        s_add_u32 s30, s28, {t}
        s_min_u32 s30, s30, 19
        v_xor_b32 v{VT+2}, s30, v{VT+1}
        v_lshl_add_u32 v{TB+t}, v{VT+2}, 6, v{VT}
        """)
    def stage_issue(q):
        a(f"s_add_u32 s33, s19, {q*SSLOT}")
        for n in range(5):
            a(f"s_lshl_b32 s34, s17, 10\ns_add_u32 s34, s34, {(q % NSLOT)*SSLOT + n*8192}\ns_mov_b32 m0, s34\ns_nop 0")
            a(f"buffer_load_dwordx4 v{SV+n}, s[8:11], s33 offen lds")
    for q in range(NSLOT):
        stage_issue(q)
    for q in range(6):
        outstanding = 5 * (min(q + NSLOT, 6) - q - 1)
        a(f"s_waitcnt vmcnt({outstanding})\ns_barrier")
        for t in range(3):
            a(f"v_add_u32 v{VT+4}, {(q % NSLOT)*SSLOT}, v{TB+t}")
            for p in range(2):
                for hr in range(2):
                    r = WF + (t * 12 + 2 * q + p) * 4 + 2 * hr
                    a(f"ds_read_b64_tr_b16 v[{r}:{r+1}], v{VT+4} offset:{p*20480+hr*10240}")
        a("s_waitcnt lgkmcnt(0)\ns_barrier")
        if q + NSLOT < 6:
            stage_issue(q + NSLOT)
    if not fused: a("s_memtime s[52:53]")
    sc = ' sc1' if fused else ''
    V_FA, V_FL, V_PA, V_PV = 243, 244, 245, 246
    a(f"""
    v_min_u32 v{V_FA}, 5, v255
    v_add_u32 v{V_FA}, s46, v{V_FA}
    v_lshlrev_b32 v{V_FA}, 2, v{V_FA}
    v_add_u32 v{V_FA}, {PB_OFF}, v{V_FA}
    v_mov_b32 v{V_FL}, 0
    s_lshl_b32 s47, s16, 3
    s_add_u32 s47, s47, s17
    s_lshl_b32 s47, s47, 2
    s_add_u32 s47, s47, {PS_OFF}
    v_mov_b32 v{V_PA}, s47
    s_mov_b32 s48, 8000000
    """)
    def need_flags(need_s):
        if not fused: return
        ok = a.uid(pfx + '_fok'); lp = a.uid(pfx + '_flp')
        a(f"v_cmp_gt_u32 vcc, s{need_s}, v{V_FL}\ns_cbranch_vccz {ok}")
        a.label(lp)
        a(f"""
        buffer_load_dword v{V_FL}, v{V_FA}, s[12:15], 0 offen sc1
        s_sub_u32 s48, s48, 1
        s_cbranch_scc1 {ok}_x
        s_waitcnt vmcnt(0)
        v_cmp_gt_u32 vcc, s{need_s}, v{V_FL}
        s_cbranch_vccz {ok}
        s_sleep 12
        s_branch {lp}
        """)
        a.label(ok + '_x')
        a("s_mov_b32 s48, 0")
        a.label(ok)
    def publish():
        if not fused: return
        a(f"v_mov_b32 v{V_PV}, s42\nbuffer_store_dword v{V_PV}, v{V_PA}, s[12:15], 0 offen sc1")
    a(f"""
    v_lshlrev_b32 v{V_L16}, 4, v255
    s_lshl_b32 s30, s17, 10
    v_add_u32 v{V_DMA}, s30, v{V_L16}
    """)
    def dma(nt):
        a(f"s_lshl_b32 s34, s17, 10\ns_add_u32 s34, s34, s35\ns_mov_b32 m0, s34\ns_nop 0")
        a(f"buffer_load_dwordx4 v{V_DMA}, s[12:15], s43 offen{sc} lds")
        if nt == 3:
            a(f"s_add_u32 s34, s34, 8192\ns_mov_b32 m0, s34\ns_add_u32 s33, s43, 8192")
            a(f"buffer_load_dwordx4 v{V_DMA}, s[12:15], s33 offen{sc} lds")
    PD = 2
    def epi(acc, gmode, soff, toff):
        ops = []
        if not gmode:
            for i in range(8):
                ops.append(f"v_cvt_pk_bf16_f32 v{VT+i}, v{acc+2*i}, v{acc+2*i+1}")
            ops.append(f"s_add_u32 s33, s{soff}, {toff*2048}")
            ops.append(f"buffer_store_dwordx4 v[{VT}:{VT+3}], v{V_L16}, s[12:15], s33 offen{sc}")
            ops.append(f"buffer_store_dwordx4 v[{VT+4}:{VT+7}], v{V_L16}, s[12:15], s33 offen offset:1024{sc}")
        else:
            ops.append(f"s_add_u32 s33, s{soff}, {toff*4096}")
            for q in range(4):
                ops.append(f"buffer_store_dwordx4 v[{acc+4*q}:{acc+4*q+3}], v{V_L16}, s[12:15], s33 offen offset:{1024*q}{sc}")
        return ops
    def mfma(acc, t, ks, gmode, first):
        w = WF + (t * 12 + ks) * 4; f = AF + 4 * ks
        c = '0' if first else f"v[{acc}:{acc+15}]"
        if gmode:
            a(f"v_mfma_f32_32x32x16_bf16 v[{acc}:{acc+15}], v[{w}:{w+3}], v[{f}:{f+3}], {c}")
        else:
            a(f"v_mfma_f32_32x32x16_bf16 v[{acc}:{acc+15}], v[{f}:{f+3}], v[{w}:{w+3}], {c}")
    for gmode in (0, 1):
        for nt in (3, 2):
            tag = f"{gmode}{nt}"
            a.label(L('v' + tag)) if (gmode, nt) != (0, 3) else None
            if (gmode, nt) == (0, 3):
                a(f"""
                s_cmp_ge_u32 s16, 32
                s_cbranch_scc1 {L('gsel')}
                s_cmp_ge_u32 s17, 4
                s_cbranch_scc1 {L('v02')}
                """)
            a("s_mov_b32 s43, s20")
            for p in range(PD):
                a(f"s_mov_b32 s35, {p*VSLOT}\ns_mov_b32 s49, {p+1}")
                need_flags(49)
                dma(nt)
                a("s_add_u32 s43, s43, s23")
            a("s_mov_b32 s42, 0\ns_mov_b32 s44, s21")
            lp = L('loop' + tag)
            nun = 2 if nt == 3 else 1
            first_iter_label = L('body' + tag)
            def segment(par0, pending):
                a("s_waitcnt vmcnt(0)\ns_barrier")
                a(f"s_and_b32 s35, s42, {NSLOT-1}\ns_mul_i32 s35, s35, {VSLOT}\nv_add_u32 v{V_LDSRD}, s35, v{V_L16}")
                for ks in range(12):
                    a(f"ds_read_b128 v[{AF+4*ks}:{AF+4*ks+3}], v{V_LDSRD} offset:{1024*ks}")
                sk = a.uid(pfx + '_nopf')
                a(f"s_add_u32 s35, s42, {PD}\ns_cmp_ge_u32 s35, {NSEG}\ns_cbranch_scc1 {sk}")
                a(f"s_add_u32 s49, s35, 1")
                need_flags(49)
                a(f"s_and_b32 s35, s35, {NSLOT-1}\ns_mul_i32 s35, s35, {VSLOT}")
                dma(nt)
                a("s_add_u32 s43, s43, s23")
                if fused: a(f"buffer_load_dword v{V_FL}, v{V_FA}, s[12:15], 0 offen sc1")
                a.label(sk)
                for t in range(nt):
                    acc = ACC[(par0 + t) & 1]; prev = ACC[(par0 + t + 1) & 1]
                    if t == 0:
                        ep = epi(prev, gmode, 45, nt - 1) if pending else []
                    else:
                        ep = epi(prev, gmode, 44, t - 1)
                    for ks in range(12):
                        if t == 0:
                            a(f"s_waitcnt lgkmcnt({11-ks})")
                        mfma(acc, t, ks, gmode, ks == 0)
                        if ks >= 3:
                            if t > 0 and ks == 3:
                                a("s_nop 7")
                            for _ in range(2):
                                if ep: a(ep.pop(0))
                    assert not ep
                    if fused and t == 1 and pending:
                        a(f"s_waitcnt vmcnt({4 if gmode else 2})")
                        publish()
                a("s_add_u32 s42, s42, 1\ns_mov_b32 s45, s44\ns_add_u32 s44, s44, s22")
            segment(0, False)
            a.label(lp)
            if nt == 3:
                segment(1, True)
                a(f"s_cmp_ge_u32 s42, {NSEG}\ns_cbranch_scc1 {L('fin'+tag)}")
                segment(0, True)
                a(f"s_branch {lp}")
                a.label(L('fin' + tag))
                last = ACC[(1 + 2) & 1]
            else:
                segment(0, True)
                a(f"s_cmp_lt_u32 s42, {NSEG}\ns_cbranch_scc1 {lp}")
                last = ACC[1]
            a("s_nop 15")
            for op in epi(last, gmode, 45, nt - 1): a(op)
            if fused:
                a("s_waitcnt vmcnt(0)")
                publish()
            a(f"s_branch {L('done')}")
            if (gmode, nt) == (0, 2):
                a.label(L('gsel'))
                a(f"s_cmp_ge_u32 s17, 4\ns_cbranch_scc1 {L('v12')}")
    a.label(L('done'))

def gen_small(a, name='small_kernel'):
    a.raw(kernel_header(name))
    a(f"""
    s_cmp_ge_u32 s2, 40
    s_cbranch_scc1 SM_end
    s_mov_b32 s16, s2
    v_lshrrev_b32 v1, 6, v0
    v_and_b32 v255, 63, v0
    s_nop 0
    v_readfirstlane_b32 s17, v1
    s_nop 3
    s_memtime s[50:51]
    """)
    small_body(a, 'SM')
    a(f"""
    s_memtime s[54:55]
    s_load_dwordx2 s[56:57], s[0:1], {KA['dbg']}
    s_waitcnt lgkmcnt(0)
    s_sub_u32 s54, s54, s52
    s_sub_u32 s52, s52, s50
    s_mov_b32 s58, 256
    s_mov_b32 s59, 0x00020000
    v_mov_b32 v4, s52
    v_mov_b32 v5, s54
    s_cmp_eq_u32 s16, 0
    s_cselect_b32 s60, 0, 256
    s_cmp_eq_u32 s16, 35
    s_cselect_b32 s60, 8, s60
    v_mov_b32 v3, s60
    buffer_store_dwordx2 v[4:5], v3, s[56:59], 0 offen
    """)
    a.label('SM_end')
    a("s_endpgm")
    return kernel_desc(name)
```

```python
S, DM, H, DH, M, SEG, F = 2048, 640, 32, 192, 8, 32, 1536
NSEG = 64
WS_BYTES = 268435456
KB = 1024
XN_SEG = 40 * KB
XN_OFF = 4 << 20
YN_OFF = XN_OFF + NSEG * XN_SEG
PH = 12 * KB
P_SEG = H * PH
Q_OFF = YN_OFF + NSEG * XN_SEG
K_OFF = Q_OFF + NSEG * P_SEG
V_OFF = K_OFF + NSEG * P_SEG
HID_SEG = 8 * PH
HID_OFF = V_OFF + NSEG * P_SEG
UH = 40 * KB
U_SEG = H * UH
U_OFF = HID_OFF + NSEG * HID_SEG
GH = 40 * KB
G_SEG = 8 * GH
G_OFF = U_OFF + NSEG * U_SEG
KMH = 3 * KB
KM_SEG = H * KMH
KM_OFF = G_OFF + NSEG * G_SEG + KM_SEG
YH = 10 * KB
Y_SEG = H * YH
Y_OFF = KM_OFF + NSEG * KM_SEG + Y_SEG
PPH = 2560
PP_SEG = H * PPH
PP_OFF = Y_OFF + NSEG * Y_SEG
GT_SEG = 40 * KB
GT_OFF = PP_OFF + NSEG * PP_SEG
WS_END = GT_OFF + NSEG * GT_SEG
assert WS_END <= WS_BYTES, WS_END
KA = dict(x=0, mem0=8, wq=16, wk=24, wv=32, wo=40, seglen=48, bx=56, w1=64, b1=72, w2=80, b2=88, out=96, dbg=104, ws=112)
if __name__ == '__main__':
    print(WS_END / 2**20)

NRING = 4
C_SLOT_L = 8 * 32 * 320
C_SLOT = 2 * C_SLOT_L
C_BYTES = NRING * C_SLOT
CTL_OFF = 3 << 20
A_HEAD = 2048
A_VG = 4 * A_HEAD
A_SLOT = 8 * A_VG
A_OFF = CTL_OFF
D_X = 10240
D_SLOT = 4 * D_X
D_OFF = A_OFF + NRING * A_SLOT
TK_OFF = D_OFF + NRING * D_SLOT
PAR_OFF = TK_OFF + 1024
PROG_OFF = TK_OFF + 2048
FLAG_OFF = TK_OFF + 4096
assert FLAG_OFF + 65536 <= (4 << 20), FLAG_OFF

PB_OFF = FLAG_OFF
PS_OFF = FLAG_OFF + 4096
PR_OFF = FLAG_OFF + 40960
RDY_OFF = FLAG_OFF + 12288
QUE_OFF = FLAG_OFF + 16384
STAMP_OFF = FLAG_OFF + 32768
PF_OFF = FLAG_OFF + 20480
assert WS_END + (256 << 10) <= WS_BYTES
```

```python
import sys
sys.path.insert(0, 'gen')
from asmlib import *
from layout import *
import k_ln, k_big

HEADER = open('recurrent_scan__memory_aug_recurrent_mem_tr__mixer_channel_mlp__prompt.s.ref').read().split('; Override launch')[0]

def build(parts):
    a = Asm()
    launches = []
    descs = []
    if 'ln' in parts:
        launches.append("; @launch kernel=ln_kernel grid=(129,1,1) block=(256,1,1) lds=0")
        descs.append(k_ln.gen_ln(a))
    if 'big' in parts:
        launches.append("; @launch kernel=big_kernel grid=(84,1,1) block=(512,1,1) lds=163840")
        descs.append(k_big.gen_big(a))
    if 'small' in parts:
        import k_small
        launches.append("; @launch kernel=small_kernel grid=(40,1,1) block=(512,1,1) lds=163840")
        descs.append(k_small.gen_small(a))
    if 'rec' in parts:
        import k_rec
        launches.append("; @launch kernel=rec_kernel grid=(256,1,1) block=(512,1,1) lds=163840")
        descs.append(k_rec.gen_rec(a))
    if 'post' in parts:
        import k_post
        launches.append("; @launch kernel=post_kernel grid=(64,1,1) block=(512,1,1) lds=163840")
        descs.append(k_post.gen_post(a))
    if 'main' in parts:
        import k_main
        launches.append("; @launch kernel=main_kernel grid=(256,1,1) block=(512,1,1) lds=163840")
        descs.append(k_main.gen_main(a))
    txt = HEADER + '\n'.join(launches) + '\n.amdgcn_target "amdgcn-amd-amdhsa--gfx950"\n.text\n' + a.text()
    txt += '.section .rodata,"a"\n' + ''.join('.p2align 6\n' + d for d in descs)
    return txt

if __name__ == '__main__':
    parts = sys.argv[2].split(',')
    open(sys.argv[1], 'w').write(build(parts))
```

```python
from asmlib import *
from layout import *
import math, struct, os

def f32(x):
    return hex(struct.unpack('<I', struct.pack('<f', x))[0])

SLOT = 40 * KB
NSLOT = 4
WF = 0
ACC = (160, 176)
FB = 192
NFB = 6
BIAS = 216
VT = 232
V_LANE16 = 240
V_LDSRD = 241
V_ST = 242
V_TMP = 243

def big_body(a, pfx, fused=False):
    L = lambda n: f"{pfx}_{n}"
    a(f"""
    s_load_dwordx2 s[4:5], s[0:1], {KA['ws']}
    s_load_dwordx2 s[24:25], s[0:1], {KA['b1']}
    s_cmp_ge_u32 s16, 72
    s_cbranch_scc1 {L('rw1')}
    s_mul_i32 s26, s16, 2731
    s_lshr_b32 s26, s26, 16
    s_mul_i32 s27, s26, 24
    s_sub_u32 s27, s16, s27            ; role%24
    s_lshl_b32 s28, s26, 3
    s_add_u32 s28, s28, {KA['wq']}
    s_load_dwordx2 s[6:7], s[0:1], s28
    s_mov_b32 s18, 12288
    s_mov_b32 s10, {DM*H*DH*2}
    s_mov_b32 s20, {XN_OFF}
    s_mul_i32 s21, s26, {NSEG*P_SEG}
    s_add_u32 s21, s21, {Q_OFF}
    s_mov_b32 s22, {P_SEG}
    s_mul_i32 s45, s26, 192
    s_branch {L('rdone')}
    """)
    a.label(L('rw1'))
    a(f"""
    s_sub_u32 s27, s16, 72
    s_load_dwordx2 s[6:7], s[0:1], {KA['w1']}
    s_mov_b32 s18, 3072
    s_mov_b32 s10, {DM*F*2}
    s_mov_b32 s20, {YN_OFF}
    s_mov_b32 s21, {HID_OFF}
    s_mov_b32 s22, {HID_SEG}
    s_mov_b32 s45, 576
    """)
    a.label(L('rdone'))
    a(f"""
    s_cmp_ge_u32 s16, 72
    s_cselect_b32 s30, 8, 9
    s_cselect_b32 s29, 2, 3
    s_lshl_b32 s19, s27, s30
    s_lshl_b32 s28, s27, s29
    s_add_u32 s28, s28, s17            ; gt
    s_lshl_b32 s29, s28, 11
    s_add_u32 s21, s21, s29
    s_add_u32 s45, s45, s28
    s_lshl_b32 s45, s45, 2
    s_add_u32 s45, s45, {PB_OFF}
    s_waitcnt lgkmcnt(0)
    s_mov_b32 s8, s6
    s_mov_b32 s9, s7
    s_mov_b32 s11, 0x00020000
    """)
    srd(a, 12, 4, WS_BYTES)
    a(f"""
    v_lshrrev_b32 v{VT}, 5, v255               ; lane>>5
    s_lshl_b32 s30, s17, 1
    v_add_u32 v{VT}, s30, v{VT}
    v_and_b32 v{VT+1}, 3, v{VT}
    v_lshlrev_b32 v{VT+1}, 2, v{VT+1}
    v_and_b32 v{VT+2}, 31, v255
    v_xor_b32 v{VT+2}, v{VT+2}, v{VT+1}
    v_lshlrev_b32 v{VT+2}, 4, v{VT+2}
    v_mul_lo_u32 v{VT}, v{VT}, s18
    v_add_u32 v{VT}, v{VT}, v{VT+2}
    v_lshrrev_b32 v{VT+1}, 5, v255             ; G>>1
    v_lshlrev_b32 v{VT+1}, 3, v{VT+1}
    v_bfe_u32 v{VT+2}, v255, 2, 2              ; r
    v_add_u32 v{VT+1}, v{VT+1}, v{VT+2}
    v_lshlrev_b32 v{VT+1}, 9, v{VT+1}
    v_xor_b32 v{VT+2}, s17, v{VT+2}
    v_lshl_add_u32 v{VT+1}, v{VT+2}, 6, v{VT+1}
    v_bfe_u32 v{VT+2}, v255, 4, 1
    v_lshl_add_u32 v{VT+1}, v{VT+2}, 5, v{VT+1}
    v_and_b32 v{VT+2}, 3, v255
    v_lshl_add_u32 v{VT+1}, v{VT+2}, 3, v{VT+1}
    s_lshl_b32 s31, s18, 4
    s_mul_i32 s32, s18, 80
    """)
    def stage_issue(q):
        a(f"s_mul_i32 s33, s32, {q}\ns_add_u32 s33, s33, s19")
        for n in range(5):
            a(f"s_lshl_b32 s34, s17, 10")
            a(f"s_add_u32 s34, s34, {(q % NSLOT) * SLOT + n * 8192}")
            a(f"s_mov_b32 m0, s34")
            a("s_nop 0")
            a(f"buffer_load_dwordx4 v{VT}, s[8:11], s33 offen lds")
            if n < 4:
                a("s_add_u32 s33, s33, s31")
    for q in range(NSLOT):
        stage_issue(q)
    for q in range(8):
        outstanding = 5 * (min(q + NSLOT, 8) - q - 1)
        a(f"s_waitcnt vmcnt({outstanding})")
        a("s_barrier")
        a(f"v_add_u32 v{VT+2}, {(q % NSLOT) * SLOT}, v{VT+1}")
        for ksl in range(5):
            ks = 5 * q + ksl
            for hr in range(2):
                a(f"ds_read_b64_tr_b16 v[{WF+4*ks+2*hr}:{WF+4*ks+2*hr+1}], v{VT+2} offset:{ksl*8192+hr*2048}")
        a("s_waitcnt lgkmcnt(0)")
        a("s_barrier")
        if q + NSLOT < 8:
            stage_issue(q + NSLOT)
    if not fused: a("s_memtime s[52:53]")
    elif os.environ.get('MAIN_DUMP'): a("s_memtime s[96:97]\ns_waitcnt lgkmcnt(0)")
    sc = ' sc1' if fused else ''
    def publish(delta):
        if not fused: return
        a(f"s_add_u32 s33, s42, {delta}" if delta >= 0 else f"s_sub_u32 s33, s42, {-delta}")
        a(f"v_mov_b32 v247, s33\nbuffer_store_dword v247, v246, s[12:15], 0 offen sc1")
    a("v_mov_b32 v246, s45")
    a(f"""
    v_lshlrev_b32 v{V_ST}, 4, v255
    s_mul_i32 s30, s17, 5120
    v_add_u32 v{V_LANE16}, s30, v{V_ST}
    """)
    a(f"s_cmp_lt_u32 s16, 72\ns_cbranch_scc1 {L('nobias')}")
    srd(a, 36, 24, F * 2)
    a(f"""
    v_lshrrev_b32 v{VT}, 5, v255
    v_lshlrev_b32 v{VT}, 3, v{VT}
    s_lshl_b32 s30, s28, 6
    v_add_u32 v{VT}, s30, v{VT}
    """)
    for q in range(4):
        a(f"buffer_load_dwordx2 v[{FB+2*q}:{FB+1+2*q}], v{VT}, s[36:39], 0 offen offset:{16*q}")
    a("s_waitcnt vmcnt(0)")
    for q in range(4):
        for j in range(2):
            a(f"v_lshlrev_b32 v{BIAS+4*q+2*j}, 16, v{FB+2*q+j}")
            a(f"v_and_b32 v{BIAS+4*q+2*j+1}, 0xffff0000, v{FB+2*q+j}")
    c0 = -2.0 * math.sqrt(2.0 / math.pi) * math.log2(math.e)
    a(f"s_mov_b32 s40, {f32(c0)}\ns_mov_b32 s41, {f32(c0*0.044715)}")
    a.label(L('nobias'))

    def dma(segreg_off):
        a(f"s_mul_i32 s34, s17, 5120\ns_add_u32 s34, s34, s35\ns_mov_b32 m0, s34\ns_nop 0")
        for n in range(4):
            a(f"buffer_load_dwordx4 v{V_LANE16}, s[12:15], s{segreg_off} offen offset:{1024*n} lds")
        a(f"s_add_u32 s34, s34, 4096\ns_mov_b32 m0, s34\ns_add_u32 s33, s{segreg_off}, 4096")
        a(f"buffer_load_dwordx4 v{V_LANE16}, s[12:15], s33 offen lds")

    PD = 2
    a(f"s_mov_b32 s43, s20")
    for p in range(PD):
        a(f"s_mov_b32 s35, {p*SLOT}")
        dma(43)
        a(f"s_add_u32 s43, s43, {XN_SEG}")
    a(f"s_mov_b32 s42, 0\ns_sub_u32 s44, s21, s22")

    def epilogue_ops(acc, gelu):
        ops = []
        if not gelu:
            for i in range(8):
                ops.append(f"v_cvt_pk_bf16_f32 v{VT+i}, v{acc+2*i}, v{acc+2*i+1}")
        else:
            t = V_TMP
            for i in range(8):
                x0, x1 = acc + 2 * i, acc + 2 * i + 1
                ops.append(f"v_cvt_pk_bf16_f32 v{t}, v{x0}, v{x1}")
                ops.append(f"v_lshlrev_b32 v{x0}, 16, v{t}")
                ops.append(f"v_and_b32 v{x1}, 0xffff0000, v{t}")
                ops.append(f"v_add_f32 v{x0}, v{x0}, v{BIAS+2*i}")
                ops.append(f"v_add_f32 v{x1}, v{x1}, v{BIAS+2*i+1}")
                ops.append(f"v_cvt_pk_bf16_f32 v{t}, v{x0}, v{x1}")
                ops.append(f"v_lshlrev_b32 v{x0}, 16, v{t}")
                ops.append(f"v_and_b32 v{x1}, 0xffff0000, v{t}")
                for k, x in enumerate((x0, x1)):
                    u = t + 1 + k
                    ops.append(f"v_mul_f32 v{u}, v{x}, v{x}")
                    ops.append(f"v_mul_f32 v{u}, s41, v{u}")
                    ops.append(f"v_add_f32 v{u}, s40, v{u}")
                    ops.append(f"v_mul_f32 v{u}, v{u}, v{x}")
                    ops.append(f"v_exp_f32 v{u}, v{u}")
                for k, x in enumerate((x0, x1)):
                    u = t + 1 + k
                    ops.append(f"v_add_f32 v{u}, 1.0, v{u}")
                    ops.append(f"v_rcp_f32 v{u}, v{u}")
                for k, x in enumerate((x0, x1)):
                    u = t + 1 + k
                    ops.append(f"v_mul_f32 v{x}, v{x}, v{u}")
                ops.append(f"v_cvt_pk_bf16_f32 v{VT+i}, v{x0}, v{x1}")
        ops.append(f"buffer_store_dwordx4 v[{VT}:{VT+3}], v{V_ST}, s[12:15], s44 offen{sc}")
        ops.append(f"buffer_store_dwordx4 v[{VT+4}:{VT+7}], v{V_ST}, s[12:15], s44 offen offset:1024{sc}")
        return ops

    def seg_iter(par, gelu, first, second=False):
        acc = ACC[par]
        a("s_waitcnt vmcnt(1)" if (fused and not gelu and not first and not second) else "s_waitcnt vmcnt(0)")
        a("s_barrier")
        if gelu and not first: publish(-1)
        a(f"""
        s_and_b32 s35, s42, {NSLOT-1}
        s_mul_i32 s35, s35, {SLOT}
        v_add_u32 v{V_LDSRD}, s35, v{V_ST}
        """)
        for i in range(NFB - 1):
            a(f"ds_read_b128 v[{FB+4*i}:{FB+4*i+3}], v{V_LDSRD} offset:{1024*i}")
        sk = a.uid(pfx + '_nopf')
        a(f"""
        s_add_u32 s35, s42, {PD}
        s_cmp_ge_u32 s35, {NSEG}
        s_cbranch_scc1 {sk}
        s_and_b32 s35, s35, {NSLOT-1}
        s_mul_i32 s35, s35, {SLOT}
        """)
        dma(43)
        a(f"s_add_u32 s43, s43, {XN_SEG}")
        a.label(sk)
        ep = [] if first else epilogue_ops(ACC[par ^ 1], gelu)
        per = 6 if gelu else 2
        for ks in range(40):
            fb = FB + 4 * (ks % NFB)
            rem = min(NFB - 2, 39 - ks)
            a(f"s_waitcnt lgkmcnt({rem})")
            c = '0' if ks == 0 else f"v[{acc}:{acc+15}]"
            a(f"v_mfma_f32_32x32x16_bf16 v[{acc}:{acc+15}], v[{WF+4*ks}:{WF+4*ks+3}], v[{fb}:{fb+3}], {c}")
            nk = ks + NFB - 1
            if nk < 40:
                nb = FB + 4 * (nk % NFB)
                a(f"ds_read_b128 v[{nb}:{nb+3}], v{V_LDSRD} offset:{1024*nk}")
            if ks >= 1:
                for _ in range(per):
                    if ep: a(ep.pop(0))
            if fused and ks == 28 and not gelu and not first:
                a("s_waitcnt vmcnt(0)")
                publish(0)
        assert not ep
        a(f"s_add_u32 s42, s42, 1\ns_add_u32 s44, s44, s22")

    for gelu in (0, 1):
        lp = L(f'loop{gelu}')
        if gelu == 0:
            a(f"s_cmp_ge_u32 s16, 72\ns_cbranch_scc1 {L('gelu_path')}")
        else:
            a.label(L('gelu_path'))
            a(f"s_cmp_ge_u32 s17, 4\ns_cbranch_scc1 {L('idle')}")
        seg_iter(0, gelu, True)
        if fused and not gelu: a("s_waitcnt vmcnt(0)")
        a.label(lp)
        seg_iter(1, gelu, False)
        a(f"s_cmp_ge_u32 s42, {NSEG}\ns_cbranch_scc1 {L(f'fin{gelu}')}")
        seg_iter(0, gelu, False)
        a(f"s_branch {lp}")
        a.label(L(f'fin{gelu}'))
        a("s_nop 15")
        for op in epilogue_ops(ACC[1], gelu):
            a(op)
        if fused:
            a("s_waitcnt vmcnt(0)")
            publish(0)
        a(f"s_branch {L('done')}")
    a.label(L('idle'))
    a(f"""
    s_waitcnt vmcnt(0)
    s_barrier
    s_add_u32 s35, s42, {PD}
    s_cmp_ge_u32 s35, {NSEG}
    s_cbranch_scc1 {L('idle2')}
    s_and_b32 s35, s35, {NSLOT-1}
    s_mul_i32 s35, s35, {SLOT}
    """)
    dma(43)
    a(f"s_add_u32 s43, s43, {XN_SEG}")
    a.label(L('idle2'))
    a(f"s_add_u32 s42, s42, 1\ns_cmp_lt_u32 s42, {NSEG}\ns_cbranch_scc1 {L('idle')}")
    a.label(L('done'))

def gen_big(a, name='big_kernel'):
    a.raw(kernel_header(name))
    a(f"""
    s_cmp_ge_u32 s2, 84
    s_cbranch_scc1 BIG_end
    s_mov_b32 s16, s2
    v_lshrrev_b32 v1, 6, v0
    v_and_b32 v255, 63, v0
    s_nop 0
    v_readfirstlane_b32 s17, v1
    s_nop 3
    """)
    a("s_memtime s[50:51]")
    big_body(a, 'BIG')
    a(f"""
    s_memtime s[54:55]
    s_load_dwordx2 s[56:57], s[0:1], {KA['dbg']}
    s_waitcnt lgkmcnt(0)
    s_sub_u32 s54, s54, s52
    s_sub_u32 s52, s52, s50
    s_mov_b32 s58, 256
    s_mov_b32 s59, 0x00020000
    v_mov_b32 v4, s52
    v_mov_b32 v5, s54
    s_cmp_eq_u32 s16, 0
    s_cselect_b32 s60, 0, 256
    s_cmp_eq_u32 s16, 75
    s_cselect_b32 s60, 8, s60
    v_mov_b32 v3, s60
    buffer_store_dwordx2 v[4:5], v3, s[56:59], 0 offen
    """)
    a.label('BIG_end')
    a("s_endpgm")
    return kernel_desc(name)
```

```python
from asmlib import *
from layout import *

def dpp_allreduce16(a, v, t):
    for n in (8, 4, 2, 1):
        a("s_nop 1")
        a(f"v_add_f32_dpp v{t}, v{v}, v{v} row_ror:{n} row_mask:0xf bank_mask:0xf")
        a(f"v_mov_b32 v{v}, v{t}")

def round_bf16(a, d, s):
    a(f"v_cvt_pk_bf16_f32 v{d}, v{s}, v{s}")
    a(f"v_lshlrev_b32 v{d}, 16, v{d}")

def ln_pass(a, X, P, T):
    s, t, m, mb, r = T, T + 1, T + 2, T + 3, T + 4
    a(f"v_add_f32 v{s}, v{X}, v{X+1}")
    for i in range(2, 40):
        a(f"v_add_f32 v{s}, v{s}, v{X+i}")
    dpp_allreduce16(a, s, t)
    a(f"v_mul_f32 v{m}, s20, v{s}")
    a(f"v_sub_f32 v{t}, v{X}, v{m}")
    a(f"v_mul_f32 v{s}, v{t}, v{t}")
    for i in range(1, 40):
        a(f"v_sub_f32 v{t}, v{X+i}, v{m}")
        a(f"v_fmac_f32 v{s}, v{t}, v{t}")
    dpp_allreduce16(a, s, t)
    a(f"v_mul_f32 v{s}, s20, v{s}")
    round_bf16(a, s, s)
    a(f"v_add_f32 v{s}, s21, v{s}")
    round_bf16(a, s, s)
    a(f"v_sqrt_f32 v{s}, v{s}")
    a("s_nop 0")
    round_bf16(a, s, s)
    a(f"v_rcp_f32 v{r}, v{s}")
    round_bf16(a, mb, m)
    for i in range(0, 40, 2):
        a(f"v_sub_f32 v{X+i}, v{X+i}, v{mb}")
        a(f"v_sub_f32 v{X+i+1}, v{X+i+1}, v{mb}")
        a(f"v_cvt_pk_bf16_f32 v{t}, v{X+i}, v{X+i+1}")
        a(f"v_lshlrev_b32 v{X+i}, 16, v{t}")
        a(f"v_and_b32 v{X+i+1}, 0xffff0000, v{t}")
        for j in (X + i, X + i + 1):
            a(f"v_mul_f32 v{t}, v{j}, v{r}")
            a(f"v_fma_f32 v{j}, -v{t}, v{s}, v{j}")
            a(f"v_fma_f32 v{j}, v{j}, v{r}, v{t}")
        a(f"v_cvt_pk_bf16_f32 v{P+i//2}, v{X+i}, v{X+i+1}")
        a(f"v_lshlrev_b32 v{X+i}, 16, v{P+i//2}")
        a(f"v_and_b32 v{X+i+1}, 0xffff0000, v{P+i//2}")

def cwindow(a, sd, wslo):
    a(f"s_sub_u32 s{sd}, 0, s{wslo}\ns_and_b32 s{sd}, s{sd}, 0x1fffff")

def init_ctl(a):
    NT = 128 * 256
    cwindow(a, 24, 6)
    a(f"""
    s_lshl_b32 s3, s2, 8
    v_add_u32 v1, s3, v0
    v_lshlrev_b32 v2, 4, v1
    v_mov_b32 v8, -1
    v_mov_b32 v9, -1
    v_mov_b32 v10, -1
    v_mov_b32 v11, -1
    v_mov_b32 v12, 0
    v_mov_b32 v13, 0
    v_mov_b32 v14, 0
    v_mov_b32 v15, 0
    """)
    def fill(base_s, base_imm, nbytes, vdata):
        units = nbytes // 16
        k = 0
        while k * NT < units:
            if base_s is not None:
                a(f"s_add_u32 s25, s{base_s}, {base_imm + k*NT*16}")
            else:
                a(f"s_mov_b32 s25, {base_imm + k*NT*16}")
            rem = units - k * NT
            if rem < NT:
                sk = a.uid('LN_sk')
                a(f"v_cmp_gt_u32 vcc, {rem}, v1\ns_and_saveexec_b64 s[26:27], vcc\ns_cbranch_execz {sk}")
                a(f"buffer_store_dwordx4 v[{vdata}:{vdata+3}], v2, s[12:15], s25 offen")
                a.label(sk)
                a("s_mov_b64 exec, s[26:27]")
            else:
                a(f"buffer_store_dwordx4 v[{vdata}:{vdata+3}], v2, s[12:15], s25 offen")
            k += 1
    fill(24, 0, C_BYTES, 8)
    fill(None, A_OFF, NRING * A_SLOT, 8)
    fill(None, D_OFF + D_SLOT, (NRING - 1) * D_SLOT, 8)
    fill(None, TK_OFF, 1024, 12)
    fill(None, PROG_OFF, 1024, 12)
    fill(None, FLAG_OFF, 65536, 12)
    a(f"""
    s_cmp_ge_u32 s2, 10
    s_cbranch_scc1 LN_nod0
    s_load_dwordx2 s[28:29], s[0:1], {KA['mem0']}
    v_mul_u32_u24 v3, 52429, v1
    v_lshrrev_b32 v3, 25, v3
    v_mul_u32_u24 v3, 640, v3
    v_sub_u32 v3, v1, v3
    v_and_b32 v4, 7, v3
    v_mul_u32_u24 v4, 1280, v4           ; row*1280
    v_lshrrev_b32 v5, 5, v3
    v_lshl_add_u32 v4, v5, 6, v4
    v_bfe_u32 v5, v3, 3, 2
    v_lshl_add_u32 v4, v5, 3, v4         ; + g*8 bytes
    s_waitcnt lgkmcnt(0)
    s_mov_b32 s30, {M*DM*2}
    s_mov_b32 s31, 0x00020000
    buffer_load_dwordx2 v[16:17], v4, s[28:31], 0 offen
    buffer_load_dwordx2 v[18:19], v4, s[28:31], 0 offen offset:32
    s_mov_b32 s25, {D_OFF}
    s_mov_b32 s33, 0xfffffffe
    s_waitcnt vmcnt(0)
    v_min_u32 v16, s33, v16
    v_min_u32 v17, s33, v17
    v_min_u32 v18, s33, v18
    v_min_u32 v19, s33, v19
    buffer_store_dwordx4 v[16:19], v2, s[12:15], s25 offen
    """)
    a.label('LN_nod0')
    a("s_branch LN_end")
    a.label('LN_probe')
    cwindow(a, 24, 6)
    a(f"""
    v_readfirstlane_b32 s3, v0
    s_cmp_lg_u32 s3, 0
    s_cbranch_scc1 LN_end
    v_mov_b32 v8, -1
    v_mov_b32 v3, 0
    s_mov_b32 s34, 0x7fffffff
    s_mov_b32 s35, 0x7fffffff
    """)
    for it in range(3):
        for par in range(2):
            a(f"""
            s_add_u32 s25, s24, {it*16384*5 + par*8192 + it*1024}
            buffer_store_dword v8, v3, s[12:15], s25 offen sc1
            s_waitcnt vmcnt(0)
            s_memtime s[36:37]
            s_waitcnt lgkmcnt(0)
            buffer_load_dword v5, v3, s[12:15], s25 offen sc1
            s_waitcnt vmcnt(0)
            s_memtime s[38:39]
            s_waitcnt lgkmcnt(0)
            s_sub_u32 s38, s38, s36
            s_min_u32 s{34+par}, s{34+par}, s38
            """)
    a(f"""
    s_getreg_b32 s36, hwreg(HW_REG_XCC_ID)
    s_lshr_b32 s36, s36, 2
    s_and_b32 s36, s36, 1
    s_cmp_lt_u32 s35, s34
    s_cselect_b32 s37, 1, 0
    s_xor_b32 s37, s37, s36
    s_lshl_b32 s37, s37, 13
    v_mov_b32 v4, s37
    v_mov_b32 v5, s34
    v_mov_b32 v6, s35
    v_mov_b32 v7, s36
    s_mov_b32 s25, {PAR_OFF}
    buffer_store_dwordx4 v[4:7], v3, s[12:15], s25 offen
    """)

def gen_ln(a, name='ln_kernel'):
    a.raw(kernel_header(name))
    a(f"""
    s_cmp_ge_u32 s2, 129
    s_cbranch_scc1 LN_end
    s_load_dwordx2 s[4:5], s[0:1], {KA['x']}
    s_load_dwordx2 s[6:7], s[0:1], {KA['ws']}
    s_mov_b32 s20, 0x3acccccd
    s_mov_b32 s21, 0x3727c5ac
    v_lshrrev_b32 v1, 4, v0
    v_and_b32 v2, 15, v0                 ; j
    s_lshl_b32 s3, s2, 4
    v_add_u32 v1, s3, v1
    v_mul_u32_u24 v3, 1280, v1
    v_lshl_add_u32 v3, v2, 4, v3
    s_waitcnt lgkmcnt(0)
    """)
    srd(a, 8, 4, S * DM * 2)
    srd(a, 12, 6, WS_BYTES)
    a("s_cmp_eq_u32 s2, 128\ns_cbranch_scc1 LN_probe")
    for i in range(5):
        a(f"buffer_load_dwordx4 v[{12+4*i}:{15+4*i}], v3, s[8:11], 0 offen offset:{256*i}")
    a(f"""
    v_lshrrev_b32 v4, 5, v1
    v_mul_u32_u24 v4, {XN_SEG}, v4
    v_and_b32 v5, 31, v1
    v_lshl_add_u32 v4, v5, 4, v4
    v_lshrrev_b32 v5, 1, v2
    v_lshl_add_u32 v4, v5, 10, v4
    v_and_b32 v5, 1, v2
    v_lshl_add_u32 v4, v5, 9, v4
    s_mov_b32 s22, {XN_OFF}
    s_mov_b32 s23, {YN_OFF}
    s_waitcnt vmcnt(0)
    """)
    X, P, T = 32, 72, 92
    for i in range(20):
        a(f"v_lshlrev_b32 v{X+2*i}, 16, v{12+i}")
        a(f"v_and_b32 v{X+2*i+1}, 0xffff0000, v{12+i}")
    ln_pass(a, X, P, T)
    for i in range(5):
        a(f"v_add_u32 v5, {8192*i}, v4")
        a(f"buffer_store_dwordx4 v[{P+4*i}:{P+4*i+3}], v5, s[12:15], s22 offen")
    P2 = 12
    ln_pass(a, X, P2, T)
    for i in range(5):
        a(f"v_add_u32 v5, {8192*i}, v4")
        a(f"buffer_store_dwordx4 v[{P2+4*i}:{P2+4*i+3}], v5, s[12:15], s23 offen")
    init_ctl(a)
    a.label('LN_end')
    a("s_endpgm")
    return kernel_desc(name, vgpr=104, sgpr=48, accum=104)
```

```python
from asmlib import *
from layout import *
import k_big, k_small, k_rec, k_post2
import os

def gen_main(a, name='main_kernel'):
    a.raw(kernel_header(name))
    a(f"""
    s_cmp_ge_u32 s2, 256
    s_cbranch_scc1 MAIN_end
    s_load_dwordx2 s[4:5], s[0:1], {KA['ws']}
    s_getreg_b32 s18, hwreg(HW_REG_XCC_ID)
    s_and_b32 s18, s18, 7
    v_lshrrev_b32 v1, 6, v0
    v_and_b32 v255, 63, v0
    s_nop 0
    v_readfirstlane_b32 s17, v1
    s_memtime s[90:91]
    s_memrealtime s[84:85]
    s_waitcnt lgkmcnt(0)
    """)
    srd(a, 12, 4, WS_BYTES)
    def ticket(off_s, lab):
        a(f"""
        v_mov_b32 v3, 1
        v_mov_b32 v4, s{off_s}
        v_mov_b32 v5, 0
        s_cmp_lg_u32 s17, 0
        s_cbranch_scc1 {lab}
        s_mov_b64 exec, 1
        buffer_atomic_add v3, v4, s[12:15], 0 offen sc0
        s_waitcnt vmcnt(0)
        ds_write_b32 v5, v3
        s_waitcnt lgkmcnt(0)
        s_mov_b64 exec, -1
        """)
        a.label(lab)
        a(f"""
        s_barrier
        ds_read_b32 v3, v5
        s_waitcnt lgkmcnt(0)
        v_readfirstlane_b32 s16, v3
        s_barrier
        """)
    a(f"s_lshl_b32 s16, s18, 7\ns_add_u32 s16, s16, {TK_OFF}")
    ticket(16, 'MAIN_tk1')
    if k_rec.STAMP >= 0:
        for i in range(12): a(f"s_mov_b32 s{64+i}, 0")
    a(f"""
    s_mov_b32 s96, 0
    s_mov_b32 s88, 0
    s_memtime s[86:87]
    s_waitcnt lgkmcnt(0)
    s_sub_u32 s87, s86, s90
    s_mov_b32 s92, s16
    s_cmp_ge_u32 s16, 32
    s_cbranch_scc1 MAIN_post
    s_cmp_ge_u32 s18, 4
    s_cbranch_scc1 MAIN_gemm
    s_cmp_lt_u32 s16, 24
    s_cbranch_scc1 MAIN_rec
    """)
    k_rec.weight_prefetch(a, 'WPF')
    a("s_cmp_ge_u32 s16, 28\ns_cbranch_scc1 MAIN_end")
    k_rec.helper_body(a, 'HLP', fused=True)
    a("s_branch MAIN_end")
    a.label('MAIN_rec')
    k_rec.rec_body(a, 'REC', fused=True)
    a("s_setprio 0")
    dump(a)
    a("s_branch MAIN_post")
    a.label('MAIN_gemm')
    a(f"""
    s_lshl_b32 s16, s16, 2
    s_add_u32 s16, s16, s18
    s_sub_u32 s16, s16, 4
    s_cmp_ge_u32 s16, 124
    s_cbranch_scc1 MAIN_post
    """)
    a(f"""
    s_cmp_lt_u32 s16, 24
    s_cbranch_scc1 MAIN_late
    s_cmp_lt_u32 s16, 72
    s_cbranch_scc1 MAIN_go
    s_cmp_lt_u32 s16, 84
    s_cbranch_scc1 MAIN_late
    s_cmp_lt_u32 s16, 116
    s_cbranch_scc1 MAIN_go
    """)
    a.label('MAIN_late')
    a(f"""
    s_mov_b32 s46, 2000000
    s_lshl_b32 s40, s16, 2
    s_add_u32 s40, s40, {PB_OFF + 384*4}
    v_mov_b32 v1, s40
    s_cmp_lg_u32 s17, 0
    s_cbranch_scc1 MAIN_late2
    """)
    a.label('MAIN_latep')
    a(f"""
    buffer_load_dword v2, v1, s[12:15], 0 offen sc1
    s_sub_u32 s46, s46, 1
    s_cbranch_scc1 MAIN_late2
    s_waitcnt vmcnt(0)
    v_cmp_eq_u32 vcc, 0, v2
    s_cbranch_vccz MAIN_late2
    s_sleep 32
    s_branch MAIN_latep
    """)
    a.label('MAIN_late2')
    a("s_waitcnt vmcnt(0)\ns_barrier")
    a.label('MAIN_go')
    a(f"""
    s_cmp_ge_u32 s16, 84
    s_cbranch_scc1 MAIN_small
    """)
    k_big.big_body(a, 'BIG', fused=True)
    dump(a)
    a("s_branch MAIN_post")
    a.label('MAIN_small')
    a("s_sub_u32 s16, s16, 84")
    k_small.small_body(a, 'SM', fused=True)
    dump(a)
    a.label('MAIN_post')
    a(f"""
    s_load_dwordx2 s[4:5], s[0:1], {KA['ws']}
    s_waitcnt lgkmcnt(0) vmcnt(0)
    s_barrier
    s_mov_b32 s46, 8000000
    """)
    srd(a, 12, 4, WS_BYTES)
    NI = 15
    def wait_flags(tag, loads, regs, cmp_s, sleep):
        lp = f"MAIN_w{tag}"
        a.label(lp)
        for ld in loads: a(ld)
        a(f"s_sub_u32 s46, s46, 1\ns_cbranch_scc1 {lp}_x\ns_waitcnt vmcnt(0)")
        regs = list(regs)
        a(f"v_mov_b32 v4, v{regs[0]}")
        k = 1
        while k < len(regs):
            if k + 1 < len(regs):
                a(f"v_min3_u32 v4, v4, v{regs[k]}, v{regs[k+1]}"); k += 2
            else:
                a(f"v_min_u32 v4, v4, v{regs[k]}"); k += 1
        a(f"v_cmp_ge_u32 vcc, s{cmp_s}, v4\ns_cbranch_vccz {lp}_ok\ns_sleep {sleep}\ns_branch {lp}")
        a.label(lp + '_x')
        a("s_mov_b32 s46, 0\ns_waitcnt vmcnt(0)")
        a.label(lp + '_ok')
    a.label('MAIN_ploop')
    a(f"s_mov_b32 s16, {QUE_OFF}")
    ticket(16, 'MAIN_tk2')
    a(f"""
    s_cmp_ge_u32 s16, {NSEG*NI}
    s_cbranch_scc1 {'MAIN_exit' if os.environ.get('MAIN_DUMP') else 'MAIN_end'}
    s_mul_i32 s40, s16, 4370
    s_lshr_b32 s40, s40, 16              ; seg = t/15
    s_mul_i32 s41, s40, {NI}
    s_sub_u32 s19, s16, s41              ; item
    s_mov_b32 s16, s40
    v_lshlrev_b32 v1, 4, v255
    v_min_u32 v2, {31*16}, v1
    v_min_u32 v3, {15*16}, v1
    s_cmp_eq_u32 s19, 0
    s_cbranch_scc1 MAIN_gi
    s_cmp_ge_u32 s19, 5
    s_cbranch_scc1 MAIN_zi
    """)
    a("s_sub_u32 s19, s19, 1\ns_cmp_lg_u32 s17, 0\ns_cbranch_scc1 MAIN_pgo")
    a(f"v_and_b32 v5, 3, v255\nv_lshlrev_b32 v5, 7, v5\ns_mov_b32 s42, {PROG_OFF}\ns_add_u32 s43, s16, 2")
    wait_flags('c', ["buffer_load_dword v8, v5, s[12:15], s42 offen sc1"], [8], 43, int(os.environ.get('POST_SLEEP', 24)))
    a(f"s_mov_b32 s42, {PR_OFF}\ns_mov_b32 s40, {PB_OFF}")
    a("v_lshlrev_b32 v5, 6, v255\nv_lshlrev_b32 v6, 2, v2\ns_add_u32 s43, s42, 4096")
    wait_flags('p', ["buffer_load_dword v24, v5, s[12:15], s42 offen sc1",
                     "buffer_load_dword v25, v6, s[12:15], s43 offen sc1",
                     "buffer_load_dwordx4 v[8:11], v1, s[12:15], s40 offen sc1",
                     "buffer_load_dwordx4 v[12:15], v2, s[12:15], s40 offen offset:1024 sc1"],
               [24, 25] + list(range(8, 16)), 16, 6)
    a.label('MAIN_pgo')
    a("s_barrier")
    k_post2.p_item(a, 'PI')
    a("s_branch MAIN_ploop")
    a.label('MAIN_gi')
    a("s_cmp_lg_u32 s17, 0\ns_cbranch_scc1 MAIN_ggo")
    a(f"s_mov_b32 s41, {PS_OFF+1024}")
    wait_flags('g', ["buffer_load_dwordx4 v[8:11], v3, s[12:15], s41 offen sc1"], range(8, 12), 16, 32)
    a.label('MAIN_ggo')
    a("s_barrier")
    k_post2.g_item(a, 'GI')
    a("s_branch MAIN_ploop")
    a.label('MAIN_zi')
    a("s_sub_u32 s19, s19, 5\ns_cmp_lg_u32 s17, 0\ns_cbranch_scc1 MAIN_zgo")
    a(f"v_and_b32 v5, 3, v255\nv_lshlrev_b32 v5, 7, v5\ns_mov_b32 s42, {PROG_OFF}\ns_add_u32 s43, s16, 2")
    wait_flags('zc', ["buffer_load_dword v8, v5, s[12:15], s42 offen sc1"], [8], 43, int(os.environ.get('POST_SLEEP', 24)))
    a(f"v_min_u32 v5, 4, v255\nv_lshlrev_b32 v5, 2, v5\ns_lshl_b32 s42, s16, 7\ns_add_u32 s42, s42, {PF_OFF}\ns_mov_b32 s43, 0")
    wait_flags('z', ["buffer_load_dword v8, v5, s[12:15], s42 offen sc1"], [8], 43, 6)
    a.label('MAIN_zgo')
    a("s_barrier")
    k_post2.z_item(a, 'ZI')
    a("s_branch MAIN_ploop")
    if os.environ.get('MAIN_DUMP'):
        a("s_branch MAIN_end")
        a.label('MAIN_exit')
        a(f"""
        s_memrealtime s[82:83]
        s_getreg_b32 s93, hwreg(HW_REG_XCC_ID)
        s_and_b32 s93, s93, 7
        s_waitcnt lgkmcnt(0)
        s_lshl_b32 s93, s93, 5
        s_add_u32 s93, s93, s92
        s_lshl_b32 s93, s93, 3
        s_add_u32 s93, s93, {WS_END}+131072
        v_mov_b32 v3, 0
        v_mov_b32 v4, s84
        v_mov_b32 v5, s82
        buffer_store_dwordx2 v[4:5], v3, s[12:15], s93 offen
        """)
    a.label('MAIN_end')
    a("s_endpgm")
    return kernel_desc(name)

def dump(a):
    if not os.environ.get('MAIN_DUMP'): return
    a(f"""
    s_memtime s[94:95]
    s_memrealtime s[82:83]
    s_getreg_b32 s93, hwreg(HW_REG_XCC_ID)
    s_and_b32 s93, s93, 7
    s_waitcnt lgkmcnt(0)
    s_sub_u32 s94, s94, s90
    s_sub_u32 s95, s96, s90
    s_lshl_b32 s93, s93, 5
    s_add_u32 s93, s93, s92
    s_lshl_b32 s93, s93, 3
    s_add_u32 s93, s93, s17
    s_lshl_b32 s93, s93, 6
    s_add_u32 s93, s93, {WS_END}
    v_mov_b32 v3, 0
    """)
    for i in range(12): a(f"v_mov_b32 v{4+i}, s{64+i}" if k_rec.STAMP >= 0 else f"v_mov_b32 v{4+i}, 0")
    a("s_sub_u32 s88, s88, s90\nv_mov_b32 v16, s94\nv_mov_b32 v17, s95\nv_mov_b32 v18, s88\ns_sub_u32 s82, s82, s84\nv_mov_b32 v19, s82")
    for i in range(4): a(f"buffer_store_dwordx4 v[{4+4*i}:{7+4*i}], v3, s[12:15], s93 offen offset:{16*i}")
```

```python
from asmlib import *
from layout import *
import math, struct

def f32(x):
    return hex(struct.unpack('<I', struct.pack('<f', x))[0])

def common(a):
    a(f"""
    v_lshlrev_b32 v254, 4, v255                 ; lane*16
    v_lshrrev_b32 v253, 5, v255                 ; h
    v_and_b32 v252, 31, v255
    v_lshlrev_b32 v250, 3, v255                 ; lane*8
    """)

def set_flag(a, idx_s):
    sk = a.uid('PFL')
    a(f"""
    s_waitcnt vmcnt(0)
    s_barrier
    s_cmp_lg_u32 s17, 0
    s_cbranch_scc1 {sk}
    s_lshl_b32 s40, s16, 7
    s_lshl_b32 s41, s{idx_s}, 2
    s_add_u32 s40, s40, s41
    s_add_u32 s40, s40, {PF_OFF}
    v_mov_b32 v1, s40
    v_mov_b32 v2, 1
    buffer_store_dword v2, v1, s[12:15], 0 offen sc1
    """)
    a.label(sk)

def p_item(a, pfx):
    QF, KF, MFR = 0, 48, 96
    SX, SM = 144, 160
    T = 176
    cs = DH ** -0.5 * math.log2(math.e)
    common(a)
    a(f"""
    v_and_b32 v251, 7, v255
    v_lshlrev_b32 v251, 4, v251
    v_lshl_add_u32 v251, v253, 7, v251
    v_lshlrev_b32 v249, 2, v253
    v_sub_u32 v249, v252, v249
    v_mov_b32 v248, 0xff800000
    s_mov_b32 s53, {f32(cs)}
    s_lshl_b32 s20, s19, 3
    s_add_u32 s20, s20, s17                     ; head
    s_mul_i32 s21, s16, {P_SEG}
    s_mul_i32 s40, s20, {PH}
    s_add_u32 s21, s21, s40
    s_add_u32 s22, s21, {K_OFF}
    s_add_u32 s21, s21, {Q_OFF}
    s_mul_i32 s23, s16, {KM_SEG}
    s_mul_i32 s40, s20, {KMH}
    s_add_u32 s23, s23, s40
    s_add_u32 s23, s23, {KM_OFF}
    s_mul_i32 s24, s16, {PP_SEG}
    s_mul_i32 s40, s20, {PPH}
    s_add_u32 s24, s24, s40
    s_add_u32 s24, s24, {PP_OFF}
    """)
    for b in range(12):
        if b % 4 == 0 and b:
            a(f"s_add_u32 s21, s21, 4096\ns_add_u32 s22, s22, 4096")
        a(f"buffer_load_dwordx4 v[{QF+4*b}:{QF+4*b+3}], v254, s[12:15], s21 offen offset:{1024*(b%4)}")
        a(f"buffer_load_dwordx4 v[{KF+4*b}:{KF+4*b+3}], v254, s[12:15], s22 offen offset:{1024*(b%4)}")
        a(f"buffer_load_dwordx4 v[{MFR+4*b}:{MFR+4*b+3}], v251, s[12:15], s23 offen offset:{256*b}")
    for b in range(12):
        a(f"s_waitcnt vmcnt({3*(11-b)})")
        c = '0' if b == 0 else f"v[{SX}:{SX+15}]"
        a(f"v_mfma_f32_32x32x16_bf16 v[{SX}:{SX+15}], v[{KF+4*b}:{KF+4*b+3}], v[{QF+4*b}:{QF+4*b+3}], {c}")
        c = '0' if b == 0 else f"v[{SM}:{SM+15}]"
        a(f"v_mfma_f32_32x32x16_bf16 v[{SM}:{SM+15}], v[{MFR+4*b}:{MFR+4*b+3}], v[{QF+4*b}:{QF+4*b+3}], {c}")
    a("s_nop 15")
    for r in range(16):
        key = 8 * (r >> 2) + (r & 3)
        a(f"v_cmp_le_i32 vcc, {key}, v249")
        a("s_nop 1")
        a(f"v_cndmask_b32 v{SX+r}, v248, v{SX+r}, vcc")
    vals = [SX + r for r in range(16)] + [SM + j for j in range(4)]
    mx, t2, sm = T, T + 1, T + 2
    a(f"v_max3_f32 v{mx}, v{vals[0]}, v{vals[1]}, v{vals[2]}")
    for i in range(3, 19, 2):
        a(f"v_max3_f32 v{mx}, v{mx}, v{vals[i]}, v{vals[i+1]}")
    a(f"""
    v_max_f32 v{mx}, v{mx}, v{vals[19]}
    v_mov_b32 v{t2}, v{mx}
    s_nop 1
    v_permlane32_swap_b32 v{mx}, v{t2}
    v_max_f32 v{mx}, v{mx}, v{t2}
    v_mul_f32 v{mx}, s53, v{mx}
    """)
    for v in vals: a(f"v_fma_f32 v{v}, v{v}, s53, -v{mx}")
    for v in vals: a(f"v_exp_f32 v{v}, v{v}")
    a(f"v_add_f32 v{sm}, v{vals[0]}, v{vals[1]}")
    for v in vals[2:]: a(f"v_add_f32 v{sm}, v{sm}, v{v}")
    a(f"""
    v_mov_b32 v{t2}, v{sm}
    s_nop 1
    v_permlane32_swap_b32 v{sm}, v{t2}
    v_add_f32 v{sm}, v{sm}, v{t2}
    v_rcp_f32 v{sm}, v{sm}
    s_nop 0
    """)
    for v in vals: a(f"v_mul_f32 v{v}, v{v}, v{sm}")
    PO = T + 4
    for i in range(10):
        a(f"v_cvt_pk_bf16_f32 v{PO+i}, v{vals[2*i]}, v{vals[2*i+1]}")
    a(f"""
    buffer_store_dwordx4 v[{PO}:{PO+3}], v254, s[12:15], s24 offen sc1
    buffer_store_dwordx4 v[{PO+4}:{PO+7}], v254, s[12:15], s24 offen offset:1024 sc1
    buffer_store_dwordx2 v[{PO+8}:{PO+9}], v250, s[12:15], s24 offen offset:2048 sc1
    """)
    set_flag(a, 19)

def g_item(a, pfx):
    L = lambda n: f"{pfx}_{n}"
    common(a)
    a(f"""
    s_load_dwordx2 s[32:33], s[0:1], {KA['b2']}
    s_mov_b32 s34, {DM*2}
    s_mov_b32 s35, 0x00020000
    v_lshlrev_b32 v242, 3, v253
    s_mov_b32 s41, {f32(-math.log2(math.e))}
    s_mov_b32 s28, s17
    s_waitcnt lgkmcnt(0)
    """)
    GB = 0; RW = 16; BB = 128; E = 136
    a.label(L('gl'))
    a(f"""
    s_mul_i32 s21, s16, {G_SEG}
    s_lshl_b32 s40, s28, 11
    s_add_u32 s21, s21, s40
    s_add_u32 s21, s21, {G_OFF}
    s_lshl_b32 s22, s28, 6
    s_mul_i32 s23, s16, {GT_SEG}
    s_lshl_b32 s40, s28, 11
    s_add_u32 s23, s23, s40
    s_add_u32 s23, s23, {GT_OFF}
    """)
    for sl in range(8):
        a(f"s_add_u32 s40, s21, {sl*GH}")
        for p in range(2):
            a(f"buffer_load_dwordx4 v[{RW+8*sl+4*p}:{RW+8*sl+4*p+3}], v254, s[12:15], s40 offen offset:{1024*p}")
    for q in range(4):
        a(f"buffer_load_dwordx2 v[{BB+2*q}:{BB+2*q+1}], v242, s[32:35], s22 offen offset:{16*q}")
    for sl in range(8):
        a(f"s_waitcnt vmcnt({4+2*(7-sl)})")
        for i in range(8):
            d = GB + 2 * i if sl == 0 else E
            a(f"v_lshlrev_b32 v{d}, 16, v{RW+8*sl+i}")
            a(f"v_and_b32 v{d+1}, 0xffff0000, v{RW+8*sl+i}")
            if sl: a(f"v_pk_add_f32 v[{GB+2*i}:{GB+2*i+1}], v[{GB+2*i}:{GB+2*i+1}], v[{E}:{E+1}]")
    a("s_waitcnt vmcnt(0)")
    for i in range(8):
        g0, g1 = GB + 2 * i, GB + 2 * i + 1
        a(f"""
        v_cvt_pk_bf16_f32 v{E}, v{g0}, v{g1}
        v_lshlrev_b32 v{g0}, 16, v{E}
        v_and_b32 v{g1}, 0xffff0000, v{E}
        v_lshlrev_b32 v{E+1}, 16, v{BB+i}
        v_and_b32 v{E+2}, 0xffff0000, v{BB+i}
        v_add_f32 v{g0}, v{g0}, v{E+1}
        v_add_f32 v{g1}, v{g1}, v{E+2}
        v_cvt_pk_bf16_f32 v{E}, v{g0}, v{g1}
        v_lshlrev_b32 v{g0}, 16, v{E}
        v_and_b32 v{g1}, 0xffff0000, v{E}
        v_mul_f32 v{E+1}, s41, v{g0}
        v_mul_f32 v{E+2}, s41, v{g1}
        v_exp_f32 v{E+1}, v{E+1}
        v_exp_f32 v{E+2}, v{E+2}
        s_nop 0
        v_add_f32 v{E+1}, 1.0, v{E+1}
        v_add_f32 v{E+2}, 1.0, v{E+2}
        v_rcp_f32 v{E+1}, v{E+1}
        v_rcp_f32 v{E+2}, v{E+2}
        s_nop 0
        v_mul_f32 v{g0}, v{g0}, v{E+1}
        v_mul_f32 v{g1}, v{g1}, v{E+2}
        v_cvt_pk_bf16_f32 v{E+4+i}, v{g0}, v{g1}
        """)
    a(f"""
    buffer_store_dwordx4 v[{E+4}:{E+7}], v254, s[12:15], s23 offen sc1
    buffer_store_dwordx4 v[{E+8}:{E+11}], v254, s[12:15], s23 offen offset:1024 sc1
    s_add_u32 s28, s28, 8
    s_cmp_lt_u32 s28, 20
    s_cbranch_scc1 {L('gl')}
    s_mov_b32 s19, 4
    """)
    set_flag(a, 19)

def z_item(a, pfx):
    L = lambda n: f"{pfx}_{n}"
    common(a)
    a(f"""
    s_load_dwordx2 s[8:9], s[0:1], {KA['x']}
    s_load_dwordx2 s[36:37], s[0:1], {KA['out']}
    s_and_b32 s28, s17, 1
    s_lshl_b32 s40, s19, 1
    s_add_u32 s28, s28, s40
    s_lshr_b32 s29, s17, 1
    s_lshl_b32 s20, s29, 3
    s_mul_i32 s21, s16, {U_SEG}
    s_mul_i32 s40, s20, {UH}
    s_add_u32 s21, s21, s40
    s_lshl_b32 s40, s28, 11
    s_add_u32 s21, s21, s40
    s_add_u32 s21, s21, {U_OFF}
    s_mul_i32 s22, s16, {Y_SEG}
    s_mul_i32 s40, s20, {YH}
    s_add_u32 s22, s22, s40
    s_lshl_b32 s40, s28, 9
    s_add_u32 s22, s22, s40
    s_add_u32 s22, s22, {Y_OFF}
    s_mul_i32 s24, s16, {PP_SEG}
    s_mul_i32 s40, s20, {PPH}
    s_add_u32 s24, s24, s40
    s_add_u32 s24, s24, {PP_OFF}
    """)
    ACC = 0; ZB = 16
    for hd in range(8):
        b = ZB + 24 * hd
        a(f"v_mov_b32 v{b+10}, 0\nv_mov_b32 v{b+11}, 0\nv_mov_b32 v{b+22}, 0\nv_mov_b32 v{b+23}, 0")
        a(f"buffer_load_dwordx4 v[{b}:{b+3}], v254, s[12:15], s21 offen")
        a(f"buffer_load_dwordx4 v[{b+4}:{b+7}], v254, s[12:15], s21 offen offset:1024")
        a(f"buffer_load_dwordx2 v[{b+8}:{b+9}], v250, s[12:15], s22 offen")
        a(f"buffer_load_dwordx4 v[{b+12}:{b+15}], v254, s[12:15], s24 offen")
        a(f"buffer_load_dwordx4 v[{b+16}:{b+19}], v254, s[12:15], s24 offen offset:1024")
        a(f"buffer_load_dwordx2 v[{b+20}:{b+21}], v250, s[12:15], s24 offen offset:2048")
        a(f"s_add_u32 s21, s21, {UH}\ns_add_u32 s22, s22, {YH}\ns_add_u32 s24, s24, {PPH}")
    XB, GTB = 216, 218
    a(f"""
    s_waitcnt lgkmcnt(0)
    s_mov_b32 s10, {S*DM*2}
    s_mov_b32 s11, 0x00020000
    s_mov_b32 s38, {S*DM*2}
    s_mov_b32 s39, 0x00020000
    s_lshl_b32 s40, s16, 5
    v_add_u32 v243, s40, v252
    v_mul_u32_u24 v243, 1280, v243
    v_lshl_add_u32 v243, v253, 3, v243
    s_lshl_b32 s22, s28, 6
    s_lshl_b32 s40, s29, 4
    s_add_u32 s22, s22, s40
    s_mul_i32 s23, s16, {GT_SEG}
    s_lshl_b32 s40, s28, 11
    s_add_u32 s23, s23, s40
    s_lshr_b32 s40, s29, 1
    s_lshl_b32 s40, s40, 10
    s_add_u32 s23, s23, s40
    s_and_b32 s40, s29, 1
    s_lshl_b32 s40, s40, 3
    s_add_u32 s23, s23, s40
    s_add_u32 s23, s23, {GT_OFF}
    buffer_load_dwordx2 v[{XB}:{XB+1}], v243, s[8:11], s22 offen
    buffer_load_dwordx2 v[{GTB}:{GTB+1}], v254, s[12:15], s23 offen
    s_lshl_b32 s40, s17, 12
    v_add_u32 v245, s40, v254
    s_and_b32 s40, s17, 1
    s_lshl_b32 s40, s40, 12
    s_lshl_b32 s41, s29, 10
    s_add_u32 s40, s40, s41
    v_add_u32 v244, s40, v254
    """)
    for hd in range(8):
        b = ZB + 24 * hd
        a(f"s_waitcnt vmcnt({6*(7-hd)+2})")
        for q in range(3):
            c = '0' if (hd == 0 and q == 0) else f"v[{ACC}:{ACC+15}]"
            a(f"v_mfma_f32_32x32x16_bf16 v[{ACC}:{ACC+15}], v[{b+4*q}:{b+4*q+3}], v[{b+12+4*q}:{b+15+4*q}], {c}")
    a("s_nop 11")
    for q in range(4):
        a(f"ds_write_b128 v245, v[{ACC+4*q}:{ACC+4*q+3}] offset:{1024*q}")
    a("s_waitcnt lgkmcnt(0)\ns_barrier")
    R = 16; E = 40
    for k in range(4):
        a(f"ds_read_b128 v[{R+4*k}:{R+4*k+3}], v244 offset:{8192*k}")
    a(f"""
    s_waitcnt lgkmcnt(0) vmcnt(0)
    v_pk_add_f32 v[{R}:{R+1}], v[{R}:{R+1}], v[{R+4}:{R+5}]
    v_pk_add_f32 v[{R+2}:{R+3}], v[{R+2}:{R+3}], v[{R+6}:{R+7}]
    v_pk_add_f32 v[{R+8}:{R+9}], v[{R+8}:{R+9}], v[{R+12}:{R+13}]
    v_pk_add_f32 v[{R+10}:{R+11}], v[{R+10}:{R+11}], v[{R+14}:{R+15}]
    v_pk_add_f32 v[{R}:{R+1}], v[{R}:{R+1}], v[{R+8}:{R+9}]
    v_pk_add_f32 v[{R+2}:{R+3}], v[{R+2}:{R+3}], v[{R+10}:{R+11}]
    """)
    for i in range(2):
        s0, s1 = R + 2 * i, R + 2 * i + 1
        a(f"""
        v_cvt_pk_bf16_f32 v{E}, v{s0}, v{s1}
        v_lshlrev_b32 v{s0}, 16, v{E}
        v_and_b32 v{s1}, 0xffff0000, v{E}
        v_lshlrev_b32 v{E+1}, 16, v{GTB+i}
        v_and_b32 v{E+2}, 0xffff0000, v{GTB+i}
        v_mul_f32 v{s0}, v{s0}, v{E+1}
        v_mul_f32 v{s1}, v{s1}, v{E+2}
        v_cvt_pk_bf16_f32 v{E}, v{s0}, v{s1}
        v_lshlrev_b32 v{s0}, 16, v{E}
        v_and_b32 v{s1}, 0xffff0000, v{E}
        v_lshlrev_b32 v{E+1}, 16, v{XB+i}
        v_and_b32 v{E+2}, 0xffff0000, v{XB+i}
        v_add_f32 v{s0}, v{s0}, v{E+1}
        v_add_f32 v{s1}, v{s1}, v{E+2}
        v_cvt_pk_bf16_f32 v{E+4+i}, v{s0}, v{s1}
        """)
    a(f"buffer_store_dwordx2 v[{E+4}:{E+5}], v243, s[36:39], s22 offen")
```

```python
from asmlib import *
from layout import *
import math, struct
from k_ln import cwindow

def f32(x):
    return hex(struct.unpack('<I', struct.pack('<f', x))[0])

L_MEMX = 0
L_SX = 10240
L_PX = 10240
L_PM = 14336
L_ZM = 22528
L_Y = 26624
L_KM = 30720
L_B = 32768
NBL = 32
NBR = 80 - NBL
RP = 208
OOB = 0x7f000000
import os
NST = int(os.environ.get('REC_NST', NSEG))

STAMP = int(os.environ.get('REC_STAMP', -1))
def stamp(a, i):
    if STAMP < 0: return
    sk = a.uid('STMP')
    a(f"s_cmp_lg_u32 s27, {STAMP}\ns_cbranch_scc1 {sk}\ns_memtime s[98:99]\ns_waitcnt lgkmcnt(0)\ns_mov_b32 s{64+i}, s98")
    a.label(sk)

class R:
    def __init__(self, base): self.n = base
    def __call__(self, k=1, align=1):
        self.n = (self.n + align - 1) // align * align
        r = self.n; self.n += k
        assert self.n <= 250
        return r

def lane_fields(a):
    a("""
    v_and_b32 v250, 15, v255
    v_lshrrev_b32 v251, 4, v255
    v_and_b32 v252, 7, v255
    v_bfe_u32 v253, v255, 3, 1
    """)

def cphys(a, v, t):
    a(f"""
    v_lshrrev_b32 v{t}, 13, v{v}
    v_lshlrev_b32 v{t}, 13, v{t}
    v_add_u32 v{v}, v{v}, v{t}
    """)

def check_poison(a, regs, t):
    regs = list(regs)
    if len(regs) == 2:
        a(f"v_max_u32 v{t}, v{regs[0]}, v{regs[1]}")
    else:
        a(f"v_max3_u32 v{t}, v{regs[0]}, v{regs[1]}, v{regs[2]}")
        i = 3
        while i < len(regs):
            if i + 1 < len(regs):
                a(f"v_max3_u32 v{t}, v{t}, v{regs[i]}, v{regs[i+1]}"); i += 2
            else:
                a(f"v_max_u32 v{t}, v{t}, v{regs[i]}"); i += 1
    a(f"v_cmp_eq_u32 vcc, -1, v{t}")

def poll(a, pfx, loads, regs, t):
    lp = a.uid(pfx + '_poll'); dn = a.uid(pfx + '_pdone')
    a.label(lp)
    for ld in loads: a(ld)
    a(f"s_sub_u32 s46, s46, 1\ns_cbranch_scc1 {dn}_x")
    a("s_waitcnt vmcnt(0)")
    check_poison(a, regs, t)
    a(f"s_cbranch_vccnz {lp}")
    a(f"s_branch {dn}")
    a.label(dn + '_x')
    a("s_mov_b32 s46, 0\ns_waitcnt vmcnt(0)")
    a.label(dn)

def load_tile(a, kaoff, nbytes, sbase, raw, T):
    a(f"s_load_dwordx2 s[8:9], s[0:1], {kaoff}\ns_mov_b32 s10, {nbytes}\ns_mov_b32 s11, 0x00020000")
    a(f"""
    v_lshrrev_b32 v{T}, 1, v255
    v_mul_u32_u24 v{T}, 12288, v{T}
    v_and_b32 v{T+1}, 1, v255
    v_lshl_add_u32 v{T}, v{T+1}, 4, v{T}
    s_mov_b32 s40, s{sbase}
    s_waitcnt lgkmcnt(0)
    """)
    for n in range(20):
        a(f"buffer_load_dwordx4 v[{raw+4*n}:{raw+4*n+3}], v{T}, s[8:11], s40 offen")
        a(f"s_add_u32 s40, s40, {32*12288}")

def load_slice(a, kaoff, nbytes, sbase, pitch, nrows, raw, T):
    a(f"s_load_dwordx2 s[8:9], s[0:1], {kaoff}\ns_mov_b32 s10, {nbytes}\ns_mov_b32 s11, 0x00020000\ns_mov_b32 s40, {pitch}\ns_waitcnt lgkmcnt(0)")
    for n in range(nrows * 6 // 64):
        a(f"""
        v_add_u32 v{T}, {64*n}, v255
        v_mul_u32_u24 v{T+1}, 43691, v{T}
        v_lshrrev_b32 v{T+1}, 18, v{T+1}
        v_mul_u32_u24 v{T+2}, 6, v{T+1}
        v_sub_u32 v{T+2}, v{T}, v{T+2}
        v_mul_lo_u32 v{T+1}, v{T+1}, s40
        v_lshl_add_u32 v{T+1}, v{T+2}, 4, v{T+1}
        buffer_load_dwordx4 v[{raw+4*n}:{raw+4*n+3}], v{T+1}, s[8:11], s{sbase} offen
        """)


def slot_bases(a):
    a(f"""
    s_and_b32 s40, s27, 3
    s_add_u32 s41, s27, 2
    s_and_b32 s41, s41, 3
    s_mul_i32 s28, s40, {A_SLOT}
    s_add_u32 s28, s28, s47
    s_mul_i32 s29, s41, {A_SLOT}
    s_add_u32 s29, s29, s47
    s_mul_i32 s30, s40, {C_SLOT}
    s_add_u32 s30, s30, s24
    s_mul_i32 s31, s41, {C_SLOT}
    s_add_u32 s31, s31, s24
    s_mul_i32 s32, s40, {D_SLOT}
    s_add_u32 s32, s32, s48
    s_add_u32 s41, s27, 1
    s_and_b32 s41, s41, 3
    s_mul_i32 s33, s41, {D_SLOT}
    s_add_u32 s33, s33, s48
    s_add_u32 s41, s27, 3
    s_and_b32 s41, s41, 3
    s_mul_i32 s34, s41, {D_SLOT}
    s_add_u32 s34, s34, s48
    """)

def s3_setup(a, vCld, vDst, T):
    a(f"""
    v_lshrrev_b32 v{T}, 3, v255                 ; vgl
    v_mul_u32_u24 v{vCld}, 10240, v{T}
    s_lshl_b32 s40, s55, 9
    s_lshl_b32 s41, s23, 7
    s_add_u32 s41, s41, s40
    v_add_u32 v{vCld}, s41, v{vCld}
    v_lshl_add_u32 v{vCld}, v252, 4, v{vCld}
    """)
    cphys(a, vCld, T + 1)
    a(f"""
    v_lshrrev_b32 v{T}, 2, v252
    s_lshl_b32 s41, s23, 1
    v_add_u32 v{T}, s41, v{T}                   ; cq
    v_and_b32 v{T+1}, 3, v{T}
    v_lshlrev_b32 v{vDst}, 7, v{T+1}
    v_lshrrev_b32 v{T+1}, 2, v{T}
    v_lshl_add_u32 v{vDst}, v{T+1}, 3, v{vDst}
    v_and_b32 v{T+1}, 3, v255
    v_lshl_add_u32 v{vDst}, v{T+1}, 5, v{vDst}
    v_lshrrev_b32 v{T+1}, 5, v255
    v_lshl_add_u32 v{vDst}, v{T+1}, 4, v{vDst}
    v_bfe_u32 v{T+1}, v255, 4, 1
    v_lshl_add_u32 v{vDst}, v{T+1}, 2, v{vDst}
    v_add_u32 v{vDst}, s40, v{vDst}
    v_cmp_eq_u32 vcc, 0, v253
    s_nop 1
    v_cndmask_b32 v{vDst}, v242, v{vDst}, vcc
    """)

def s3_run(a, pfx, vCld, vDst, T):
    poll(a, pfx, [f"buffer_load_dwordx4 v[{T}:{T+3}], v{vCld}, s[12:15], s30 offen sc1"], range(T, T + 4), T + 4)
    V = T + 4
    for j in (0, 2, 1, 3):
        a(f"v_lshlrev_b32 v{V+2*j}, 16, v{T+j}")
        a(f"v_and_b32 v{V+2*j+1}, 0xffff0000, v{T+j}")
    for j in range(4):
        a(f"v_permlane32_swap_b32 v{V+j}, v{V+4+j}")
    a(f"v_pk_add_f32 v[{V}:{V+1}], v[{V}:{V+1}], v[{V+4}:{V+5}]")
    a(f"v_pk_add_f32 v[{V+2}:{V+3}], v[{V+2}:{V+3}], v[{V+6}:{V+7}]")
    a(f"""
    s_nop 1
    v_permlane16_swap_b32 v{V}, v{V+2}
    v_permlane16_swap_b32 v{V+1}, v{V+3}
    v_pk_add_f32 v[{V}:{V+1}], v[{V}:{V+1}], v[{V+2}:{V+3}]
    s_nop 1
    v_add_f32_dpp v{V}, v{V}, v{V} row_ror:8 row_mask:0xf bank_mask:0xf
    v_add_f32_dpp v{V+1}, v{V+1}, v{V+1} row_ror:8 row_mask:0xf bank_mask:0xf
    v_cvt_pk_bf16_f32 v{T}, v{V}, v{V+1}
    v_min_u32 v{T}, s49, v{T}
    buffer_store_dword v{T}, v{vDst}, s[12:15], s33 offen
    """)

CSLEEP = int(os.environ.get('REC_CSLEEP', 11))
CSLEEP0 = int(os.environ.get('REC_CSLEEP0', 4))
ASLEEP = int(os.environ.get('REC_ASLEEP', 6))
SSLEEP = int(os.environ.get('REC_SSLEEP', 3))
A_X2 = 1024
A_M = 1536
A_V = 2048
DSLEEP = int(os.environ.get('REC_DSLEEP', 16))
DUAL = int(os.environ.get('REC_DUAL', 1))
CS2 = int(os.environ.get('REC_CS2', 10))
YDELAY = int(os.environ.get('REC_YDELAY', 0))
NOU = int(os.environ.get('REC_NOU', 0))
NOST = int(os.environ.get('REC_NOST', 0))

def rec_body(a, pfx, fused=False):
    L = lambda n: f"{pfx}_{n}"
    lane_fields(a)
    cwindow(a, 24, 4)
    a(f"""
    s_mov_b32 s40, {PAR_OFF}
    s_load_dword s41, s[4:5], s40
    s_cmp_ge_u32 s16, 12
    s_cselect_b32 s19, 1, 0              ; vgl
    s_mul_i32 s40, s19, 12
    s_sub_u32 s20, s16, s40              ; m (0..11)
    s_mul_i32 s55, s19, 10
    s_add_u32 s55, s55, s20
    s_lshl_b32 s40, s18, 1
    s_add_u32 s19, s19, s40              ; vg
    s_mul_i32 s21, s20, 11
    s_lshr_b32 s21, s21, 5               ; hh = m/3
    s_mul_i32 s40, s21, 3
    s_sub_u32 s22, s20, s40              ; c = m%3
    s_and_b32 s23, s17, 3                ; kq
    s_lshl_b32 s25, s19, 2
    s_add_u32 s26, s25, s23              ; head2
    s_add_u32 s25, s25, s21              ; H1
    s_mul_i32 s47, s19, {A_VG}
    s_add_u32 s47, s47, {A_OFF}
    s_mul_i32 s48, s18, {D_X}
    s_add_u32 s48, s48, {D_OFF}
    s_mov_b32 s49, 0xfffffffe
    s_mov_b32 s46, 4000000
    s_waitcnt lgkmcnt(0)
    s_and_b32 s41, s41, 8192
    s_add_u32 s24, s24, s41
    s_lshl_b32 s56, s22, 2
    s_add_u32 s56, s56, s23
    s_mul_i32 s50, s25, 384
    s_lshl_b32 s40, s56, 5
    s_add_u32 s50, s50, s40
    s_mul_i32 s51, s17, 20480
    v_lshlrev_b32 v249, 4, v255
    v_add_u32 v248, s51, v249
    v_bfe_u32 v247, v255, 2, 2           ; r
    v_and_b32 v245, 3, v255
    v_lshl_add_u32 v246, v251, 2, v247   ; 4g + r
    v_lshlrev_b32 v246, 5, v246
    v_lshl_add_u32 v246, v245, 3, v246
    v_add_u32 v246, s51, v246
    v_lshl_add_u32 v244, v251, 3, v247   ; 8g + r
    v_lshlrev_b32 v244, 7, v244
    v_lshl_add_u32 v244, v245, 3, v244
    v_add_u32 v244, s51, v244
    v_lshlrev_b32 v243, 7, v251
    v_lshl_add_u32 v243, v252, 4, v243   ; g*128 + row*16
    v_mov_b32 v242, {OOB}
    s_mov_b32 s27, 0
    """)
    WB = DM * H * DH * 2
    T = 236
    inlds = lambda ks, t: ks >= 12
    regidx = {}; ldsidx = {}
    for ks in range(20):
        for t in range(4):
            if inlds(ks, t): ldsidx[(ks, t)] = len(ldsidx)
            else: regidx[(ks, t)] = len(regidx)
    assert len(ldsidx) == NBL and len(regidx) == NBR
    MBOX = 8 * 1024
    a(f"""
    s_mul_i32 s58, s23, {NBL*1024}
    s_add_u32 s58, s58, {L_B}
    s_lshl_b32 s51, s23, 13
    s_mov_b32 s76, s51
    s_add_u32 s77, s58, {20*1024}
    s_add_u32 s78, s58, {26*1024}
    s_mov_b32 s44, 0x00ff00ff
    s_mov_b32 s45, 0x00ff00ff
    s_cmp_ge_u32 s17, 4
    s_cbranch_scc1 {L('yw')}
    s_cmp_ge_u32 s20, 10
    s_cbranch_scc1 {L('qkw')}
    """)
    if os.environ.get("X_ST"): a("s_memtime s[98:99]\ns_waitcnt lgkmcnt(0)\ns_mov_b32 s64, s98")
    a(f"""
    s_load_dwordx2 s[8:9], s[0:1], {KA['wo']}
    s_mov_b32 s10, {WB}
    s_mov_b32 s11, 0x00020000
    s_mul_i32 s54, s26, {DH*DM*2}
    s_lshl_b32 s40, s20, 7
    s_add_u32 s54, s54, s40
    v_lshrrev_b32 v{T}, 3, v255
    v_mul_u32_u24 v{T}, 1280, v{T}
    v_lshl_add_u32 v{T}, v252, 4, v{T}
    s_waitcnt lgkmcnt(0)
    """)
    for n in range(24):
        a(f"buffer_load_dwordx4 v[{4*n}:{4*n+3}], v{T}, s[8:11], s54 offen")
        a(f"s_add_u32 s54, s54, {8*1280}")
    if os.environ.get("X_ST"): a("s_memtime s[98:99]\ns_waitcnt lgkmcnt(0)\ns_mov_b32 s65, s98")
    AB, BA, RB, HOLD = 96, 144, 240, 176
    a(f"""
    v_mul_u32_u24 v{T+1}, 384, v250
    v_xor_b32 v{T+2}, v251, v252
    v_lshl_add_u32 v{RB}, v{T+2}, 4, v{T+1}
    v_or_b32 v{T+2}, 4, v251
    v_xor_b32 v{T+2}, v{T+2}, v252
    v_lshl_add_u32 v{RB+1}, v{T+2}, 4, v{T+1}
    v_add_u32 v248, s58, v249
    v_lshl_add_u32 v244, v251, 3, v247
    v_lshlrev_b32 v244, 7, v244
    v_lshl_add_u32 v244, v245, 3, v244
    v_add_u32 v244, s58, v244
    s_waitcnt vmcnt(0)
    """)
    if os.environ.get("X_ST"): a("s_memtime s[98:99]\ns_waitcnt lgkmcnt(0)\ns_mov_b32 s66, s98")
    for half in range(2):
        for n in range(12):
            k = 12 * half + n
            a(f"ds_write_b128 v248, v[{4*k}:{4*k+3}] offset:{1024*n}")
        a("s_waitcnt lgkmcnt(0)")
        for e3 in range(3):
            for t in range(4):
                for hr in range(2):
                    rr = ((3 * half + e3) * 4 + t) * 4 + 2 * hr
                    a(f"ds_read_b64_tr_b16 v[{rr}:{rr+1}], v244 offset:{e3*4096+hr*512+t*32}")
        a("s_waitcnt lgkmcnt(0)")
    def chunk_read(buf):
        a("s_barrier")
        a(f"v_add_u32 v246, s76, v{RB}\nv_add_u32 v244, s76, v{RB+1}")
        a("s_mov_b32 s40, s76\ns_mov_b32 s76, s77\ns_mov_b32 s77, s78\ns_mov_b32 s78, s40")
        ab = AB + 24 * buf
        for es in range(6):
            a(f"ds_read_b128 v[{ab+4*es}:{ab+4*es+3}], v{(246, 244)[es&1]} offset:{128*(es>>1)}")
    def chunk_mfma(tt):
        if os.environ.get('X_NOMFMA'): return
        ab = AB + 24 * tt
        for es in range(6):
            for t in range(4):
                ac = BA + (tt * 4 + t) * 4; w = (es * 4 + t) * 4
                cc = '0' if es == 0 else f"v[{ac}:{ac+3}]"
                a(f"v_mfma_f32_16x16x32_bf16 v[{ac}:{ac+3}], v[{ab+4*es}:{ab+4*es+3}], v[{w}:{w+3}], {cc}")
    if os.environ.get("X_ST"): a("s_memtime s[98:99]\ns_waitcnt lgkmcnt(0)\ns_mov_b32 s67, s98")
    chunk_read(0)
    if os.environ.get("X_ST"): a("s_memtime s[98:99]\ns_waitcnt lgkmcnt(0)\ns_mov_b32 s68, s98")
    a("s_memtime s[80:81]")
    a("s_waitcnt lgkmcnt(0)\ns_mov_b32 s53, 0")
    a.label(L('bloop'))
    chunk_read(1)
    chunk_mfma(0)
    a(f"s_waitcnt lgkmcnt(0)\ns_cmp_eq_u32 s53, 19\ns_cbranch_scc1 {L('blast')}")
    chunk_read(0)
    a.label(L('blast'))
    chunk_mfma(1)
    a(f"""
    s_and_b32 s40, s53, 1
    s_lshl_b32 s40, s40, 12
    s_add_u32 s40, s40, {MBOX}
    s_sub_u32 s41, s53, 12
    s_lshl_b32 s41, s41, 12
    s_cmp_lt_u32 s53, 12
    s_cselect_b32 s40, s40, s41
    v_add_u32 v{RB+2 if False else 242}, s40, v248
    s_nop 3
    """)
    for t in range(4):
        o = 224 + 4 * t
        for t2 in range(2):
            ac = BA + (t2 * 4 + t) * 4
            a(f"v_cvt_pk_bf16_f32 v{o+2*t2}, v{ac}, v{ac+1}")
            a(f"v_cvt_pk_bf16_f32 v{o+2*t2+1}, v{ac+2}, v{ac+3}")
    a(f"s_cmp_ge_u32 s53, 17\ns_cbranch_scc1 {L('bhold')}")
    for t in range(4):
        a(f"ds_write_b128 v242, v[{224+4*t}:{227+4*t}] offset:{1024*t}")
    a(f"s_branch {L('bnext')}")
    a.label(L('bhold'))
    for h in range(3):
        a(f"s_cmp_lg_u32 s53, {17+h}\ns_cbranch_scc1 {L(f'bh{h}')}")
        for r in range(16): a(f"v_mov_b32 v{HOLD+16*h+r}, v{224+r}")
        a.label(L(f'bh{h}'))
    a.label(L('bnext'))
    a(f"s_waitcnt lgkmcnt(0)\ns_add_u32 s53, s53, 1\ns_cmp_lt_u32 s53, 20\ns_cbranch_scc1 {L('bloop')}")
    a(f"v_mov_b32 v242, {OOB}")
    for ks in range(17, 20):
        for t in range(4):
            o = HOLD + ((ks - 17) * 4 + t) * 4
            a(f"ds_write_b128 v248, v[{o}:{o+3}] offset:{1024*ldsidx[(ks,t)]}")
    a("s_waitcnt lgkmcnt(0)")

    a.label(L('qkw'))
    if os.environ.get("X_ST"): a("s_memtime s[98:99]\ns_waitcnt lgkmcnt(0)\ns_mov_b32 s69, s98")
    a(f"""
    v_lshl_add_u32 v246, v251, 2, v247           ; 4g + rr
    v_bfe_u32 v244, v246, 1, 2
    v_xor_b32 v244, s23, v244
    v_lshlrev_b32 v246, 7, v246
    v_lshl_add_u32 v246, v244, 5, v246
    v_lshl_add_u32 v246, v245, 3, v246
    s_barrier
    """)
    for kq in range(4):
        if kq < 3: a(f"s_cmp_lg_u32 s23, {kq}\ns_cbranch_scc1 {L(f'qk{kq+1}')}")
        for r in range(20):
            a("s_barrier")
            for k4 in range(2):
                ks = 2 * (r % 10) + k4
                p = (ks - 5 * kq) % 20
                for hr in range(2):
                    rg = 80 * (r // 10) + 4 * p + 2 * hr
                    a(f"ds_read_b64_tr_b16 v[{rg}:{rg+1}], v246 offset:{(r&3)*8192 + k4*4096 + hr*2048}")
            a("s_waitcnt lgkmcnt(0)")
        if kq < 3:
            a(f"s_branch {L('qkd')}")
            a.label(L(f'qk{kq+1}'))
    a.label(L('qkd'))
    if os.environ.get("X_ST"): a("s_memtime s[98:99]\ns_waitcnt lgkmcnt(0)\ns_mov_b32 s72, s98")
    NFB = 5
    MF, MO, FB, AC = 160, 172, 176 + 4, 200
    QF, KF = 192, 194
    SD, SR = 160, 172
    SC, SL = 160, 172
    PF = 192
    PXR, ZR, PMR, OA = 160, 176, 180, 184
    TT = 198
    UF = 208
    KX = 244
    al = R(224)
    vD, vD3, vCld, vDst, vK0, vSXw, vSst, vKM, vQ1, vQ2, vQ3, vAx, vA2, vAm, vU, vCst, vPMw = [al() for _ in range(17)]
    T = 160
    a(f"""
    s_mul_i32 s40, s23, 2560
    v_add_u32 v{vD3}, s40, v243
    v_lshl_add_u32 v{vD}, v253, 9, v{vD3}
    s_lshl_b32 s41, s56, 10
    v_lshl_add_u32 v{T}, v253, 4, v252
    v_lshlrev_b32 v{vK0}, 4, v{T}
    v_and_b32 v{T+1}, 1, v251
    v_lshrrev_b32 v{T+2}, 1, v251
    v_lshl_add_u32 v{vK0}, v{T+1}, 9, v{vK0}
    v_lshl_add_u32 v{vK0}, v{T+2}, 3, v{vK0}
    v_add_u32 v{vK0}, s41, v{vK0}
    s_lshl_b32 s41, s23, 8
    s_add_u32 s41, s41, {L_KM}
    v_lshlrev_b32 v{vKM}, 7, v{T+1}
    v_lshl_add_u32 v{vKM}, v252, 4, v{vKM}
    v_lshl_add_u32 v{vKM}, v{T+2}, 3, v{vKM}
    v_add_u32 v{vKM}, s41, v{vKM}
    v_cmp_eq_u32 vcc, 0, v253
    s_lshl_b32 s40, s17, 10
    v_add_u32 v{vSXw}, s40, v249
    s_mul_i32 s40, s17, 3072
    v_add_u32 v248, s40, v249
    s_lshl_b32 s40, s17, 2
    v_add_u32 v{vPMw}, s40, v249
    s_mul_i32 s40, s21, {A_HEAD}
    s_cmp_ge_u32 s17, 2
    s_cbranch_scc1 {L('sst2')}
    v_lshl_add_u32 v{vSst}, v251, 4, v252
    s_lshl_b32 s41, s17, 3
    v_add_u32 v{vSst}, s41, v{vSst}
    s_cmp_eq_u32 s22, 2
    s_cbranch_scc1 {L('sstc2')}
    s_lshl_b32 s41, s22, 3
    s_add_u32 s40, s40, s41
    v_lshlrev_b32 v{vSst}, 4, v{vSst}
    s_branch {L('sstc')}
    """)
    a.label(L('sstc2'))
    a(f"s_add_u32 s40, s40, {A_X2}\nv_lshlrev_b32 v{vSst}, 3, v{vSst}")
    a.label(L('sstc'))
    a(f"""
    v_add_u32 v{vSst}, s40, v{vSst}
    v_cndmask_b32 v{vSst}, v242, v{vSst}, vcc
    s_branch {L('sstd')}
    """)
    a.label(L('sst2'))
    a(f"""
    s_lshl_b32 s41, s22, 2
    s_add_u32 s40, s40, s41
    s_add_u32 s40, s40, {A_M}
    v_lshlrev_b32 v{vSst}, 4, v252
    v_lshl_add_u32 v{vSst}, v251, 8, v{vSst}
    v_add_u32 v{vSst}, s40, v{vSst}
    v_cndmask_b32 v{vSst}, v242, v{vSst}, vcc
    v_cmp_gt_u32 vcc, 2, v251
    s_nop 1
    v_cndmask_b32 v{vSst}, v242, v{vSst}, vcc
    """)
    a.label(L('sstd'))
    for qq, vq in ((1, vQ1), (2, vQ2), (3, vQ3)):
        a(f"s_add_u32 s40, s23, {qq}\ns_and_b32 s40, s40, 3\ns_mul_i32 s40, s40, 2560\ns_add_u32 s40, s40, {L_MEMX}\nv_add_u32 v{vq}, s40, v243")
    cs = DH ** -0.5 * math.log2(math.e)
    a(f"""
    s_mul_i32 s40, s23, {A_HEAD}
    v_add_u32 v{vAx}, s40, v249
    v_lshlrev_b32 v{vA2}, 3, v255
    v_add_u32 v{vA2}, s40, v{vA2}
    v_add_u32 v{vAm}, s40, v243
    v_lshlrev_b32 v{vU}, 9, v251
    v_lshl_add_u32 v{vU}, v250, 4, v{vU}
    s_lshl_b32 s36, s19, 2
    s_mul_i32 s36, s36, {UH}
    s_add_u32 s36, s36, {U_OFF}
    s_min_u32 s40, s20, 9
    s_lshl_b32 s40, s40, 12
    s_add_u32 s36, s36, s40
    s_lshr_b32 s40, s23, 1
    s_lshl_b32 s40, s40, 11
    s_add_u32 s36, s36, s40
    s_and_b32 s40, s23, 1
    s_lshl_b32 s40, s40, 8
    s_add_u32 s36, s36, s40
    s_mul_i32 s40, s19, 10240
    s_lshl_b32 s41, s20, 10
    s_add_u32 s40, s40, s41
    s_lshl_b32 s41, s23, 8
    s_add_u32 s40, s40, s41
    v_lshlrev_b32 v{vCst}, 6, v251
    v_lshl_add_u32 v{vCst}, v252, 3, v{vCst}
    v_add_u32 v{vCst}, s40, v{vCst}
    v_lshrrev_b32 v{T}, 13, v{vCst}
    v_lshlrev_b32 v{T}, 13, v{T}
    v_add_u32 v{vCst}, v{vCst}, v{T}
    v_cmp_eq_u32 vcc, 0, v253
    s_nop 1
    v_cndmask_b32 v{vCst}, v242, v{vCst}, vcc
    s_mov_b32 s53, {f32(cs)}
    """)
    s3_setup(a, vCld, vDst, T)
    if os.environ.get("X_ST"): a("s_memtime s[98:99]\ns_waitcnt lgkmcnt(0)\ns_mov_b32 s73, s98")
    a(f"""
    s_mul_i32 s35, s25, {PH}
    s_add_u32 s35, s35, {K_OFF}
    s_memtime s[88:89]
    s_barrier
    s_memtime s[96:97]
    s_waitcnt lgkmcnt(0)
    s_cmp_eq_u32 s17, 1
    s_cselect_b32 s88, s80, s88
    s_waitcnt lgkmcnt(0)
    s_setprio 3
    """)
    a.label(L('loopA'))
    slot_bases(a)
    stamp(a, 0)
    poll(a, pfx, [f"buffer_load_dwordx4 v[{MF}:{MF+3}], v{vD}, s[12:15], s32 offen sc1",
                  f"buffer_load_dwordx4 v[{MF+4}:{MF+7}], v{vD}, s[12:15], s32 offen offset:1024 sc1",
                  f"buffer_load_dwordx4 v[{MF+8}:{MF+11}], v{vD3}, s[12:15], s32 offen offset:2048 sc1"],
         range(MF, MF + 12), TT)
    stamp(a, 1)
    def mm(p, f):
        for ti, wb in enumerate((0, 80)):
            c = '0' if p == 0 else f"v[{AC+4*ti}:{AC+4*ti+3}]"
            a(f"v_mfma_f32_16x16x32_bf16 v[{AC+4*ti}:{AC+4*ti+3}], v[{wb+4*p}:{wb+4*p+3}], v[{f}:{f+3}], {c}")
    def rd(p):
        nb = FB + 4 * ((p - 5) % NFB)
        a(f"ds_read_b128 v[{nb}:{nb+3}], v{(vQ1, vQ2, vQ3)[p//5-1]} offset:{512*(p%5)}")
    a(f"""
    ds_write_b128 v{vD}, v[{MF}:{MF+3}] offset:{L_MEMX}
    ds_write_b128 v{vD}, v[{MF+4}:{MF+7}] offset:{L_MEMX+1024}
    ds_write_b128 v{vD3}, v[{MF+8}:{MF+11}] offset:{L_MEMX+2048}
    """)
    mm(0, MF)
    for j in range(4): a(f"v_mov_b32_dpp v{MO+j}, v{MF+j} row_ror:8 row_mask:0xf bank_mask:0xf")
    mm(2, MF + 4)
    for j in range(4, 8): a(f"v_mov_b32_dpp v{MO+j}, v{MF+j} row_ror:8 row_mask:0xf bank_mask:0xf")
    a("s_waitcnt lgkmcnt(0)\ns_barrier")
    stamp(a, 2)
    for p in range(5, 5 + NFB - 1): rd(p)
    mm(4, MF + 8); mm(1, MO); mm(3, MO + 4)
    late = [f"buffer_load_dwordx2 v[{KX}:{KX+1}], v{vK0}, s[12:15], s35 offen",
            f"buffer_load_dwordx2 v[{KX+2}:{KX+3}], v{vK0}, s[12:15], s35 offen offset:128",
            f"s_add_u32 s35, s35, {0 if NOU else P_SEG}"]
    for hd in range(4):
        late.append(f"s_add_u32 s40, s36, {hd*UH}\nbuffer_load_dwordx4 v[{UF+4*hd}:{UF+4*hd+3}], v{vU}, s[12:15], s40 offen")
    late.append(f"s_add_u32 s36, s36, {0 if NOU else U_SEG}")
    for p in range(5, 20):
        a(f"s_waitcnt lgkmcnt({min(NFB-2, 19-p)})")
        mm(p, FB + 4 * ((p - 5) % NFB))
        if p + NFB - 1 < 20: rd(p + NFB - 1)
        if late: a(late.pop(0))
    stamp(a, 3)
    a(f"""
    s_nop 6
    v_cvt_pk_bf16_f32 v{QF}, v{AC}, v{AC+1}
    v_cvt_pk_bf16_f32 v{QF+1}, v{AC+2}, v{AC+3}
    v_cvt_pk_bf16_f32 v{KF}, v{AC+4}, v{AC+5}
    v_cvt_pk_bf16_f32 v{KF+1}, v{AC+6}, v{AC+7}
    s_waitcnt vmcnt(4)
    v_mfma_f32_16x16x16_bf16 v[{SD}:{SD+3}], v[{KX}:{KX+1}], v[{QF}:{QF+1}], 0
    v_mfma_f32_16x16x16_bf16 v[{SD+4}:{SD+7}], v[{KX+2}:{KX+3}], v[{QF}:{QF+1}], 0
    v_mfma_f32_16x16x16_bf16 v[{SD+8}:{SD+11}], v[{KF}:{KF+1}], v[{QF}:{QF+1}], 0
    s_nop 5
    ds_write_b128 v248, v[{SD}:{SD+3}] offset:{L_SX}
    ds_write_b128 v248, v[{SD+4}:{SD+7}] offset:{L_SX+1024}
    ds_write_b128 v248, v[{SD+8}:{SD+11}] offset:{L_SX+2048}
    s_waitcnt lgkmcnt(0)
    s_barrier
    """)
    stamp(a, 4)
    a(f"""
    s_cmp_eq_u32 s17, 3
    s_cbranch_scc1 {L('std')}
    ds_read_b128 v[{SD}:{SD+3}], v{vSXw} offset:{L_SX}
    ds_read_b128 v[{SD+4}:{SD+7}], v{vSXw} offset:{L_SX+3072}
    ds_read_b128 v[{SR}:{SR+3}], v{vSXw} offset:{L_SX+6144}
    ds_read_b128 v[{SR+4}:{SR+7}], v{vSXw} offset:{L_SX+9216}
    s_waitcnt lgkmcnt(2)
    v_add_f32 v{SD}, v{SD}, v{SD+4}
    v_add_f32 v{SD+1}, v{SD+1}, v{SD+5}
    v_add_f32 v{SD+2}, v{SD+2}, v{SD+6}
    v_add_f32 v{SD+3}, v{SD+3}, v{SD+7}
    s_waitcnt lgkmcnt(0)
    v_add_f32 v{SR}, v{SR}, v{SR+4}
    v_add_f32 v{SR+1}, v{SR+1}, v{SR+5}
    v_add_f32 v{SR+2}, v{SR+2}, v{SR+6}
    v_add_f32 v{SR+3}, v{SR+3}, v{SR+7}
    v_add_f32 v{SD}, v{SD}, v{SR}
    v_add_f32 v{SD+1}, v{SD+1}, v{SR+1}
    v_add_f32 v{SD+2}, v{SD+2}, v{SR+2}
    v_add_f32 v{SD+3}, v{SD+3}, v{SR+3}
    v_cvt_pk_bf16_f32 v{SR}, v{SD}, v{SD+1}
    v_cvt_pk_bf16_f32 v{SR+1}, v{SD+2}, v{SD+3}
    v_min_u32 v{SR}, s49, v{SR}
    v_min_u32 v{SR+1}, s49, v{SR+1}
    s_cmp_eq_u32 s17, 2
    s_cbranch_scc1 {L('st2')}
    buffer_store_dwordx2 v[{SR}:{SR+1}], v{vSst}, s[12:15], s28 offen
    s_branch {L('std')}
    """)
    a.label(L('st2'))
    a(f"""
    buffer_store_dword v{SR}, v{vSst}, s[12:15], s28 offen
    buffer_store_dword v{SR+1}, v{vSst}, s[12:15], s28 offen offset:128
    """)
    a.label(L('std'))
    stamp(a, 5)
    a(f"s_mov_b64 exec, s[44:45]\nds_write_b64 v{vKM}, v[{KF}:{KF+1}]\ns_mov_b64 exec, -1")
    a(f"s_cmp_ge_u32 s20, 10\ns_cbranch_scc1 {L('endA')}")
    if SSLEEP: a(f"s_sleep {SSLEEP}")
    poll(a, pfx, [f"buffer_load_dwordx4 v[{SC}:{SC+3}], v{vAx}, s[12:15], s28 offen sc1",
                  f"buffer_load_dwordx2 v[{SC+4}:{SC+5}], v{vA2}, s[12:15], s28 offen offset:{A_X2} sc1",
                  f"buffer_load_dwordx3 v[{SC+8}:{SC+10}], v{vAm}, s[12:15], s28 offen offset:{A_M} sc1"],
         list(range(SC, SC + 6)) + list(range(SC + 8, SC + 11)), TT)
    stamp(a, 7)
    src = list(range(SC, SC + 6)) + list(range(SC + 8, SC + 11))
    for j, sreg in enumerate(src):
        a(f"v_lshlrev_b32 v{SL+2*j}, 16, v{sreg}")
        a(f"v_and_b32 v{SL+2*j+1}, 0xffff0000, v{sreg}")
    pk = lambda d, x, y: a(f"v_add_f32 v{d}, v{x}, v{y}\nv_add_f32 v{d+1}, v{x+1}, v{y+1}")
    pk(SL, SL, SL + 4); pk(SL + 2, SL + 2, SL + 6); pk(SL + 4, SL + 12, SL + 14)
    pk(SL, SL, SL + 8); pk(SL + 2, SL + 2, SL + 10); pk(SL + 4, SL + 4, SL + 16)
    mx, t2, sm = TT, TT + 1, TT + 2
    a(f"""
    v_max3_f32 v{mx}, v{SL}, v{SL+1}, v{SL+2}
    v_max3_f32 v{t2}, v{SL+3}, v{SL+4}, v{SL+5}
    v_max_f32 v{mx}, v{mx}, v{t2}
    s_nop 1
    v_max_f32_dpp v{mx}, v{mx}, v{mx} row_ror:8 row_mask:0xf bank_mask:0xf
    v_mov_b32 v{t2}, v{mx}
    s_nop 1
    v_permlane32_swap_b32 v{mx}, v{t2}
    v_max_f32 v{mx}, v{mx}, v{t2}
    v_mov_b32 v{t2}, v{mx}
    s_nop 1
    v_permlane16_swap_b32 v{mx}, v{t2}
    v_max_f32 v{mx}, v{mx}, v{t2}
    v_mul_f32 v{mx}, s53, v{mx}
    """)
    for j in range(6):
        a(f"v_fma_f32 v{SL+j}, v{SL+j}, s53, -v{mx}")
    for j in range(6):
        a(f"v_exp_f32 v{SL+j}, v{SL+j}")
    a(f"""
    v_add_f32 v{sm}, v{SL}, v{SL+2}
    v_add_f32 v{sm+1}, v{SL+1}, v{SL+3}
    v_add_f32 v{t2}, v{SL+4}, v{SL+5}
    v_add_f32 v{sm}, v{sm}, v{sm+1}
    v_fmac_f32 v{sm}, 0.5, v{t2}
    s_nop 1
    v_add_f32_dpp v{sm}, v{sm}, v{sm} row_ror:8 row_mask:0xf bank_mask:0xf
    v_mov_b32 v{t2}, v{sm}
    s_nop 1
    v_permlane32_swap_b32 v{sm}, v{t2}
    v_add_f32 v{sm}, v{sm}, v{t2}
    v_mov_b32 v{t2}, v{sm}
    s_nop 1
    v_permlane16_swap_b32 v{sm}, v{t2}
    v_add_f32 v{sm}, v{sm}, v{t2}
    v_rcp_f32 v{sm}, v{sm}
    s_nop 0
    v_mul_f32 v{SL}, v{SL}, v{sm}
    v_mul_f32 v{SL+1}, v{SL+1}, v{sm}
    v_mul_f32 v{SL+2}, v{SL+2}, v{sm}
    v_mul_f32 v{SL+3}, v{SL+3}, v{sm}
    v_mul_f32 v{SL+4}, v{SL+4}, v{sm}
    v_mul_f32 v{SL+5}, v{SL+5}, v{sm}
    v_cvt_pk_bf16_f32 v{PF}, v{SL}, v{SL+1}
    v_cvt_pk_bf16_f32 v{PF+1}, v{SL+2}, v{SL+3}
    v_cvt_pk_bf16_f32 v{PF+4}, v{SL+4}, v{SL+5}
    v_mov_b32_dpp v{PF+2}, v{PF} row_ror:8 row_mask:0xf bank_mask:0xf
    v_mov_b32_dpp v{PF+3}, v{PF+1} row_ror:8 row_mask:0xf bank_mask:0xf
    ds_write_b32 v{vPMw}, v{PF+4} offset:{L_PM}
    ds_write_b128 v{vSXw}, v[{PF}:{PF+3}] offset:{L_PX}
    """)
    stamp(a, 8)
    a("s_waitcnt lgkmcnt(0)\ns_barrier")
    stamp(a, 9)
    for hd in range(4):
        a(f"ds_read_b128 v[{PXR+4*hd}:{PXR+4*hd+3}], v249 offset:{L_PX+1024*hd}")
    a(f"ds_read_b128 v[{PMR}:{PMR+3}], v249 offset:{L_PM}")
    a(f"ds_read_b128 v[{ZR}:{ZR+3}], v{vSXw} offset:{L_ZM}")
    for hd in range(4):
        a(f"s_waitcnt lgkmcnt({5-hd})")
        c = '0' if hd == 0 else f"v[{OA}:{OA+3}]"
        a(f"v_mfma_f32_16x16x32_bf16 v[{OA}:{OA+3}], v[{UF+4*hd}:{UF+4*hd+3}], v[{PXR+4*hd}:{PXR+4*hd+3}], {c}")
    a(f"""
    s_waitcnt lgkmcnt(0)
    v_mfma_f32_16x16x32_bf16 v[{OA}:{OA+3}], v[{ZR}:{ZR+3}], v[{PMR}:{PMR+3}], v[{OA}:{OA+3}]
    s_nop 7
    v_cvt_pk_bf16_f32 v{TT}, v{OA}, v{OA+1}
    v_cvt_pk_bf16_f32 v{TT+1}, v{OA+2}, v{OA+3}
    v_min_u32 v{TT}, s49, v{TT}
    v_min_u32 v{TT+1}, s49, v{TT+1}
    buffer_store_dwordx2 v[{TT}:{TT+1}], v{vCst}, s[12:15], s30 offen sc1
    """)
    stamp(a, 10)
    if DUAL:
        a(f"s_sleep {CS2}")
        a(f"s_cmp_eq_u32 s27, {NST-1}\ns_cbranch_scc1 {L('endA')}")
        s3_run(a, pfx, vCld, vDst, 160)
    else:
        a(f"s_sleep {DSLEEP}")
    a.label(L('endA'))
    stamp(a, 11)
    a(f"""
    s_add_u32 s27, s27, 1
    s_cmp_lt_u32 s27, {NST}
    s_cbranch_scc1 {L('loopA')}
    s_waitcnt lgkmcnt(0)
    s_barrier
    """)
    if fused: a("s_barrier")
    a(f"s_branch {L('done')}")

    a.label(L('yw'))
    a(f"""
    s_cmp_ge_u32 s20, 10
    s_cbranch_scc1 {L('norecv')}
    v_add_u32 v248, s58, v249
    s_load_dwordx2 s[8:9], s[0:1], {KA['wv']}
    s_mov_b32 s10, {WB}
    s_mov_b32 s11, 0x00020000
    s_mul_i32 s52, s26, 384
    """)
    DV = 200; T = 236
    for n in range(6):
        a(f"""
        v_add_u32 v{T+1}, {64*n}, v255
        v_mul_u32_u24 v{T+2}, 2731, v{T+1}
        v_lshrrev_b32 v{T+2}, 16, v{T+2}
        v_mul_u32_u24 v{T+3}, 24, v{T+2}
        v_sub_u32 v{T+3}, v{T+1}, v{T+3}
        v_and_b32 v{T+4}, 7, v{T+2}
        v_xor_b32 v{T+3}, v{T+3}, v{T+4}
        v_mul_u32_u24 v{T+2}, 12288, v{T+2}
        v_lshl_add_u32 v{DV+n}, v{T+3}, 4, v{T+2}
        """)
    a("s_waitcnt lgkmcnt(0)")
    def bdma(c):
        if os.environ.get('X_NODMA'): return
        a(f"s_mov_b32 s43, s{76+c%3}")
        for n in range(6):
            a(f"s_mov_b32 m0, s43\ns_add_u32 s43, s43, 1024")
            a(f"buffer_load_dwordx4 v{DV+n}, s[8:11], s52 offen lds")
        a(f"s_add_u32 s52, s52, {16*12288}")
    bdma(0); bdma(1)
    for c in range(40):
        a(f"s_waitcnt vmcnt({6 if c < 39 else 0})\ns_barrier")
        if c + 2 < 40: bdma(c + 2)
        if c >= 3 and c % 2 == 1 and (c - 3) // 2 < 12:
            ks = (c - 3) // 2
            for t in range(4):
                if (ks, t) in regidx:
                    f = regidx[(ks, t)]
                    a(f"ds_read_b128 v[{4*f}:{4*f+3}], v248 offset:{MBOX + (ks&1)*4096 + 1024*t}")
            a("s_waitcnt lgkmcnt(0)")
    a.label(L('norecv'))
    a("s_memtime s[88:89]\ns_waitcnt lgkmcnt(0)")
    a(f"""
    s_load_dwordx2 s[8:9], s[0:1], {KA['wq']}
    s_load_dwordx2 s[60:61], s[0:1], {KA['wk']}
    s_mov_b32 s10, {WB}
    s_mov_b32 s11, 0x00020000
    s_mov_b32 s62, {WB}
    s_mov_b32 s63, 0x00020000
    v_lshrrev_b32 v200, 3, v255
    v_bfe_u32 v201, v200, 1, 2
    v_lshlrev_b32 v201, 1, v201
    v_xor_b32 v201, v201, v252
    v_mul_u32_u24 v200, 12288, v200
    v_lshl_add_u32 v200, v201, 4, v200
    s_mul_i32 s54, s25, 384
    s_lshl_b32 s40, s22, 7
    s_add_u32 s54, s54, s40
    s_mul_i32 s40, s23, {16*12288}
    s_add_u32 s54, s54, s40
    s_lshl_b32 s57, s23, 11
    s_waitcnt lgkmcnt(0)
    s_barrier
    """)
    def qdma(r):
        sr = 8 if r < 10 else 60
        a(f"s_add_u32 s52, s54, {(r%10)*64*12288}\ns_add_u32 s43, s57, {(r&3)*8192}")
        for n in range(2):
            a(f"s_mov_b32 m0, s43\ns_add_u32 s43, s43, 1024")
            a(f"buffer_load_dwordx4 v200, s[{sr}:{sr+3}], s52 offen lds")
            a(f"s_add_u32 s52, s52, {8*12288}")
    qdma(0); qdma(1); qdma(2)
    for r in range(20):
        a(f"s_waitcnt vmcnt({2*min(2, 19-r)})\ns_barrier")
        if r + 3 < 20: qdma(r + 3)
    YFB = 4 * NBR
    YWB = YFB + 16
    YA = YWB + 16
    vZw, vYw, vCld, vDst, vBl = 244, 245, 246, 247, 248
    vRd, vYr, vMem = 250, 251, 252
    T = YFB
    a(f"""
    v_lshlrev_b32 v{vZw}, 9, v251
    v_lshl_add_u32 v{vZw}, v250, 4, v{vZw}
    s_lshl_b32 s40, s23, 2
    s_add_u32 s40, s40, {L_ZM}
    v_add_u32 v{vZw}, s40, v{vZw}
    v_lshlrev_b32 v{vYw}, 8, v251
    v_lshl_add_u32 v{vYw}, v250, 3, v{vYw}
    s_lshl_b32 s40, s23, 10
    s_add_u32 s40, s40, {L_Y}
    v_add_u32 v{vYw}, s40, v{vYw}
    s_mov_b32 s79, s40
    v_add_u32 v{vBl}, s58, v249
    s_mul_i32 s40, s21, {A_HEAD}
    s_lshl_b32 s61, s22, 3
    s_cmp_eq_u32 s22, 2
    s_cselect_b32 s61, {A_X2}, s61
    s_cselect_b32 s62, 3, 4
    s_add_u32 s61, s61, s40
    s_lshl_b32 s63, s22, 2
    s_add_u32 s63, s63, s40
    s_add_u32 s63, s63, {A_M}
    s_lshl_b32 s52, s55, 9
    s_mul_i32 s54, s19, 10240
    s_lshl_b32 s42, s20, 10
    s_add_u32 s54, s54, s42
    s_lshr_b32 s42, s54, 13
    s_lshl_b32 s42, s42, 13
    s_add_u32 s54, s54, s42
    """)
    s3_setup(a, vCld, vDst, T)
    a(f"""
    v_mov_b32 v{vMem}, v243
    v_add_u32 v{vYr}, s79, v249
    v_and_b32 v{vRd}, 31, v255
    v_lshlrev_b32 v{vRd}, 2, v{vRd}
    s_lshl_b32 s40, s18, 7
    s_add_u32 s59, s40, {PROG_OFF}
    s_add_u32 s40, s40, {RDY_OFF}
    v_add_u32 v{vRd}, s40, v{vRd}
    s_mul_i32 s60, s18, 24
    s_add_u32 s60, s60, s16
    s_lshl_b32 s60, s60, 6
    s_add_u32 s60, s60, {PR_OFF}
    s_mul_i32 s38, s26, {YH}
    s_add_u32 s38, s38, {Y_OFF - Y_SEG}
    s_lshl_b32 s40, s20, 10
    s_add_u32 s38, s38, s40
    s_mul_i32 s37, s25, {KMH}
    s_add_u32 s37, s37, {KM_OFF - KM_SEG}
    s_lshl_b32 s40, s22, 10
    s_add_u32 s37, s37, s40
    """)
    TT = YA
    def ready(need_expr):
        if not fused: return
        lp = a.uid(pfx + '_rlp'); ok = a.uid(pfx + '_rok')
        a(need_expr)
        a.label(lp)
        a(f"""
        buffer_load_dword v{TT}, v{vRd}, s[12:15], 0 offen sc1
        s_sub_u32 s46, s46, 1
        s_cbranch_scc1 {ok}_x
        s_waitcnt vmcnt(0)
        v_cmp_gt_u32 vcc, s57, v{TT}
        s_cbranch_vccz {ok}
        s_sleep 2
        s_branch {lp}
        """)
        a.label(ok + '_x')
        a("s_mov_b32 s46, 0")
        a.label(ok)
    def flush(FT):
        sk = a.uid(pfx + '_fl')
        a(f"ds_read_b128 v[{FT}:{FT+3}], v{vYr}")
        a(f"ds_read_b128 v[{FT+4}:{FT+7}], v249 offset:{L_KM}")
        a(f"s_waitcnt lgkmcnt(0)\ns_cmp_ge_u32 s20, 10\ns_cbranch_scc1 {sk}_a")
        a(f"buffer_store_dwordx4 v[{FT}:{FT+3}], v249, s[12:15], s38 offen sc1")
        a.label(sk + '_a')
        a(f"s_cmp_lg_u32 s17, 4\ns_cbranch_scc1 {sk}_b")
        a(f"buffer_store_dwordx4 v[{FT+4}:{FT+7}], v249, s[12:15], s37 offen sc1")
        a.label(sk + '_b')
        a(f"s_add_u32 s38, s38, {Y_SEG}\ns_add_u32 s37, s37, {KM_SEG}")
    def word_store(val_s, addr_s, t):
        a(f"v_mov_b32 v{t}, s{val_s}\nv_mov_b32 v{t+1}, s{addr_s}\nbuffer_store_dword v{t}, v{t+1}, s[12:15], 0 offen sc1")
    ready("s_mov_b32 s57, 1")
    a("s_barrier\ns_memtime s[96:97]\ns_waitcnt lgkmcnt(0)\ns_setprio 1")
    a.label(L('loopS'))
    slot_bases(a)
    stamp(a, 0)
    a("s_barrier")
    stamp(a, 2)
    flush(YA)
    if fused:
        a(f"s_cmp_lg_u32 s17, 7\ns_cbranch_scc1 {L('nopr')}\ns_cmp_lt_u32 s27, 2\ns_cbranch_scc1 {L('nopr')}\ns_sub_u32 s40, s27, 1")
        word_store(40, 60, YA + 8)
        a.label(L('nopr'))
    a(f"s_cmp_lg_u32 s17, 6\ns_cbranch_scc1 {L('nopois')}")
    PO = YA + 12
    for j in range(4): a(f"v_mov_b32 v{PO+j}, -1")
    a(f"""
    v_lshlrev_b32 v{YA+8}, s62, v255
    v_and_b32 v{YA+9}, 0x1ff, v249
    s_add_u32 s40, s29, s61
    s_add_u32 s41, s29, s63
    buffer_store_dwordx2 v[{PO}:{PO+1}], v{YA+8}, s[12:15], s40 offen
    buffer_store_dword v{PO}, v{YA+9}, s[12:15], s41 offen
    s_cmp_ge_u32 s20, 10
    s_cbranch_scc1 {L('nopois')}
    s_add_u32 s40, s31, s54
    s_add_u32 s41, s34, s52
    buffer_store_dwordx4 v[{PO}:{PO+3}], v249, s[12:15], s40 offen sc1
    buffer_store_dwordx4 v[{PO}:{PO+3}], v{YA+9}, s[12:15], s41 offen
    """)
    a.label(L('nopois'))
    a(f"s_cmp_lg_u32 s17, 5\ns_cbranch_scc1 {L('noprog')}\ns_cmp_lg_u32 s16, 11\ns_cbranch_scc1 {L('noprog')}\ns_add_u32 s40, s27, 1")
    word_store(40, 59, YA + 8)
    if os.environ.get('MAIN_DUMP'):
        a(f"""
        s_memtime s[98:99]
        s_memrealtime s[100:101]
        s_waitcnt lgkmcnt(0)
        v_mov_b32 v{YA+2}, s98
        v_mov_b32 v{YA+3}, s100
        s_lshl_b32 s40, s18, 6
        s_add_u32 s40, s40, s27
        s_lshl_b32 s40, s40, 3
        s_add_u32 s40, s40, {WS_END+140000//16*16}
        v_mov_b32 v{YA+1}, 0
        buffer_store_dwordx2 v[{YA+2}:{YA+3}], v{YA+1}, s[12:15], s40 offen
        """)
    a.label(L('noprog'))
    a(f"s_cmp_lt_u32 s20, 10\ns_cbranch_scc1 {L('yjob')}\ns_barrier\ns_branch {L('endS')}")
    a.label(L('yjob'))
    B1AT = int(os.environ.get('REC_B1S', 4))
    issued = []
    def lds(tag, ins): a(ins); issued.append(tag)
    def need(tag):
        k = len(issued) - 1 - issued.index(tag)
        a(f"s_waitcnt lgkmcnt({min(k, 15)})")
    pairs_ = [(0, 12), (1, 13), (2, 14), (3, 15), (4, 16), (5, 17), (6, 18), (7, 19), (8, 9), (10, 11)]
    seq = []
    for (ka, kb) in pairs_:
        for t in range(4): seq += [(ka, t), (kb, t)]
    kseq = [k for p in pairs_ for k in p]
    mbuf = {k: YFB + 4 * (n % 4) for n, k in enumerate(kseq)}
    def rmem(ks): lds(('m', ks), f"ds_read_b128 v[{mbuf[ks]}:{mbuf[ks]+3}], v{vMem} offset:{L_MEMX+512*ks}")
    lkeys = [k for k in seq if k in ldsidx]
    lbuf = {k: YWB + 4 * (n % 4) for n, k in enumerate(lkeys)}
    nxt = [0]
    def rb_upto(n):
        while nxt[0] < min(n, len(lkeys)):
            k = lkeys[nxt[0]]
            lds(('b', k), f"ds_read_b128 v[{lbuf[k]}:{lbuf[k]+3}], v{vBl} offset:{1024*ldsidx[k]}"); nxt[0] += 1
    rmem(kseq[0]); rmem(kseq[1]); rb_upto(4)
    seen = set()
    for n, (ks, t) in enumerate(seq):
        pi = n // 8
        if n % 8 == 0:
            if 2 * pi == B1AT or 2 * pi == B1AT + 1 and B1AT % 2: a("s_barrier")
            if pi + 1 < len(pairs_): rmem(kseq[2 * pi + 2]); rmem(kseq[2 * pi + 3])
        if ('m', ks) not in seen:
            need(('m', ks)); seen.add(('m', ks))
        if (ks, t) in ldsidx:
            need(('b', (ks, t))); w = lbuf[(ks, t)]
        else:
            w = 4 * regidx[(ks, t)]
        fb = mbuf[ks]
        c = '0' if n < 8 and n % 2 == 0 else f"v[{YA+4*t}:{YA+4*t+3}]"
        a(f"v_mfma_f32_16x16x32_bf16 v[{YA+4*t}:{YA+4*t+3}], v[{fb}:{fb+3}], v[{w}:{w+3}], {c}")
        if (ks, t) in ldsidx: rb_upto(lkeys.index((ks, t)) + 5)
    stamp(a, 7)
    a("s_mov_b32 exec_hi, 0\ns_nop 3")
    for t in range(4):
        a(f"v_cvt_pk_bf16_f32 v{YFB+2*t}, v{YA+4*t}, v{YA+4*t+1}")
        a(f"v_cvt_pk_bf16_f32 v{YFB+2*t+1}, v{YA+4*t+2}, v{YA+4*t+3}")
        a(f"ds_write_b32 v{vZw}, v{YFB+2*t} offset:{1024*t}")
        a(f"ds_write_b32 v{vZw}, v{YFB+2*t+1} offset:{1024*t+256}")
    stamp(a, 8)
    a("s_waitcnt lgkmcnt(0)\ns_barrier")
    stamp(a, 9)
    for t in range(4):
        a(f"ds_write_b64 v{vYw}, v[{YFB+2*t}:{YFB+2*t+1}] offset:{(t>>1)*512+(t&1)*128}")
    a("s_mov_b32 exec_hi, -1\ns_waitcnt lgkmcnt(0)")
    a(f"s_cmp_eq_u32 s27, {NST-1}\ns_cbranch_scc1 {L('endS')}\ns_sleep {CSLEEP}")
    s3_run(a, pfx, vCld, vDst, YA)
    a.label(L('endS'))
    stamp(a, 11)
    ready(f"s_add_u32 s57, s27, 2\ns_min_u32 s57, s57, {NSEG}")
    a(f"s_add_u32 s27, s27, 1\ns_cmp_lt_u32 s27, {NST}\ns_cbranch_scc1 {L('loopS')}")
    a("s_barrier")
    flush(YA)
    if fused:
        a(f"s_cmp_lg_u32 s17, 5\ns_cbranch_scc1 {L('nofp')}\ns_cmp_lg_u32 s16, 11\ns_cbranch_scc1 {L('nofp')}\ns_mov_b32 s40, {NSEG+2}")
        word_store(40, 59, YA + 8)
        a.label(L('nofp'))
        a(f"s_waitcnt vmcnt(0)\ns_barrier\ns_cmp_lg_u32 s17, 7\ns_cbranch_scc1 {L('done')}")
        word_store(27, 60, YA + 8)
    a.label(L('done'))

def weight_prefetch(a, pfx):
    WB = DM * H * DH * 2
    a(f"""
    s_sub_u32 s19, s16, 24
    s_lshl_b32 s19, s19, 3
    s_add_u32 s19, s19, s17              ; gw 0..63
    s_mul_i32 s20, s19, 12288
    s_mul_i32 s40, s18, 3072
    s_add_u32 s20, s20, s40
    v_lshlrev_b32 v1, 4, v255
    s_mov_b32 s10, {WB}
    s_mov_b32 s11, 0x00020000
    """)
    def sweep(nm, nrows_per_wave, stride_rows):
        a(f"s_load_dwordx2 s[8:9], s[0:1], {KA[nm]}\ns_mov_b32 s21, s20\ns_mov_b32 s22, 0\ns_waitcnt lgkmcnt(0)")
        lp = a.uid(pfx + '_sw')
        a.label(lp)
        for r in range(10):
            for j in range(3):
                k = r * 3 + j
                a(f"buffer_load_dwordx4 v[{8+4*k}:{11+4*k}], v1, s[8:11], s21 offen offset:{1024*j}")
            a(f"s_add_u32 s21, s21, {stride_rows*12288}")
        a(f"s_waitcnt vmcnt(0)\ns_add_u32 s22, s22, 10\ns_cmp_lt_u32 s22, {nrows_per_wave}\ns_cbranch_scc1 {lp}")
    sweep('wv', 10, 64)
    done = a.uid(pfx + '_dn'); lp = a.uid(pfx + '_wt')
    a(f"""
    s_cmp_lt_u32 s16, 28
    s_cbranch_scc1 {done}
    s_sub_u32 s20, s20, {32*12288}
    s_mov_b32 s46, 2000000
    v_mov_b32 v2, {PB_OFF + 384*4}
    """)
    a.label(lp)
    a(f"""
    buffer_load_dword v3, v2, s[12:15], 0 offen sc1
    s_sub_u32 s46, s46, 1
    s_cbranch_scc1 {lp}_go
    s_waitcnt vmcnt(0)
    v_cmp_eq_u32 vcc, 0, v3
    s_cbranch_vccz {lp}_go
    s_sleep 32
    s_branch {lp}
    """)
    a.label(lp + '_go')
    sweep('wq', 20, 32)
    sweep('wk', 20, 32)
    a.label(done)

def helper_body(a, pfx, fused=False):
    L = lambda n: f"{pfx}_{n}"
    PFD = int(os.environ.get('REC_PFD', 4))
    a(f"""
    s_sub_u32 s19, s16, 24
    s_lshl_b32 s19, s19, 3
    s_add_u32 s19, s19, s17              ; gw 0..31
    s_lshl_b32 s20, s18, 3
    s_mul_i32 s21, s20, {UH}
    s_mul_i32 s40, s19, 10240
    s_add_u32 s21, s21, s40
    s_add_u32 s21, s21, {U_OFF}
    s_mul_i32 s22, s20, {PH}
    s_mul_i32 s40, s19, 3072
    s_add_u32 s22, s22, s40
    s_add_u32 s22, s22, {K_OFF}
    v_lshlrev_b32 v1, 4, v255
    v_add_u32 v2, 4096, v1
    v_add_u32 v3, 8192, v1
    s_lshl_b32 s40, s18, 7
    s_add_u32 s40, s40, {PROG_OFF}
    v_mov_b32 v4, s40
    s_mov_b32 s27, 0
    s_mov_b32 s46, 4000000
    s_lshr_b32 s23, s19, 2
    s_add_u32 s23, s23, s20              ; head
    s_lshl_b32 s40, s23, 5
    s_add_u32 s40, s40, {PS_OFF}
    v_and_b32 v6, 7, v255
    v_lshlrev_b32 v6, 2, v6
    v_add_u32 v6, s40, v6
    s_mul_i32 s40, s23, 24
    s_add_u32 s40, s40, {PB_OFF + 192*4 - 32}
    v_lshlrev_b32 v7, 2, v255
    v_add_u32 v7, s40, v7
    v_cmp_gt_u32 vcc, 8, v255
    v_cmp_lt_u32 s[42:43], 13, v255
    s_or_b64 vcc, vcc, s[42:43]
    s_nop 1
    v_cndmask_b32 v6, v7, v6, vcc
    s_lshl_b32 s40, s18, 7
    s_lshl_b32 s41, s19, 2
    s_add_u32 s40, s40, s41
    s_add_u32 s40, s40, {RDY_OFF}
    v_mov_b32 v7, s40
    """)
    a.label(L('hloop'))
    a(f"s_cmp_lt_u32 s27, {PFD}\ns_cbranch_scc1 {L('hgo')}")
    a.label(L('hwait'))
    a(f"""
    buffer_load_dword v5, v4, s[12:15], 0 offen sc1
    s_sub_u32 s46, s46, 1
    s_cbranch_scc1 {L('hdone')}
    s_waitcnt vmcnt(0)
    v_readfirstlane_b32 s40, v5
    s_add_u32 s40, s40, {PFD}
    s_cmp_gt_u32 s40, s27
    s_cbranch_scc1 {L('hgo')}
    s_sleep 8
    s_branch {L('hwait')}
    """)
    a.label(L('hgo'))
    if fused:
        a(f"""
        buffer_load_dword v5, v6, s[12:15], 0 offen sc1
        s_sub_u32 s46, s46, 1
        s_cbranch_scc1 {L('hdone')}
        s_waitcnt vmcnt(0)
        v_cmp_ge_u32 vcc, s27, v5
        s_cbranch_vccz {L('hgo2')}
        s_sleep 8
        s_branch {L('hgo')}
        """)
        a.label(L('hgo2'))
    k = 0
    for j in range(3):
        a(f"buffer_load_dwordx4 v[{8+4*k}:{11+4*k}], v1, s[12:15], s22 offen offset:{1024*j}"); k += 1
    for j in range(10):
        a(f"buffer_load_dwordx4 v[{8+4*k}:{11+4*k}], v{1+j//4}, s[12:15], s21 offen offset:{1024*(j%4)}"); k += 1
    a(f"""
    s_add_u32 s21, s21, {U_SEG}
    s_add_u32 s22, s22, {P_SEG}
    s_add_u32 s27, s27, 1
    v_mov_b32 v5, s27
    s_waitcnt vmcnt(0)
    buffer_store_dword v5, v7, s[12:15], 0 offen
    s_cmp_lt_u32 s27, {NST}
    s_cbranch_scc1 {L('hloop')}
    """)
    a.label(L('hdone'))

def gen_rec(a, name='rec_kernel'):
    a.raw(kernel_header(name))
    a(f"""
    s_cmp_ge_u32 s2, 256
    s_cbranch_scc1 REC_end
    s_load_dwordx2 s[4:5], s[0:1], {KA['ws']}
    s_getreg_b32 s18, hwreg(HW_REG_XCC_ID)
    s_and_b32 s18, s18, 7
    v_lshrrev_b32 v1, 6, v0
    v_and_b32 v255, 63, v0
    s_nop 0
    v_readfirstlane_b32 s17, v1
    s_memtime s[60:61]
    s_waitcnt lgkmcnt(0)
    """)
    srd(a, 12, 4, WS_BYTES)
    a(f"""
    v_mov_b32 v3, 1
    s_lshl_b32 s16, s18, 7
    s_add_u32 s16, s16, {TK_OFF}
    v_mov_b32 v4, s16
    v_mov_b32 v5, 0
    v_cmp_eq_u32 vcc, 0, v0
    s_and_saveexec_b64 s[26:27], vcc
    s_cbranch_execz REC_notk
    buffer_atomic_add v3, v4, s[12:15], 0 offen sc0
    s_waitcnt vmcnt(0)
    ds_write_b32 v5, v3
    s_waitcnt lgkmcnt(0)
    """)
    a.label('REC_notk')
    a(f"""
    s_mov_b64 exec, s[26:27]
    s_barrier
    ds_read_b32 v3, v5
    s_waitcnt lgkmcnt(0)
    v_readfirstlane_b32 s16, v3
    s_barrier
    s_cmp_ge_u32 s18, 4
    s_cbranch_scc1 REC_end
    s_cmp_ge_u32 s16, 28
    s_cbranch_scc1 REC_end
    s_cmp_lt_u32 s16, 24
    s_cbranch_scc1 REC_main
    """)
    if not NOU: helper_body(a, 'HLP')
    a("s_branch REC_end")
    a.label('REC_main')
    if STAMP >= 0:
        for i in range(12): a(f"s_mov_b32 s{64+i}, 0")
    rec_body(a, 'REC')
    if STAMP >= 0:
        a(f"""
        s_lshl_b32 s61, s18, 5
        s_add_u32 s61, s61, s16
        s_lshl_b32 s61, s61, 3
        s_add_u32 s61, s61, s17
        s_lshl_b32 s61, s61, 6
        s_add_u32 s61, s61, {WS_END}
        v_mov_b32 v3, 0
        """)
        for i in range(12): a(f"v_mov_b32 v{4+i}, s{64+i}")
        for i in range(3): a(f"buffer_store_dwordx4 v[{4+4*i}:{7+4*i}], v3, s[12:15], s61 offen offset:{16*i}")
    a(f"""
    s_memtime s[62:63]
    s_load_dwordx2 s[56:57], s[0:1], {KA['dbg']}
    s_waitcnt lgkmcnt(0)
    s_sub_u32 s62, s62, s60
    s_mov_b32 s58, 256
    s_mov_b32 s59, 0x00020000
    v_mov_b32 v4, s62
    s_sub_u32 s96, s96, s60
    v_mov_b32 v5, s96
    s_lshl_b32 s60, s17, 3
    s_lshl_b32 s61, s18, 5
    s_add_u32 s61, s61, s16
    s_cmp_eq_u32 s61, 0
    s_cselect_b32 s60, s60, 256
    v_mov_b32 v3, s60
    buffer_store_dwordx2 v[4:5], v3, s[56:59], 0 offen
    """)
    a.label('REC_end')
    a("s_endpgm")
    return kernel_desc(name)
```

```python
from asmlib import *
from layout import *
import os

SSLOT = 40 * KB
NSLOT = 4
VSLOT = 12 * KB
WF = 0
AF = 144
ACC = (192, 208)
VT = 224
V_L16 = 240
V_LDSRD = 241
V_DMA = 242

def small_body(a, pfx, fused=False):
    L = lambda n: f"{pfx}_{n}"
    a(f"""
    s_load_dwordx2 s[4:5], s[0:1], {KA['ws']}
    s_cmp_ge_u32 s16, 32
    s_cbranch_scc1 {L('rg')}
    s_load_dwordx2 s[6:7], s[0:1], {KA['wo']}
    s_mov_b32 s10, {H*DH*DM*2}
    s_mov_b32 s27, s16
    s_mul_i32 s20, s16, {PH}
    s_add_u32 s20, s20, {V_OFF}
    s_mov_b32 s23, {P_SEG}
    s_mul_i32 s21, s16, {UH}
    s_add_u32 s21, s21, {U_OFF}
    s_mov_b32 s22, {U_SEG}
    s_mov_b32 s26, 2048
    s_mul_i32 s46, s16, 6
    s_add_u32 s46, s46, 384
    s_branch {L('rdone')}
    """)
    a.label(L('rg'))
    a(f"""
    s_load_dwordx2 s[6:7], s[0:1], {KA['w2']}
    s_mov_b32 s10, {F*DM*2}
    s_sub_u32 s27, s16, 32
    s_mul_i32 s20, s27, {PH}
    s_add_u32 s20, s20, {HID_OFF}
    s_mov_b32 s23, {HID_SEG}
    s_mul_i32 s21, s27, {GH}
    s_add_u32 s21, s21, {G_OFF}
    s_mov_b32 s22, {G_SEG}
    s_mov_b32 s26, 2048
    s_mul_i32 s46, s27, 6
    s_add_u32 s46, s46, 576
    """)
    a.label(L('rdone'))
    a(f"""
    s_mul_i32 s19, s27, {DH*DM*2}
    s_mul_i32 s28, s17, 3
    s_lshl_b32 s29, s17, 1
    s_add_u32 s29, s29, 4
    s_cmp_lt_u32 s17, 4
    s_cselect_b32 s28, s28, s29
    s_mul_i32 s29, s28, s26
    s_add_u32 s21, s21, s29
    s_waitcnt lgkmcnt(0)
    s_mov_b32 s8, s6
    s_mov_b32 s9, s7
    s_mov_b32 s11, 0x00020000
    """)
    srd(a, 12, 4, WS_BYTES)
    SV = AF
    for n in range(5):
        a(f"""
        s_lshl_b32 s30, s17, 6
        s_add_u32 s30, s30, {512*n}
        v_add_u32 v{VT}, s30, v255
        v_mul_u32_u24 v{VT+1}, 52429, v{VT}
        v_lshrrev_b32 v{VT+1}, 22, v{VT+1}
        v_mul_u32_u24 v{VT+2}, 80, v{VT+1}
        v_sub_u32 v{VT+2}, v{VT}, v{VT+2}
        v_and_b32 v{VT+3}, 3, v{VT+1}
        v_lshlrev_b32 v{VT+3}, 2, v{VT+3}
        v_xor_b32 v{VT+2}, v{VT+2}, v{VT+3}
        v_mul_u32_u24 v{VT+1}, 1280, v{VT+1}
        v_lshl_add_u32 v{SV+n}, v{VT+2}, 4, v{VT+1}
        """)
    TB = AF + 8
    a(f"""
    v_lshrrev_b32 v{VT}, 5, v255
    v_lshlrev_b32 v{VT}, 2, v{VT}
    v_bfe_u32 v{VT+1}, v255, 2, 2
    v_add_u32 v{VT}, v{VT}, v{VT+1}
    v_mul_u32_u24 v{VT}, 1280, v{VT}
    v_bfe_u32 v{VT+2}, v255, 4, 1
    v_lshl_add_u32 v{VT}, v{VT+2}, 5, v{VT}
    v_and_b32 v{VT+2}, 3, v255
    v_lshl_add_u32 v{VT}, v{VT+2}, 3, v{VT}
    """)
    for t in range(3):
        a(f"""
        s_add_u32 s30, s28, {t}
        s_min_u32 s30, s30, 19
        v_xor_b32 v{VT+2}, s30, v{VT+1}
        v_lshl_add_u32 v{TB+t}, v{VT+2}, 6, v{VT}
        """)
    def stage_issue(q):
        a(f"s_add_u32 s33, s19, {q*SSLOT}")
        for n in range(5):
            a(f"s_lshl_b32 s34, s17, 10\ns_add_u32 s34, s34, {(q % NSLOT)*SSLOT + n*8192}\ns_mov_b32 m0, s34\ns_nop 0")
            a(f"buffer_load_dwordx4 v{SV+n}, s[8:11], s33 offen lds")
    for q in range(NSLOT):
        stage_issue(q)
    for q in range(6):
        outstanding = 5 * (min(q + NSLOT, 6) - q - 1)
        a(f"s_waitcnt vmcnt({outstanding})\ns_barrier")
        for t in range(3):
            a(f"v_add_u32 v{VT+4}, {(q % NSLOT)*SSLOT}, v{TB+t}")
            for p in range(2):
                for hr in range(2):
                    r = WF + (t * 12 + 2 * q + p) * 4 + 2 * hr
                    a(f"ds_read_b64_tr_b16 v[{r}:{r+1}], v{VT+4} offset:{p*20480+hr*10240}")
        a("s_waitcnt lgkmcnt(0)\ns_barrier")
        if q + NSLOT < 6:
            stage_issue(q + NSLOT)
    if not fused: a("s_memtime s[52:53]")
    elif os.environ.get('MAIN_DUMP'): a("s_memtime s[96:97]\ns_waitcnt lgkmcnt(0)")
    sc = ' sc1' if fused else ''
    V_FA, V_FL, V_PA, V_PV, V_FL2 = 243, 244, 245, 246, 247
    a(f"""
    v_min_u32 v{V_FA}, 5, v255
    v_add_u32 v{V_FA}, s46, v{V_FA}
    v_lshlrev_b32 v{V_FA}, 2, v{V_FA}
    v_add_u32 v{V_FA}, {PB_OFF}, v{V_FA}
    v_mov_b32 v{V_FL}, 0
    s_lshl_b32 s47, s16, 3
    s_add_u32 s47, s47, s17
    s_lshl_b32 s47, s47, 2
    s_add_u32 s47, s47, {PS_OFF}
    v_mov_b32 v{V_PA}, s47
    s_mov_b32 s48, 8000000
    """)
    if fused:
        import k_init
        k_init.wait_init(a, AF)
    def need_flags(need_s):
        if not fused: return
        ok = a.uid(pfx + '_fok'); lp = a.uid(pfx + '_flp')
        a(f"v_cmp_gt_u32 vcc, s{need_s}, v{V_FL}\ns_cbranch_vccz {ok}")
        a.label(lp)
        a(f"""
        buffer_load_dword v{V_FL}, v{V_FA}, s[12:15], 0 offen sc1
        s_sub_u32 s48, s48, 1
        s_cbranch_scc1 {ok}_x
        s_waitcnt vmcnt(0)
        v_cmp_gt_u32 vcc, s{need_s}, v{V_FL}
        s_cbranch_vccz {ok}
        s_sleep 6
        s_branch {lp}
        """)
        a.label(ok + '_x')
        a("s_mov_b32 s48, 0")
        a.label(ok)
    def publish():
        if not fused: return
        a(f"v_mov_b32 v{V_PV}, s42\nbuffer_store_dword v{V_PV}, v{V_PA}, s[12:15], 0 offen sc1")
    a(f"""
    v_lshlrev_b32 v{V_L16}, 4, v255
    s_lshl_b32 s30, s17, 10
    v_add_u32 v{V_DMA}, s30, v{V_L16}
    """)
    def dma(nt):
        a(f"s_lshl_b32 s34, s17, 10\ns_add_u32 s34, s34, s35\ns_mov_b32 m0, s34\ns_nop 0")
        a(f"buffer_load_dwordx4 v{V_DMA}, s[12:15], s43 offen{sc} lds")
        if nt == 3:
            a(f"s_add_u32 s34, s34, 8192\ns_mov_b32 m0, s34\ns_add_u32 s33, s43, 8192")
            a(f"buffer_load_dwordx4 v{V_DMA}, s[12:15], s33 offen{sc} lds")
    PD = 2
    def epi(acc, gmode, soff, toff):
        ops = []
        if True:
            for i in range(8):
                ops.append(f"v_cvt_pk_bf16_f32 v{VT+i}, v{acc+2*i}, v{acc+2*i+1}")
            ops.append(f"s_add_u32 s33, s{soff}, {toff*2048}")
            ops.append(f"buffer_store_dwordx4 v[{VT}:{VT+3}], v{V_L16}, s[12:15], s33 offen{sc}")
            ops.append(f"buffer_store_dwordx4 v[{VT+4}:{VT+7}], v{V_L16}, s[12:15], s33 offen offset:1024{sc}")
        else:
            ops.append(f"s_add_u32 s33, s{soff}, {toff*4096}")
            for q in range(4):
                ops.append(f"buffer_store_dwordx4 v[{acc+4*q}:{acc+4*q+3}], v{V_L16}, s[12:15], s33 offen offset:{1024*q}{sc}")
        return ops
    def mfma(acc, t, ks, gmode, first):
        w = WF + (t * 12 + ks) * 4; f = AF + 4 * ks
        c = '0' if first else f"v[{acc}:{acc+15}]"
        if gmode:
            a(f"v_mfma_f32_32x32x16_bf16 v[{acc}:{acc+15}], v[{w}:{w+3}], v[{f}:{f+3}], {c}")
        else:
            a(f"v_mfma_f32_32x32x16_bf16 v[{acc}:{acc+15}], v[{f}:{f+3}], v[{w}:{w+3}], {c}")
    for gmode in (0, 1):
        for nt in (3, 2):
            tag = f"{gmode}{nt}"
            a.label(L('v' + tag)) if (gmode, nt) != (0, 3) else None
            if (gmode, nt) == (0, 3):
                a(f"""
                s_cmp_ge_u32 s16, 32
                s_cbranch_scc1 {L('gsel')}
                s_cmp_ge_u32 s17, 4
                s_cbranch_scc1 {L('v02')}
                """)
            a("s_mov_b32 s43, s20\ns_mov_b32 s35, 0\ns_mov_b32 s49, 1")
            need_flags(49)
            dma(nt)
            a("s_add_u32 s43, s43, s23\ns_mov_b32 s42, 0\ns_mov_b32 s44, s21")
            a("s_waitcnt vmcnt(0)")
            lp = L('loop' + tag)
            a.label(lp)
            a("s_barrier" if fused else "s_waitcnt vmcnt(0)\ns_barrier")
            a(f"s_and_b32 s35, s42, {NSLOT-1}\ns_mul_i32 s35, s35, {VSLOT}\nv_add_u32 v{V_LDSRD}, s35, v{V_L16}")
            for ks in range(12):
                a(f"ds_read_b128 v[{AF+4*ks}:{AF+4*ks+3}], v{V_LDSRD} offset:{1024*ks}")
            sk = a.uid(pfx + '_nopf')
            a(f"""
            s_mov_b32 s50, 1
            s_add_u32 s35, s42, 1
            s_cmp_ge_u32 s35, {NSEG}
            s_cbranch_scc1 {sk}
            s_add_u32 s49, s42, 2
            """)
            if fused:
                a(f"s_mov_b32 s50, 0\nv_cmp_gt_u32 vcc, s49, v{V_FL}\ns_cbranch_vccnz {sk}\ns_mov_b32 s50, 1")
            a(f"s_and_b32 s35, s35, {NSLOT-1}\ns_mul_i32 s35, s35, {VSLOT}")
            dma(nt)
            a("s_add_u32 s43, s43, s23")
            a.label(sk)
            if fused: a(f"buffer_load_dword v{V_FL2}, v{V_FA}, s[12:15], 0 offen sc1")
            for t in range(nt):
                acc = ACC[t & 1]; prev = ACC[(t + 1) & 1]
                ep = epi(prev, gmode, 44, t - 1) if t else []
                for ks in range(12):
                    if t == 0:
                        a(f"s_waitcnt lgkmcnt({11-ks})")
                    mfma(acc, t, ks, gmode, ks == 0)
                    if ks >= 3:
                        if t > 0 and ks == 3:
                            a("s_nop 7")
                        for _ in range(2):
                            if ep: a(ep.pop(0))
                assert not ep
            a("s_nop 11")
            for op in epi(ACC[(nt - 1) & 1], gmode, 44, nt - 1): a(op)
            a("s_add_u32 s42, s42, 1\ns_add_u32 s44, s44, s22")
            if fused:
                a(f"s_waitcnt vmcnt(0)\nv_mov_b32 v{V_FL}, v{V_FL2}")
                publish()
                sk2 = a.uid(pfx + '_pfd')
                a(f"s_cmp_eq_u32 s50, 1\ns_cbranch_scc1 {sk2}")
                need_flags(49)
                a(f"s_and_b32 s35, s42, {NSLOT-1}\ns_mul_i32 s35, s35, {VSLOT}")
                dma(nt)
                a("s_add_u32 s43, s43, s23\ns_waitcnt vmcnt(0)")
                a.label(sk2)
            a(f"s_cmp_lt_u32 s42, {NSEG}\ns_cbranch_scc1 {lp}")
            a(f"s_branch {L('done')}")
            if (gmode, nt) == (0, 2):
                a.label(L('gsel'))
                a(f"s_cmp_ge_u32 s17, 4\ns_cbranch_scc1 {L('v12')}")
    a.label(L('done'))

def gen_small(a, name='small_kernel'):
    a.raw(kernel_header(name))
    a(f"""
    s_cmp_ge_u32 s2, 40
    s_cbranch_scc1 SM_end
    s_mov_b32 s16, s2
    v_lshrrev_b32 v1, 6, v0
    v_and_b32 v255, 63, v0
    s_nop 0
    v_readfirstlane_b32 s17, v1
    s_nop 3
    s_memtime s[50:51]
    """)
    small_body(a, 'SM')
    a(f"""
    s_memtime s[54:55]
    s_load_dwordx2 s[56:57], s[0:1], {KA['dbg']}
    s_waitcnt lgkmcnt(0)
    s_sub_u32 s54, s54, s52
    s_sub_u32 s52, s52, s50
    s_mov_b32 s58, 256
    s_mov_b32 s59, 0x00020000
    v_mov_b32 v4, s52
    v_mov_b32 v5, s54
    s_cmp_eq_u32 s16, 0
    s_cselect_b32 s60, 0, 256
    s_cmp_eq_u32 s16, 35
    s_cselect_b32 s60, 8, s60
    v_mov_b32 v3, s60
    buffer_store_dwordx2 v[4:5], v3, s[56:59], 0 offen
    """)
    a.label('SM_end')
    a("s_endpgm")
    return kernel_desc(name)
```

```python
from asmlib import *
from layout import *
import math, struct, os

def f32(x):
    return hex(struct.unpack('<I', struct.pack('<f', x))[0])

SLOT = 40 * KB
NSLOT = 4
WF = 0
ACC = (160, 176)
FB = 192
NFB = 6
BIAS = 216
VT = 232
V_LANE16 = 240
V_LDSRD = 241
V_ST = 242
V_TMP = 243

def big_body(a, pfx, fused=False):
    L = lambda n: f"{pfx}_{n}"
    a(f"""
    s_load_dwordx2 s[4:5], s[0:1], {KA['ws']}
    s_load_dwordx2 s[24:25], s[0:1], {KA['b1']}
    s_cmp_ge_u32 s16, 72
    s_cbranch_scc1 {L('rw1')}
    s_mul_i32 s26, s16, 2731
    s_lshr_b32 s26, s26, 16
    s_mul_i32 s27, s26, 24
    s_sub_u32 s27, s16, s27            ; role%24
    s_lshl_b32 s28, s26, 3
    s_add_u32 s28, s28, {KA['wq']}
    s_load_dwordx2 s[6:7], s[0:1], s28
    s_mov_b32 s18, 12288
    s_mov_b32 s10, {DM*H*DH*2}
    s_mov_b32 s20, {XN_OFF}
    s_mul_i32 s21, s26, {NSEG*P_SEG}
    s_add_u32 s21, s21, {Q_OFF}
    s_mov_b32 s22, {P_SEG}
    s_mul_i32 s45, s26, 192
    s_branch {L('rdone')}
    """)
    a.label(L('rw1'))
    a(f"""
    s_sub_u32 s27, s16, 72
    s_load_dwordx2 s[6:7], s[0:1], {KA['w1']}
    s_mov_b32 s18, 3072
    s_mov_b32 s10, {DM*F*2}
    s_mov_b32 s20, {YN_OFF}
    s_mov_b32 s21, {HID_OFF}
    s_mov_b32 s22, {HID_SEG}
    s_mov_b32 s45, 576
    """)
    a.label(L('rdone'))
    a(f"""
    s_cmp_ge_u32 s16, 72
    s_cselect_b32 s30, 8, 9
    s_cselect_b32 s29, 2, 3
    s_lshl_b32 s19, s27, s30
    s_lshl_b32 s28, s27, s29
    s_add_u32 s28, s28, s17            ; gt
    s_lshl_b32 s29, s28, 11
    s_add_u32 s21, s21, s29
    s_add_u32 s45, s45, s28
    s_lshl_b32 s45, s45, 2
    s_add_u32 s45, s45, {PB_OFF}
    s_waitcnt lgkmcnt(0)
    s_mov_b32 s8, s6
    s_mov_b32 s9, s7
    s_mov_b32 s11, 0x00020000
    """)
    srd(a, 12, 4, WS_BYTES)
    a(f"""
    v_lshrrev_b32 v{VT}, 5, v255               ; lane>>5
    s_lshl_b32 s30, s17, 1
    v_add_u32 v{VT}, s30, v{VT}
    v_and_b32 v{VT+1}, 3, v{VT}
    v_lshlrev_b32 v{VT+1}, 2, v{VT+1}
    v_and_b32 v{VT+2}, 31, v255
    v_xor_b32 v{VT+2}, v{VT+2}, v{VT+1}
    v_lshlrev_b32 v{VT+2}, 4, v{VT+2}
    v_mul_lo_u32 v{VT}, v{VT}, s18
    v_add_u32 v{VT}, v{VT}, v{VT+2}
    v_lshrrev_b32 v{VT+1}, 5, v255             ; G>>1
    v_lshlrev_b32 v{VT+1}, 3, v{VT+1}
    v_bfe_u32 v{VT+2}, v255, 2, 2              ; r
    v_add_u32 v{VT+1}, v{VT+1}, v{VT+2}
    v_lshlrev_b32 v{VT+1}, 9, v{VT+1}
    v_xor_b32 v{VT+2}, s17, v{VT+2}
    v_lshl_add_u32 v{VT+1}, v{VT+2}, 6, v{VT+1}
    v_bfe_u32 v{VT+2}, v255, 4, 1
    v_lshl_add_u32 v{VT+1}, v{VT+2}, 5, v{VT+1}
    v_and_b32 v{VT+2}, 3, v255
    v_lshl_add_u32 v{VT+1}, v{VT+2}, 3, v{VT+1}
    s_lshl_b32 s31, s18, 4
    s_mul_i32 s32, s18, 80
    """)
    def stage_issue(q):
        a(f"s_mul_i32 s33, s32, {q}\ns_add_u32 s33, s33, s19")
        for n in range(5):
            a(f"s_lshl_b32 s34, s17, 10")
            a(f"s_add_u32 s34, s34, {(q % NSLOT) * SLOT + n * 8192}")
            a(f"s_mov_b32 m0, s34")
            a("s_nop 0")
            a(f"buffer_load_dwordx4 v{VT}, s[8:11], s33 offen lds")
            if n < 4:
                a("s_add_u32 s33, s33, s31")
    for q in range(NSLOT):
        stage_issue(q)
    for q in range(8):
        outstanding = 5 * (min(q + NSLOT, 8) - q - 1)
        a(f"s_waitcnt vmcnt({outstanding})")
        a("s_barrier")
        a(f"v_add_u32 v{VT+2}, {(q % NSLOT) * SLOT}, v{VT+1}")
        for ksl in range(5):
            ks = 5 * q + ksl
            for hr in range(2):
                a(f"ds_read_b64_tr_b16 v[{WF+4*ks+2*hr}:{WF+4*ks+2*hr+1}], v{VT+2} offset:{ksl*8192+hr*2048}")
        a("s_waitcnt lgkmcnt(0)")
        a("s_barrier")
        if q + NSLOT < 8:
            stage_issue(q + NSLOT)
    if not fused: a("s_memtime s[52:53]")
    elif os.environ.get('MAIN_DUMP'): a("s_memtime s[96:97]\ns_waitcnt lgkmcnt(0)")
    sc = ' sc1' if fused else ''
    def publish(delta):
        if not fused: return
        a(f"s_add_u32 s33, s42, {delta}" if delta >= 0 else f"s_sub_u32 s33, s42, {-delta}")
        a(f"v_mov_b32 v247, s33\nbuffer_store_dword v247, v246, s[12:15], 0 offen sc1")
    a("v_mov_b32 v246, s45")
    a(f"""
    v_lshlrev_b32 v{V_ST}, 4, v255
    s_mul_i32 s30, s17, 5120
    v_add_u32 v{V_LANE16}, s30, v{V_ST}
    """)
    a(f"s_cmp_lt_u32 s16, 72\ns_cbranch_scc1 {L('nobias')}")
    srd(a, 36, 24, F * 2)
    a(f"""
    v_lshrrev_b32 v{VT}, 5, v255
    v_lshlrev_b32 v{VT}, 3, v{VT}
    s_lshl_b32 s30, s28, 6
    v_add_u32 v{VT}, s30, v{VT}
    """)
    for q in range(4):
        a(f"buffer_load_dwordx2 v[{FB+2*q}:{FB+1+2*q}], v{VT}, s[36:39], 0 offen offset:{16*q}")
    a("s_waitcnt vmcnt(0)")
    for q in range(4):
        for j in range(2):
            a(f"v_lshlrev_b32 v{BIAS+4*q+2*j}, 16, v{FB+2*q+j}")
            a(f"v_and_b32 v{BIAS+4*q+2*j+1}, 0xffff0000, v{FB+2*q+j}")
    c0 = -2.0 * math.sqrt(2.0 / math.pi) * math.log2(math.e)
    a(f"s_mov_b32 s40, {f32(c0)}\ns_mov_b32 s41, {f32(c0*0.044715)}")
    a.label(L('nobias'))

    def dma(segreg_off):
        a(f"s_mul_i32 s34, s17, 5120\ns_add_u32 s34, s34, s35\ns_mov_b32 m0, s34\ns_nop 0")
        for n in range(4):
            a(f"buffer_load_dwordx4 v{V_LANE16}, s[12:15], s{segreg_off} offen offset:{1024*n}{sc} lds")
        a(f"s_add_u32 s34, s34, 4096\ns_mov_b32 m0, s34\ns_add_u32 s33, s{segreg_off}, 4096")
        a(f"buffer_load_dwordx4 v{V_LANE16}, s[12:15], s33 offen{sc} lds")

    if fused:
        import k_init
        k_init.wait_init(a, FB, sel=(16, 72))
        if os.environ.get('MAIN_DUMP'): a("s_memtime s[88:89]\ns_waitcnt lgkmcnt(0)")
    PD = 2
    a(f"s_mov_b32 s43, s20")
    for p in range(PD):
        a(f"s_mov_b32 s35, {p*SLOT}")
        dma(43)
        a(f"s_add_u32 s43, s43, {XN_SEG}")
    a(f"s_mov_b32 s42, 0\ns_sub_u32 s44, s21, s22")

    def epilogue_ops(acc, gelu):
        ops = []
        if not gelu:
            for i in range(8):
                ops.append(f"v_cvt_pk_bf16_f32 v{VT+i}, v{acc+2*i}, v{acc+2*i+1}")
        else:
            t = V_TMP
            for i in range(8):
                x0, x1 = acc + 2 * i, acc + 2 * i + 1
                ops.append(f"v_cvt_pk_bf16_f32 v{t}, v{x0}, v{x1}")
                ops.append(f"v_lshlrev_b32 v{x0}, 16, v{t}")
                ops.append(f"v_and_b32 v{x1}, 0xffff0000, v{t}")
                ops.append(f"v_add_f32 v{x0}, v{x0}, v{BIAS+2*i}")
                ops.append(f"v_add_f32 v{x1}, v{x1}, v{BIAS+2*i+1}")
                ops.append(f"v_cvt_pk_bf16_f32 v{t}, v{x0}, v{x1}")
                ops.append(f"v_lshlrev_b32 v{x0}, 16, v{t}")
                ops.append(f"v_and_b32 v{x1}, 0xffff0000, v{t}")
                for k, x in enumerate((x0, x1)):
                    u = t + 1 + k
                    ops.append(f"v_mul_f32 v{u}, v{x}, v{x}")
                    ops.append(f"v_mul_f32 v{u}, s41, v{u}")
                    ops.append(f"v_add_f32 v{u}, s40, v{u}")
                    ops.append(f"v_mul_f32 v{u}, v{u}, v{x}")
                    ops.append(f"v_exp_f32 v{u}, v{u}")
                for k, x in enumerate((x0, x1)):
                    u = t + 1 + k
                    ops.append(f"v_add_f32 v{u}, 1.0, v{u}")
                    ops.append(f"v_rcp_f32 v{u}, v{u}")
                for k, x in enumerate((x0, x1)):
                    u = t + 1 + k
                    ops.append(f"v_mul_f32 v{x}, v{x}, v{u}")
                ops.append(f"v_cvt_pk_bf16_f32 v{VT+i}, v{x0}, v{x1}")
        ops.append(f"buffer_store_dwordx4 v[{VT}:{VT+3}], v{V_ST}, s[12:15], s44 offen{sc}")
        ops.append(f"buffer_store_dwordx4 v[{VT+4}:{VT+7}], v{V_ST}, s[12:15], s44 offen offset:1024{sc}")
        return ops

    def seg_iter(par, gelu, first, second=False):
        acc = ACC[par]
        a("s_waitcnt vmcnt(1)" if (fused and not gelu and not first and not second) else "s_waitcnt vmcnt(0)")
        a("s_barrier")
        if gelu and not first: publish(-1)
        a(f"""
        s_and_b32 s35, s42, {NSLOT-1}
        s_mul_i32 s35, s35, {SLOT}
        v_add_u32 v{V_LDSRD}, s35, v{V_ST}
        """)
        for i in range(NFB - 1):
            a(f"ds_read_b128 v[{FB+4*i}:{FB+4*i+3}], v{V_LDSRD} offset:{1024*i}")
        sk = a.uid(pfx + '_nopf')
        a(f"""
        s_add_u32 s35, s42, {PD}
        s_cmp_ge_u32 s35, {NSEG}
        s_cbranch_scc1 {sk}
        s_and_b32 s35, s35, {NSLOT-1}
        s_mul_i32 s35, s35, {SLOT}
        """)
        dma(43)
        a(f"s_add_u32 s43, s43, {XN_SEG}")
        a.label(sk)
        ep = [] if first else epilogue_ops(ACC[par ^ 1], gelu)
        per = 6 if gelu else 2
        for ks in range(40):
            fb = FB + 4 * (ks % NFB)
            rem = min(NFB - 2, 39 - ks)
            a(f"s_waitcnt lgkmcnt({rem})")
            c = '0' if ks == 0 else f"v[{acc}:{acc+15}]"
            a(f"v_mfma_f32_32x32x16_bf16 v[{acc}:{acc+15}], v[{WF+4*ks}:{WF+4*ks+3}], v[{fb}:{fb+3}], {c}")
            nk = ks + NFB - 1
            if nk < 40:
                nb = FB + 4 * (nk % NFB)
                a(f"ds_read_b128 v[{nb}:{nb+3}], v{V_LDSRD} offset:{1024*nk}")
            if ks >= 1:
                for _ in range(per):
                    if ep: a(ep.pop(0))
            if fused and ks == int(os.environ.get('BIG_PUB', 28)) and not gelu and not first:
                a("s_waitcnt vmcnt(0)")
                publish(0)
        assert not ep
        a(f"s_add_u32 s42, s42, 1\ns_add_u32 s44, s44, s22")

    for gelu in (0, 1):
        lp = L(f'loop{gelu}')
        if gelu == 0:
            a(f"s_cmp_ge_u32 s16, 72\ns_cbranch_scc1 {L('gelu_path')}")
        else:
            a.label(L('gelu_path'))
            a(f"s_cmp_ge_u32 s17, 4\ns_cbranch_scc1 {L('idle')}")
        seg_iter(0, gelu, True)
        if fused and not gelu: a("s_waitcnt vmcnt(0)")
        a.label(lp)
        seg_iter(1, gelu, False)
        a(f"s_cmp_ge_u32 s42, {NSEG}\ns_cbranch_scc1 {L(f'fin{gelu}')}")
        seg_iter(0, gelu, False)
        a(f"s_branch {lp}")
        a.label(L(f'fin{gelu}'))
        a("s_nop 15")
        for op in epilogue_ops(ACC[1], gelu):
            a(op)
        if fused:
            a("s_waitcnt vmcnt(0)")
            publish(0)
        a(f"s_branch {L('done')}")
    a.label(L('idle'))
    a(f"""
    s_waitcnt vmcnt(0)
    s_barrier
    s_add_u32 s35, s42, {PD}
    s_cmp_ge_u32 s35, {NSEG}
    s_cbranch_scc1 {L('idle2')}
    s_and_b32 s35, s35, {NSLOT-1}
    s_mul_i32 s35, s35, {SLOT}
    """)
    dma(43)
    a(f"s_add_u32 s43, s43, {XN_SEG}")
    a.label(L('idle2'))
    a(f"s_add_u32 s42, s42, 1\ns_cmp_lt_u32 s42, {NSEG}\ns_cbranch_scc1 {L('idle')}")
    a.label(L('done'))

def gen_big(a, name='big_kernel'):
    a.raw(kernel_header(name))
    a(f"""
    s_cmp_ge_u32 s2, 84
    s_cbranch_scc1 BIG_end
    s_mov_b32 s16, s2
    v_lshrrev_b32 v1, 6, v0
    v_and_b32 v255, 63, v0
    s_nop 0
    v_readfirstlane_b32 s17, v1
    s_nop 3
    """)
    a("s_memtime s[50:51]")
    big_body(a, 'BIG')
    a(f"""
    s_memtime s[54:55]
    s_load_dwordx2 s[56:57], s[0:1], {KA['dbg']}
    s_waitcnt lgkmcnt(0)
    s_sub_u32 s54, s54, s52
    s_sub_u32 s52, s52, s50
    s_mov_b32 s58, 256
    s_mov_b32 s59, 0x00020000
    v_mov_b32 v4, s52
    v_mov_b32 v5, s54
    s_cmp_eq_u32 s16, 0
    s_cselect_b32 s60, 0, 256
    s_cmp_eq_u32 s16, 75
    s_cselect_b32 s60, 8, s60
    v_mov_b32 v3, s60
    buffer_store_dwordx2 v[4:5], v3, s[56:59], 0 offen
    """)
    a.label('BIG_end')
    a("s_endpgm")
    return kernel_desc(name)
```

```python
from asmlib import *
from layout import *
from k_ln import ln_pass, cwindow

DB_TK = lambda x: 32 * x
DB_INIT = 8
DB_INIT2 = 4
DB_PAR = 12
DB_OVF = 16
NINIT = 64

def ln_part(a, wg):
    a(f"""
    s_load_dwordx2 s[8:9], s[0:1], {KA['x']}
    s_mov_b32 s10, {S*DM*2}
    s_mov_b32 s11, 0x00020000
    s_mov_b32 s20, 0x3acccccd
    s_mov_b32 s21, 0x3727c5ac
    v_lshrrev_b32 v1, 4, v0
    v_and_b32 v2, 15, v0
    s_lshl_b32 s3, s{wg}, 5
    v_add_u32 v1, s3, v1
    v_mul_u32_u24 v3, 1280, v1
    v_lshl_add_u32 v3, v2, 4, v3
    s_waitcnt lgkmcnt(0)
    """)
    for i in range(5):
        a(f"buffer_load_dwordx4 v[{12+4*i}:{15+4*i}], v3, s[8:11], 0 offen offset:{256*i}")
    a(f"""
    v_and_b32 v5, 31, v1
    v_lshlrev_b32 v4, 4, v5
    v_lshlrev_b32 v6, 4, v0
    s_mul_i32 s3, s{wg}, {XN_SEG}
    v_lshrrev_b32 v5, 1, v2
    v_lshl_add_u32 v4, v5, 10, v4
    v_and_b32 v5, 1, v2
    v_lshl_add_u32 v4, v5, 9, v4
    s_add_u32 s22, s3, {XN_OFF}
    s_mov_b32 s23, 0
    s_waitcnt vmcnt(0)
    """)
    X, P, T = 32, 12, 92
    for i in range(20):
        a(f"v_lshlrev_b32 v{X+2*i}, 16, v{12+i}")
        a(f"v_and_b32 v{X+2*i+1}, 0xffff0000, v{12+i}")
    lp = a.uid('INI_ln')
    a.label(lp)
    ln_pass(a, X, P, T)
    for i in range(5):
        a(f"ds_write_b128 v4, v[{P+4*i}:{P+4*i+3}] offset:{8192*i}")
    a("s_waitcnt lgkmcnt(0)\ns_barrier")
    for i in range(5):
        a(f"ds_read_b128 v[{100+4*i}:{103+4*i}], v6 offset:{8192*i}")
    for i in range(5):
        a(f"s_waitcnt lgkmcnt({4-i})\ns_add_u32 s25, s22, {8192*i}")
        a(f"buffer_store_dwordx4 v[{100+4*i}:{103+4*i}], v6, s[12:15], s25 offen sc1")
    sk = a.uid('INI_s')
    a(f"s_cmp_lg_u32 s23, 0\ns_cbranch_scc1 {sk}\ns_waitcnt vmcnt(0)")
    a.label(sk)
    a("s_barrier")
    a(f"s_cmp_lg_u32 s23, 0\ns_cbranch_scc1 {sk}_b\ns_cmp_lg_u32 s17, 0\ns_cbranch_scc1 {sk}_b")
    a(f"v_mov_b32 v7, 1\nv_mov_b32 v8, {DB_INIT}\ns_mov_b64 exec, 1\nbuffer_atomic_add v7, v8, s[68:71], 0 offen\ns_mov_b64 exec, -1")
    a.label(sk + '_b')
    a(f"s_add_u32 s22, s3, {YN_OFF}\ns_add_u32 s23, s23, 1\ns_cmp_lt_u32 s23, 2\ns_cbranch_scc1 {lp}")

def fill_part(a, wg, stage):
    NT = NINIT * 512
    cwindow(a, 24, 4)
    a(f"""
    s_lshl_b32 s3, s{wg}, 9
    v_add_u32 v1, s3, v0
    v_lshlrev_b32 v2, 4, v1
    """)
    for r in range(8, 12): a(f"v_mov_b32 v{r}, -1")
    for r in range(12, 16): a(f"v_mov_b32 v{r}, 0")
    def fill(base_s, base_imm, nbytes, vdata):
        units = nbytes // 16
        k = 0
        while k * NT < units:
            a(f"s_add_u32 s25, s{base_s}, {base_imm + k*NT*16}" if base_s is not None else f"s_mov_b32 s25, {base_imm + k*NT*16}")
            rem = units - k * NT
            if rem < NT:
                sk = a.uid('INI_sk')
                a(f"v_cmp_gt_u32 vcc, {rem}, v1\ns_and_saveexec_b64 s[26:27], vcc\ns_cbranch_execz {sk}")
                a(f"buffer_store_dwordx4 v[{vdata}:{vdata+3}], v2, s[12:15], s25 offen sc1")
                a.label(sk)
                a("s_mov_b64 exec, s[26:27]")
            else:
                a(f"buffer_store_dwordx4 v[{vdata}:{vdata+3}], v2, s[12:15], s25 offen sc1")
            k += 1
    if stage == 0:
        fill(None, FLAG_OFF, 65536, 12)
        fill(None, PROG_OFF, 1024, 12)
        return
    fill(24, 0, C_BYTES, 8)
    fill(None, A_OFF, NRING * A_SLOT, 8)
    fill(None, D_OFF + D_SLOT, (NRING - 1) * D_SLOT, 8)
    sk = a.uid('INI_nod0')
    a(f"""
    s_cmp_ge_u32 s{wg}, 5
    s_cbranch_scc1 {sk}
    s_load_dwordx2 s[28:29], s[0:1], {KA['mem0']}
    v_mul_u32_u24 v3, 52429, v1
    v_lshrrev_b32 v3, 25, v3
    v_mul_u32_u24 v3, 640, v3
    v_sub_u32 v3, v1, v3
    v_and_b32 v4, 7, v3
    v_mul_u32_u24 v4, 1280, v4
    v_lshrrev_b32 v5, 5, v3
    v_lshl_add_u32 v4, v5, 6, v4
    v_bfe_u32 v5, v3, 3, 2
    v_lshl_add_u32 v4, v5, 3, v4
    s_waitcnt lgkmcnt(0)
    s_mov_b32 s30, {M*DM*2}
    s_mov_b32 s31, 0x00020000
    buffer_load_dwordx2 v[16:17], v4, s[28:31], 0 offen
    buffer_load_dwordx2 v[18:19], v4, s[28:31], 0 offen offset:32
    s_mov_b32 s25, {D_OFF}
    s_mov_b32 s33, 0xfffffffe
    s_waitcnt vmcnt(0)
    v_min_u32 v16, s33, v16
    v_min_u32 v17, s33, v17
    v_min_u32 v18, s33, v18
    v_min_u32 v19, s33, v19
    buffer_store_dwordx4 v[16:19], v2, s[12:15], s25 offen sc1
    """)
    a.label(sk)

def probe(a):
    a("v_mov_b32 v8, -1\nv_mov_b32 v3, 0\ns_mov_b32 s34, 0x7fffffff\ns_mov_b32 s35, 0x7fffffff")
    for it in range(6):
        for par in range(2):
            a(f"""
            s_add_u32 s33, s24, {it*16384*5 + par*8192 + it*1024}
            buffer_store_dword v8, v3, s[12:15], s33 offen sc1
            s_waitcnt vmcnt(0)
            s_memtime s[36:37]
            s_waitcnt lgkmcnt(0)
            buffer_load_dword v5, v3, s[12:15], s33 offen sc1
            s_waitcnt vmcnt(0)
            s_memtime s[38:39]
            s_waitcnt lgkmcnt(0)
            s_sub_u32 s38, s38, s36
            s_min_u32 s{34+par}, s{34+par}, s38
            """)
    a(f"""
    s_getreg_b32 s36, hwreg(HW_REG_XCC_ID)
    s_lshr_b32 s36, s36, 2
    s_and_b32 s36, s36, 1
    s_cmp_lt_u32 s35, s34
    s_cselect_b32 s37, 1, 0
    s_xor_b32 s37, s37, s36
    s_lshl_b32 s37, s37, 13
    s_add_u32 s37, s37, 1
    v_mov_b32 v4, s37
    v_mov_b32 v3, {DB_PAR}
    buffer_store_dword v4, v3, s[68:71], 0 offen sc1
    """)

def wait_init(a, vt, out_par=None, sel=None):
    lp = a.uid('WINI')
    a(f"v_mov_b32 v{vt+4}, 0\ns_mov_b32 s73, 3000000")
    a.label(lp)
    a(f"""
    buffer_load_dwordx4 v[{vt}:{vt+3}], v{vt+4}, s[68:71], 0 offen sc1
    s_sub_u32 s73, s73, 1
    s_cbranch_scc1 {lp}_ok
    s_waitcnt vmcnt(0)
    v_readfirstlane_b32 s72, v{vt+2 if out_par is None else vt+1}
    """)
    if sel is not None:
        a(f"v_readfirstlane_b32 s75, v{vt+1}\ns_cmp_ge_u32 s{sel[0]}, {sel[1]}\ns_cselect_b32 s72, s75, s72")
    a(f"s_cmp_lt_u32 s72, {NINIT}\ns_cbranch_scc1 {lp}_sl")
    if out_par is not None:
        a(f"v_readfirstlane_b32 s{out_par}, v{vt+3}\ns_cmp_lg_u32 s{out_par}, 0\ns_cbranch_scc1 {lp}_ok")
    else:
        a(f"s_branch {lp}_ok")
    a.label(lp + '_sl')
    a(f"s_sleep {24 if out_par is not None else 8}\ns_branch {lp}")
    a.label(lp + '_ok')
    a("s_waitcnt vmcnt(0)")

def init_all(a, wg):
    fill_part(a, wg, 0)
    ln_part(a, wg)
    fill_part(a, wg, 1)
    sk = a.uid('INI_d')
    a(f"""
    s_waitcnt vmcnt(0)
    s_barrier
    s_cmp_lg_u32 s17, 0
    s_cbranch_scc1 {sk}
    v_mov_b32 v3, 1
    v_mov_b32 v4, {DB_INIT2}
    s_mov_b64 exec, 1
    buffer_atomic_add v3, v4, s[68:71], 0 offen
    s_mov_b64 exec, -1
    """)
    a.label(sk)
```

```python
from asmlib import *
from layout import *
import k_big, k_small, k_post2, k_init, importlib, os
k_rec = importlib.import_module(os.environ.get('REC_MOD', 'k_rec'))
import os

def gen_main(a, name='main_kernel'):
    a.raw(kernel_header(name))
    a(f"""
    s_cmp_ge_u32 s2, 256
    s_cbranch_scc1 MAIN_end
    s_load_dwordx2 s[4:5], s[0:1], {KA['ws']}
    s_load_dwordx2 s[68:69], s[0:1], {KA['dbg']}
    s_mov_b32 s70, 256
    s_mov_b32 s71, 0x00020000
    s_getreg_b32 s18, hwreg(HW_REG_XCC_ID)
    s_and_b32 s18, s18, 7
    v_lshrrev_b32 v1, 6, v0
    v_and_b32 v255, 63, v0
    s_nop 0
    v_readfirstlane_b32 s17, v1
    s_memtime s[90:91]
    s_memrealtime s[84:85]
    s_waitcnt lgkmcnt(0)
    """)
    srd(a, 12, 4, WS_BYTES)
    def ticket(off_s, lab, sr=12):
        a(f"""
        v_mov_b32 v3, 1
        v_mov_b32 v4, s{off_s}
        v_mov_b32 v5, 0
        s_cmp_lg_u32 s17, 0
        s_cbranch_scc1 {lab}
        s_mov_b64 exec, 1
        buffer_atomic_add v3, v4, s[{sr}:{sr+3}], 0 offen sc0
        s_waitcnt vmcnt(0)
        ds_write_b32 v5, v3
        s_waitcnt lgkmcnt(0)
        s_mov_b64 exec, -1
        """)
        a.label(lab)
        a(f"""
        s_barrier
        ds_read_b32 v3, v5
        s_waitcnt lgkmcnt(0)
        v_readfirstlane_b32 s16, v3
        s_barrier
        """)
    a(f"s_lshl_b32 s16, s18, 5")
    ticket(16, 'MAIN_tk1', 68)
    a(f"""
    s_mov_b32 s96, 0
    s_mov_b32 s88, 0
    s_mov_b32 s75, 0
    s_mov_b32 s92, s16
    s_cmp_ge_u32 s16, 32
    s_cbranch_scc1 MAIN_wpost
    s_mov_b32 s74, 64
    s_cmp_ge_u32 s18, 4
    s_cbranch_scc1 MAIN_gi0
    s_cmp_lt_u32 s16, 24
    s_cbranch_scc1 MAIN_rec
    s_cmp_lt_u32 s16, 28
    s_cbranch_scc1 MAIN_ini
    s_lshl_b32 s74, s18, 2
    s_add_u32 s74, s74, s16
    s_add_u32 s74, s74, 20
    s_branch MAIN_ini
    """)
    a.label('MAIN_gi0')
    a(f"""
    s_lshl_b32 s16, s16, 2
    s_add_u32 s16, s16, s18
    s_sub_u32 s16, s16, 4
    s_cmp_lt_u32 s16, 24
    s_cselect_b32 s74, s16, s74
    s_sub_u32 s40, s16, 72
    s_cmp_lt_u32 s40, 12
    s_cbranch_scc0 MAIN_gi1
    s_add_u32 s74, s40, 24
    """)
    a.label('MAIN_gi1')
    a(f"""
    s_cmp_lt_u32 s16, 116
    s_cbranch_scc1 MAIN_ini
    s_sub_u32 s74, s16, 80
    """)
    a.label('MAIN_ini')
    a("s_cmp_ge_u32 s74, 64\ns_cbranch_scc1 MAIN_inid")
    k_init.init_all(a, 74)
    if os.environ.get('MAIN_DUMP'): a("s_memtime s[86:87]\ns_waitcnt lgkmcnt(0)\ns_mov_b32 s75, s86")
    a.label('MAIN_inid')
    a("s_cmp_ge_u32 s18, 4\ns_cbranch_scc1 MAIN_gemm")
    k_rec.weight_prefetch(a, 'WPF')
    a(f"s_cmp_ge_u32 s16, 28\ns_cbranch_scc1 {'MAIN_post' if int(os.environ.get('IDLE_POST', 0)) else 'MAIN_end'}")
    k_rec.helper_body(a, 'HLP', fused=True)
    a("s_branch MAIN_end")
    a.label('MAIN_rec')
    k_rec.rec_body(a, 'REC', fused=True)
    a("s_setprio 0")
    dump(a)
    a("s_branch MAIN_post")
    a.label('MAIN_wpost')
    k_init.wait_init(a, 8)
    a("s_branch MAIN_post")
    a.label('MAIN_gemm')
    a(f"""
    s_cmp_ge_u32 s16, 124
    s_cbranch_scc1 MAIN_wpost
    s_cmp_ge_u32 s74, 64
    s_cbranch_scc1 MAIN_go
    """)
    a.label('MAIN_late')
    a(f"""
    s_mov_b32 s46, 2000000
    s_lshl_b32 s40, s16, 2
    s_add_u32 s40, s40, {PB_OFF + 384*4}
    v_mov_b32 v1, s40
    s_cmp_lg_u32 s17, 0
    s_cbranch_scc1 MAIN_late2
    """)
    k_init.wait_init(a, 8)
    a.label('MAIN_latep')
    a(f"""
    buffer_load_dword v2, v1, s[12:15], 0 offen sc1
    s_sub_u32 s46, s46, 1
    s_cbranch_scc1 MAIN_late2
    s_waitcnt vmcnt(0)
    v_cmp_eq_u32 vcc, 0, v2
    s_cbranch_vccz MAIN_late2
    s_sleep 32
    s_branch MAIN_latep
    """)
    a.label('MAIN_late2')
    a("s_waitcnt vmcnt(0)\ns_barrier")
    a.label('MAIN_go')
    a(f"""
    s_cmp_ge_u32 s16, 84
    s_cbranch_scc1 MAIN_small
    """)
    k_big.big_body(a, 'BIG', fused=True)
    dump(a)
    a("s_branch MAIN_post")
    a.label('MAIN_small')
    a("s_sub_u32 s16, s16, 84")
    k_small.small_body(a, 'SM', fused=True)
    dump(a)
    a.label('MAIN_post')
    a(f"""
    s_load_dwordx2 s[4:5], s[0:1], {KA['ws']}
    s_waitcnt lgkmcnt(0) vmcnt(0)
    s_barrier
    s_mov_b32 s46, 8000000
    """)
    srd(a, 12, 4, WS_BYTES)
    NI = 15
    def wait_flags(tag, loads, regs, cmp_s, sleep):
        lp = f"MAIN_w{tag}"
        a.label(lp)
        for ld in loads: a(ld)
        a(f"s_sub_u32 s46, s46, 1\ns_cbranch_scc1 {lp}_x\ns_waitcnt vmcnt(0)")
        regs = list(regs)
        a(f"v_mov_b32 v4, v{regs[0]}")
        k = 1
        while k < len(regs):
            if k + 1 < len(regs):
                a(f"v_min3_u32 v4, v4, v{regs[k]}, v{regs[k+1]}"); k += 2
            else:
                a(f"v_min_u32 v4, v4, v{regs[k]}"); k += 1
        a(f"v_cmp_ge_u32 vcc, s{cmp_s}, v4\ns_cbranch_vccz {lp}_ok\ns_sleep {sleep}\ns_branch {lp}")
        a.label(lp + '_x')
        a("s_mov_b32 s46, 0\ns_waitcnt vmcnt(0)")
        a.label(lp + '_ok')
    a.label('MAIN_ploop')
    a(f"s_mov_b32 s16, {QUE_OFF}")
    ticket(16, 'MAIN_tk2')
    a(f"""
    s_cmp_ge_u32 s16, {NSEG*NI}
    s_cbranch_scc1 {'MAIN_exit' if os.environ.get('MAIN_DUMP') else 'MAIN_end'}
    s_mul_i32 s40, s16, 4370
    s_lshr_b32 s40, s40, 16              ; seg = t/15
    s_mul_i32 s41, s40, {NI}
    s_sub_u32 s19, s16, s41              ; item
    s_mov_b32 s16, s40
    v_lshlrev_b32 v1, 4, v255
    v_min_u32 v2, {31*16}, v1
    v_min_u32 v3, {15*16}, v1
    s_cmp_eq_u32 s19, 0
    s_cbranch_scc1 MAIN_gi
    s_cmp_ge_u32 s19, 5
    s_cbranch_scc1 MAIN_zi
    """)
    a("s_sub_u32 s19, s19, 1\ns_cmp_lg_u32 s17, 0\ns_cbranch_scc1 MAIN_pgo")
    a(f"v_and_b32 v5, 3, v255\nv_lshlrev_b32 v5, 7, v5\ns_mov_b32 s42, {PROG_OFF}\ns_add_u32 s43, s16, 2")
    wait_flags('c', ["buffer_load_dword v8, v5, s[12:15], s42 offen sc1"], [8], 43, int(os.environ.get('POST_SLEEP', 24)))
    a(f"s_mov_b32 s42, {PR_OFF}\ns_mov_b32 s40, {PB_OFF}")
    a("v_lshlrev_b32 v5, 6, v255\nv_lshlrev_b32 v6, 2, v2\ns_add_u32 s43, s42, 4096")
    wait_flags('p', ["buffer_load_dword v24, v5, s[12:15], s42 offen sc1",
                     "buffer_load_dword v25, v6, s[12:15], s43 offen sc1",
                     "buffer_load_dwordx4 v[8:11], v1, s[12:15], s40 offen sc1",
                     "buffer_load_dwordx4 v[12:15], v2, s[12:15], s40 offen offset:1024 sc1"],
               [24, 25] + list(range(8, 16)), 16, 6)
    a.label('MAIN_pgo')
    a("s_barrier")
    k_post2.p_item(a, 'PI')
    a("s_branch MAIN_ploop")
    a.label('MAIN_gi')
    a("s_cmp_lg_u32 s17, 0\ns_cbranch_scc1 MAIN_ggo")
    a(f"s_mov_b32 s41, {PS_OFF+1024}")
    wait_flags('g', ["buffer_load_dwordx4 v[8:11], v3, s[12:15], s41 offen sc1"], range(8, 12), 16, 32)
    a.label('MAIN_ggo')
    a("s_barrier")
    k_post2.g_item(a, 'GI')
    a("s_branch MAIN_ploop")
    a.label('MAIN_zi')
    a("s_sub_u32 s19, s19, 5\ns_cmp_lg_u32 s17, 0\ns_cbranch_scc1 MAIN_zgo")
    a(f"v_and_b32 v5, 3, v255\nv_lshlrev_b32 v5, 7, v5\ns_mov_b32 s42, {PROG_OFF}\ns_add_u32 s43, s16, 2")
    wait_flags('zc', ["buffer_load_dword v8, v5, s[12:15], s42 offen sc1"], [8], 43, int(os.environ.get('POST_SLEEP', 24)))
    a(f"v_min_u32 v5, 4, v255\nv_lshlrev_b32 v5, 2, v5\ns_lshl_b32 s42, s16, 7\ns_add_u32 s42, s42, {PF_OFF}\ns_mov_b32 s43, 0")
    wait_flags('z', ["buffer_load_dword v8, v5, s[12:15], s42 offen sc1"], [8], 43, 6)
    a.label('MAIN_zgo')
    a("s_barrier")
    k_post2.z_item(a, 'ZI')
    a("s_branch MAIN_ploop")
    if os.environ.get('MAIN_DUMP'):
        a("s_branch MAIN_end")
        a.label('MAIN_exit')
        a(f"""
        s_memrealtime s[82:83]
        s_getreg_b32 s93, hwreg(HW_REG_XCC_ID)
        s_and_b32 s93, s93, 7
        s_waitcnt lgkmcnt(0)
        s_lshl_b32 s93, s93, 5
        s_add_u32 s93, s93, s92
        s_lshl_b32 s93, s93, 3
        s_add_u32 s93, s93, {WS_END}+131072
        v_mov_b32 v3, 0
        v_mov_b32 v4, s84
        v_mov_b32 v5, s82
        buffer_store_dwordx2 v[4:5], v3, s[12:15], s93 offen
        """)
    a.label('MAIN_end')
    a("s_endpgm")
    return kernel_desc(name)

def dump(a):
    if not os.environ.get('MAIN_DUMP'): return
    a(f"""
    s_memtime s[94:95]
    s_memrealtime s[82:83]
    s_getreg_b32 s93, hwreg(HW_REG_XCC_ID)
    s_and_b32 s93, s93, 7
    s_waitcnt lgkmcnt(0)
    s_sub_u32 s94, s94, s90
    s_sub_u32 s95, s96, s90
    s_lshl_b32 s93, s93, 5
    s_add_u32 s93, s93, s92
    s_lshl_b32 s93, s93, 3
    s_add_u32 s93, s93, s17
    s_lshl_b32 s93, s93, 6
    s_add_u32 s93, s93, {WS_END}
    v_mov_b32 v3, 0
    """)
    a("s_sub_u32 s75, s75, s90")
    for i in range(12): a(f"v_mov_b32 v{4+i}, s{64+i}" if (k_rec.STAMP >= 0 or i == 11) else f"v_mov_b32 v{4+i}, 0")
    a("s_sub_u32 s88, s88, s90\nv_mov_b32 v16, s94\nv_mov_b32 v17, s95\nv_mov_b32 v18, s88\ns_sub_u32 s82, s82, s84\nv_mov_b32 v19, s82")
    for i in range(4): a(f"buffer_store_dwordx4 v[{4+4*i}:{7+4*i}], v3, s[12:15], s93 offen offset:{16*i}")
```

```python
from asmlib import *
from layout import *
import math, struct
from k_ln import cwindow
import k_init

def f32(x):
    return hex(struct.unpack('<I', struct.pack('<f', x))[0])

L_MEMX = 0
L_SX = 10240
L_PX = 10240
L_PM = 14336
L_ZM = 22528
L_Y = 26624
L_KM = 30720
L_B = 32768
NBL = 32
NBR = 80 - NBL
RP = 208
OOB = 0x7f000000
import os
NST = int(os.environ.get('REC_NST', NSEG))

STAMP = int(os.environ.get('REC_STAMP', -1))
def stamp(a, i):
    if STAMP < 0: return
    sk = a.uid('STMP')
    a(f"s_cmp_lg_u32 s27, {STAMP}\ns_cbranch_scc1 {sk}\ns_memtime s[98:99]\ns_waitcnt lgkmcnt(0)\ns_mov_b32 s{64+i}, s98")
    a.label(sk)

class R:
    def __init__(self, base): self.n = base
    def __call__(self, k=1, align=1):
        self.n = (self.n + align - 1) // align * align
        r = self.n; self.n += k
        assert self.n <= 250
        return r

def lane_fields(a):
    a("""
    v_and_b32 v250, 15, v255
    v_lshrrev_b32 v251, 4, v255
    v_and_b32 v252, 7, v255
    v_bfe_u32 v253, v255, 3, 1
    """)

def cphys(a, v, t):
    a(f"""
    v_lshrrev_b32 v{t}, 13, v{v}
    v_lshlrev_b32 v{t}, 13, v{t}
    v_add_u32 v{v}, v{v}, v{t}
    """)

def check_poison(a, regs, t):
    regs = list(regs)
    if len(regs) == 2:
        a(f"v_max_u32 v{t}, v{regs[0]}, v{regs[1]}")
    else:
        a(f"v_max3_u32 v{t}, v{regs[0]}, v{regs[1]}, v{regs[2]}")
        i = 3
        while i < len(regs):
            if i + 1 < len(regs):
                a(f"v_max3_u32 v{t}, v{t}, v{regs[i]}, v{regs[i+1]}"); i += 2
            else:
                a(f"v_max_u32 v{t}, v{t}, v{regs[i]}"); i += 1
    a(f"v_cmp_eq_u32 vcc, -1, v{t}")

def poll(a, pfx, loads, regs, t):
    lp = a.uid(pfx + '_poll'); dn = a.uid(pfx + '_pdone')
    a.label(lp)
    for ld in loads: a(ld)
    a(f"s_sub_u32 s46, s46, 1\ns_cbranch_scc1 {dn}_x")
    a("s_waitcnt vmcnt(0)")
    check_poison(a, regs, t)
    a(f"s_cbranch_vccnz {lp}")
    a(f"s_branch {dn}")
    a.label(dn + '_x')
    a("s_mov_b32 s46, 0\ns_waitcnt vmcnt(0)")
    a.label(dn)

def load_tile(a, kaoff, nbytes, sbase, raw, T):
    a(f"s_load_dwordx2 s[8:9], s[0:1], {kaoff}\ns_mov_b32 s10, {nbytes}\ns_mov_b32 s11, 0x00020000")
    a(f"""
    v_lshrrev_b32 v{T}, 1, v255
    v_mul_u32_u24 v{T}, 12288, v{T}
    v_and_b32 v{T+1}, 1, v255
    v_lshl_add_u32 v{T}, v{T+1}, 4, v{T}
    s_mov_b32 s40, s{sbase}
    s_waitcnt lgkmcnt(0)
    """)
    for n in range(20):
        a(f"buffer_load_dwordx4 v[{raw+4*n}:{raw+4*n+3}], v{T}, s[8:11], s40 offen")
        a(f"s_add_u32 s40, s40, {32*12288}")

def load_slice(a, kaoff, nbytes, sbase, pitch, nrows, raw, T):
    a(f"s_load_dwordx2 s[8:9], s[0:1], {kaoff}\ns_mov_b32 s10, {nbytes}\ns_mov_b32 s11, 0x00020000\ns_mov_b32 s40, {pitch}\ns_waitcnt lgkmcnt(0)")
    for n in range(nrows * 6 // 64):
        a(f"""
        v_add_u32 v{T}, {64*n}, v255
        v_mul_u32_u24 v{T+1}, 43691, v{T}
        v_lshrrev_b32 v{T+1}, 18, v{T+1}
        v_mul_u32_u24 v{T+2}, 6, v{T+1}
        v_sub_u32 v{T+2}, v{T}, v{T+2}
        v_mul_lo_u32 v{T+1}, v{T+1}, s40
        v_lshl_add_u32 v{T+1}, v{T+2}, 4, v{T+1}
        buffer_load_dwordx4 v[{raw+4*n}:{raw+4*n+3}], v{T+1}, s[8:11], s{sbase} offen
        """)


def slot_bases(a):
    a(f"""
    s_and_b32 s40, s27, 3
    s_add_u32 s41, s27, 2
    s_and_b32 s41, s41, 3
    s_mul_i32 s28, s40, {A_SLOT}
    s_add_u32 s28, s28, s47
    s_mul_i32 s29, s41, {A_SLOT}
    s_add_u32 s29, s29, s47
    s_mul_i32 s30, s40, {C_SLOT}
    s_add_u32 s30, s30, s24
    s_mul_i32 s31, s41, {C_SLOT}
    s_add_u32 s31, s31, s24
    s_mul_i32 s32, s40, {D_SLOT}
    s_add_u32 s32, s32, s48
    s_add_u32 s41, s27, 1
    s_and_b32 s41, s41, 3
    s_mul_i32 s33, s41, {D_SLOT}
    s_add_u32 s33, s33, s48
    s_add_u32 s41, s27, 3
    s_and_b32 s41, s41, 3
    s_mul_i32 s34, s41, {D_SLOT}
    s_add_u32 s34, s34, s48
    """)

def s3_setup(a, vCld, vDst, T):
    a(f"""
    v_lshrrev_b32 v{T}, 3, v255                 ; vgl
    v_mul_u32_u24 v{vCld}, 10240, v{T}
    s_lshl_b32 s40, s55, 9
    s_lshl_b32 s41, s23, 7
    s_add_u32 s41, s41, s40
    v_add_u32 v{vCld}, s41, v{vCld}
    v_lshl_add_u32 v{vCld}, v252, 4, v{vCld}
    """)
    cphys(a, vCld, T + 1)
    a(f"""
    v_lshrrev_b32 v{T}, 2, v252
    s_lshl_b32 s41, s23, 1
    v_add_u32 v{T}, s41, v{T}                   ; cq
    v_and_b32 v{T+1}, 3, v{T}
    v_lshlrev_b32 v{vDst}, 7, v{T+1}
    v_lshrrev_b32 v{T+1}, 2, v{T}
    v_lshl_add_u32 v{vDst}, v{T+1}, 3, v{vDst}
    v_and_b32 v{T+1}, 3, v255
    v_lshl_add_u32 v{vDst}, v{T+1}, 5, v{vDst}
    v_lshrrev_b32 v{T+1}, 5, v255
    v_lshl_add_u32 v{vDst}, v{T+1}, 4, v{vDst}
    v_bfe_u32 v{T+1}, v255, 4, 1
    v_lshl_add_u32 v{vDst}, v{T+1}, 2, v{vDst}
    v_add_u32 v{vDst}, s40, v{vDst}
    v_cmp_eq_u32 vcc, 0, v253
    s_nop 1
    v_cndmask_b32 v{vDst}, v242, v{vDst}, vcc
    """)

def s3_run(a, pfx, vCld, vDst, T):
    poll(a, pfx, [f"buffer_load_dwordx4 v[{T}:{T+3}], v{vCld}, s[12:15], s30 offen sc1"], range(T, T + 4), T + 4)
    V = T + 4
    for j in (0, 2, 1, 3):
        a(f"v_lshlrev_b32 v{V+2*j}, 16, v{T+j}")
        a(f"v_and_b32 v{V+2*j+1}, 0xffff0000, v{T+j}")
    for j in range(4):
        a(f"v_permlane32_swap_b32 v{V+j}, v{V+4+j}")
    a(f"v_pk_add_f32 v[{V}:{V+1}], v[{V}:{V+1}], v[{V+4}:{V+5}]")
    a(f"v_pk_add_f32 v[{V+2}:{V+3}], v[{V+2}:{V+3}], v[{V+6}:{V+7}]")
    a(f"""
    s_nop 1
    v_permlane16_swap_b32 v{V}, v{V+2}
    v_permlane16_swap_b32 v{V+1}, v{V+3}
    v_pk_add_f32 v[{V}:{V+1}], v[{V}:{V+1}], v[{V+2}:{V+3}]
    s_nop 1
    v_add_f32_dpp v{V}, v{V}, v{V} row_ror:8 row_mask:0xf bank_mask:0xf
    v_add_f32_dpp v{V+1}, v{V+1}, v{V+1} row_ror:8 row_mask:0xf bank_mask:0xf
    v_cvt_pk_bf16_f32 v{T}, v{V}, v{V+1}
    v_min_u32 v{T}, s49, v{T}
    buffer_store_dword v{T}, v{vDst}, s[12:15], s33 offen
    """)

CSLEEP = int(os.environ.get('REC_CSLEEP', 11))
CSLEEP0 = int(os.environ.get('REC_CSLEEP0', 4))
ASLEEP = int(os.environ.get('REC_ASLEEP', 6))
SSLEEP = int(os.environ.get('REC_SSLEEP', 3))
A_X2 = 1024
A_M = 1536
A_V = 2048
DSLEEP = int(os.environ.get('REC_DSLEEP', 16))
DUAL = int(os.environ.get('REC_DUAL', 1))
CS2 = int(os.environ.get('REC_CS2', 7))
YDELAY = int(os.environ.get('REC_YDELAY', 0))
ULATE = int(os.environ.get('REC_ULATE', 0))
NOU = int(os.environ.get('REC_NOU', 0))
NOST = int(os.environ.get('REC_NOST', 0))

def rec_body(a, pfx, fused=False):
    L = lambda n: f"{pfx}_{n}"
    lane_fields(a)
    cwindow(a, 24, 4)
    a(f"""
    s_cmp_ge_u32 s16, 12
    s_cselect_b32 s19, 1, 0              ; vgl
    s_mul_i32 s40, s19, 12
    s_sub_u32 s20, s16, s40              ; m (0..11)
    s_mul_i32 s55, s19, 10
    s_add_u32 s55, s55, s20
    s_lshl_b32 s40, s18, 1
    s_add_u32 s19, s19, s40              ; vg
    s_mul_i32 s21, s20, 11
    s_lshr_b32 s21, s21, 5               ; hh = m/3
    s_mul_i32 s40, s21, 3
    s_sub_u32 s22, s20, s40              ; c = m%3
    s_and_b32 s23, s17, 3                ; kq
    s_lshl_b32 s25, s19, 2
    s_add_u32 s26, s25, s23              ; head2
    s_add_u32 s25, s25, s21              ; H1
    s_mul_i32 s47, s19, {A_VG}
    s_add_u32 s47, s47, {A_OFF}
    s_mul_i32 s48, s18, {D_X}
    s_add_u32 s48, s48, {D_OFF}
    s_mov_b32 s49, 0xfffffffe
    s_mov_b32 s46, 4000000
    s_lshl_b32 s56, s22, 2
    s_add_u32 s56, s56, s23
    s_mul_i32 s50, s25, 384
    s_lshl_b32 s40, s56, 5
    s_add_u32 s50, s50, s40
    s_mul_i32 s51, s17, 20480
    v_lshlrev_b32 v249, 4, v255
    v_add_u32 v248, s51, v249
    v_bfe_u32 v247, v255, 2, 2           ; r
    v_and_b32 v245, 3, v255
    v_lshl_add_u32 v246, v251, 2, v247   ; 4g + r
    v_lshlrev_b32 v246, 5, v246
    v_lshl_add_u32 v246, v245, 3, v246
    v_add_u32 v246, s51, v246
    v_lshl_add_u32 v244, v251, 3, v247   ; 8g + r
    v_lshlrev_b32 v244, 7, v244
    v_lshl_add_u32 v244, v245, 3, v244
    v_add_u32 v244, s51, v244
    v_lshlrev_b32 v243, 7, v251
    v_lshl_add_u32 v243, v252, 4, v243   ; g*128 + row*16
    v_mov_b32 v242, {OOB}
    s_mov_b32 s27, 0
    """)
    WB = DM * H * DH * 2
    T = 236
    inlds = lambda ks, t: ks >= 12
    regidx = {}; ldsidx = {}
    for ks in range(20):
        for t in range(4):
            if inlds(ks, t): ldsidx[(ks, t)] = len(ldsidx)
            else: regidx[(ks, t)] = len(regidx)
    assert len(ldsidx) == NBL and len(regidx) == NBR
    MBOX = 8 * 1024
    a(f"""
    s_mul_i32 s58, s23, {NBL*1024}
    s_add_u32 s58, s58, {L_B}
    s_lshl_b32 s51, s23, 13
    s_mov_b32 s76, s51
    s_add_u32 s77, s58, {20*1024}
    s_add_u32 s78, s58, {26*1024}
    s_mov_b32 s44, 0x00ff00ff
    s_mov_b32 s45, 0x00ff00ff
    s_cmp_ge_u32 s17, 4
    s_cbranch_scc1 {L('yw')}
    s_cmp_ge_u32 s20, 10
    s_cbranch_scc1 {L('qkw')}
    """)
    if os.environ.get("X_ST"): a("s_memtime s[98:99]\ns_waitcnt lgkmcnt(0)\ns_mov_b32 s64, s98")
    a(f"""
    s_load_dwordx2 s[8:9], s[0:1], {KA['wo']}
    s_mov_b32 s10, {WB}
    s_mov_b32 s11, 0x00020000
    s_mul_i32 s54, s26, {DH*DM*2}
    s_lshl_b32 s40, s20, 7
    s_add_u32 s54, s54, s40
    v_lshrrev_b32 v{T}, 3, v255
    v_mul_u32_u24 v{T}, 1280, v{T}
    v_lshl_add_u32 v{T}, v252, 4, v{T}
    s_waitcnt lgkmcnt(0)
    """)
    for n in range(24):
        a(f"buffer_load_dwordx4 v[{4*n}:{4*n+3}], v{T}, s[8:11], s54 offen")
        a(f"s_add_u32 s54, s54, {8*1280}")
    if os.environ.get("X_ST"): a("s_memtime s[98:99]\ns_waitcnt lgkmcnt(0)\ns_mov_b32 s65, s98")
    AB, BA, RB, HOLD = 96, 144, 240, 176
    a(f"""
    v_mul_u32_u24 v{T+1}, 384, v250
    v_xor_b32 v{T+2}, v251, v252
    v_lshl_add_u32 v{RB}, v{T+2}, 4, v{T+1}
    v_or_b32 v{T+2}, 4, v251
    v_xor_b32 v{T+2}, v{T+2}, v252
    v_lshl_add_u32 v{RB+1}, v{T+2}, 4, v{T+1}
    v_add_u32 v248, s58, v249
    v_lshl_add_u32 v244, v251, 3, v247
    v_lshlrev_b32 v244, 7, v244
    v_lshl_add_u32 v244, v245, 3, v244
    v_add_u32 v244, s58, v244
    s_waitcnt vmcnt(0)
    """)
    if os.environ.get("X_ST"): a("s_memtime s[98:99]\ns_waitcnt lgkmcnt(0)\ns_mov_b32 s66, s98")
    for half in range(2):
        for n in range(12):
            k = 12 * half + n
            a(f"ds_write_b128 v248, v[{4*k}:{4*k+3}] offset:{1024*n}")
        a("s_waitcnt lgkmcnt(0)")
        for e3 in range(3):
            for t in range(4):
                for hr in range(2):
                    rr = ((3 * half + e3) * 4 + t) * 4 + 2 * hr
                    a(f"ds_read_b64_tr_b16 v[{rr}:{rr+1}], v244 offset:{e3*4096+hr*512+t*32}")
        a("s_waitcnt lgkmcnt(0)")
    def chunk_read(buf):
        a("s_barrier")
        a(f"v_add_u32 v246, s76, v{RB}\nv_add_u32 v244, s76, v{RB+1}")
        a("s_mov_b32 s40, s76\ns_mov_b32 s76, s77\ns_mov_b32 s77, s78\ns_mov_b32 s78, s40")
        ab = AB + 24 * buf
        for es in range(6):
            a(f"ds_read_b128 v[{ab+4*es}:{ab+4*es+3}], v{(246, 244)[es&1]} offset:{128*(es>>1)}")
    def chunk_mfma(tt):
        if os.environ.get('X_NOMFMA'): return
        ab = AB + 24 * tt
        for es in range(6):
            for t in range(4):
                ac = BA + (tt * 4 + t) * 4; w = (es * 4 + t) * 4
                cc = '0' if es == 0 else f"v[{ac}:{ac+3}]"
                a(f"v_mfma_f32_16x16x32_bf16 v[{ac}:{ac+3}], v[{ab+4*es}:{ab+4*es+3}], v[{w}:{w+3}], {cc}")
    if os.environ.get("X_ST"): a("s_memtime s[98:99]\ns_waitcnt lgkmcnt(0)\ns_mov_b32 s67, s98")
    chunk_read(0)
    if os.environ.get("X_ST"): a("s_memtime s[98:99]\ns_waitcnt lgkmcnt(0)\ns_mov_b32 s68, s98")
    a("s_memtime s[80:81]")
    a("s_waitcnt lgkmcnt(0)\ns_mov_b32 s53, 0")
    a.label(L('bloop'))
    chunk_read(1)
    chunk_mfma(0)
    a(f"s_waitcnt lgkmcnt(0)\ns_cmp_eq_u32 s53, 19\ns_cbranch_scc1 {L('blast')}")
    chunk_read(0)
    a.label(L('blast'))
    chunk_mfma(1)
    a(f"""
    s_and_b32 s40, s53, 1
    s_lshl_b32 s40, s40, 12
    s_add_u32 s40, s40, {MBOX}
    s_sub_u32 s41, s53, 12
    s_lshl_b32 s41, s41, 12
    s_cmp_lt_u32 s53, 12
    s_cselect_b32 s40, s40, s41
    v_add_u32 v{RB+2 if False else 242}, s40, v248
    s_nop 3
    """)
    for t in range(4):
        o = 224 + 4 * t
        for t2 in range(2):
            ac = BA + (t2 * 4 + t) * 4
            a(f"v_cvt_pk_bf16_f32 v{o+2*t2}, v{ac}, v{ac+1}")
            a(f"v_cvt_pk_bf16_f32 v{o+2*t2+1}, v{ac+2}, v{ac+3}")
    a(f"s_cmp_ge_u32 s53, 17\ns_cbranch_scc1 {L('bhold')}")
    for t in range(4):
        a(f"ds_write_b128 v242, v[{224+4*t}:{227+4*t}] offset:{1024*t}")
    a(f"s_branch {L('bnext')}")
    a.label(L('bhold'))
    for h in range(3):
        a(f"s_cmp_lg_u32 s53, {17+h}\ns_cbranch_scc1 {L(f'bh{h}')}")
        for r in range(16): a(f"v_mov_b32 v{HOLD+16*h+r}, v{224+r}")
        a.label(L(f'bh{h}'))
    a.label(L('bnext'))
    a(f"s_waitcnt lgkmcnt(0)\ns_add_u32 s53, s53, 1\ns_cmp_lt_u32 s53, 20\ns_cbranch_scc1 {L('bloop')}")
    a(f"v_mov_b32 v242, {OOB}")
    for ks in range(17, 20):
        for t in range(4):
            o = HOLD + ((ks - 17) * 4 + t) * 4
            a(f"ds_write_b128 v248, v[{o}:{o+3}] offset:{1024*ldsidx[(ks,t)]}")
    a("s_waitcnt lgkmcnt(0)")

    a.label(L('qkw'))
    if os.environ.get("X_ST"): a("s_memtime s[98:99]\ns_waitcnt lgkmcnt(0)\ns_mov_b32 s69, s98")
    a(f"""
    v_lshl_add_u32 v246, v251, 2, v247           ; 4g + rr
    v_bfe_u32 v244, v246, 1, 2
    v_xor_b32 v244, s23, v244
    v_lshlrev_b32 v246, 7, v246
    v_lshl_add_u32 v246, v244, 5, v246
    v_lshl_add_u32 v246, v245, 3, v246
    s_barrier
    """)
    for kq in range(4):
        if kq < 3: a(f"s_cmp_lg_u32 s23, {kq}\ns_cbranch_scc1 {L(f'qk{kq+1}')}")
        for r in range(20):
            a("s_barrier")
            for k4 in range(2):
                ks = 2 * (r % 10) + k4
                p = (ks - 5 * kq) % 20
                for hr in range(2):
                    rg = 80 * (r // 10) + 4 * p + 2 * hr
                    a(f"ds_read_b64_tr_b16 v[{rg}:{rg+1}], v246 offset:{(r&3)*8192 + k4*4096 + hr*2048}")
            a("s_waitcnt lgkmcnt(0)")
        if kq < 3:
            a(f"s_branch {L('qkd')}")
            a.label(L(f'qk{kq+1}'))
    a.label(L('qkd'))
    if os.environ.get("X_ST"): a("s_memtime s[98:99]\ns_waitcnt lgkmcnt(0)\ns_mov_b32 s72, s98")
    NFB = 5
    MF, MO, FB, AC = 160, 172, 176 + 4, 200
    QF, KF = 192, 194
    SD, SR = 160, 172
    SC, SL = 160, 172
    PF = 192
    PXR, ZR, PMR, OA = 160, 176, 180, 184
    TT = 198
    UF = 208
    KX = 244
    al = R(224)
    vD, vD3, vCld, vDst, vK0, vSXw, vSst, vKM, vQ1, vQ2, vQ3, vAx, vA2, vAm, vU, vCst, vPMw = [al() for _ in range(17)]
    T = 160
    a(f"""
    s_mul_i32 s40, s23, 2560
    v_add_u32 v{vD3}, s40, v243
    v_lshl_add_u32 v{vD}, v253, 9, v{vD3}
    s_lshl_b32 s41, s56, 10
    v_lshl_add_u32 v{T}, v253, 4, v252
    v_lshlrev_b32 v{vK0}, 4, v{T}
    v_and_b32 v{T+1}, 1, v251
    v_lshrrev_b32 v{T+2}, 1, v251
    v_lshl_add_u32 v{vK0}, v{T+1}, 9, v{vK0}
    v_lshl_add_u32 v{vK0}, v{T+2}, 3, v{vK0}
    v_add_u32 v{vK0}, s41, v{vK0}
    s_lshl_b32 s41, s23, 8
    s_add_u32 s41, s41, {L_KM}
    v_lshlrev_b32 v{vKM}, 7, v{T+1}
    v_lshl_add_u32 v{vKM}, v252, 4, v{vKM}
    v_lshl_add_u32 v{vKM}, v{T+2}, 3, v{vKM}
    v_add_u32 v{vKM}, s41, v{vKM}
    v_cmp_eq_u32 vcc, 0, v253
    s_lshl_b32 s40, s17, 10
    v_add_u32 v{vSXw}, s40, v249
    s_mul_i32 s40, s17, 3072
    v_add_u32 v248, s40, v249
    s_lshl_b32 s40, s17, 2
    v_add_u32 v{vPMw}, s40, v249
    s_mul_i32 s40, s21, {A_HEAD}
    s_cmp_ge_u32 s17, 2
    s_cbranch_scc1 {L('sst2')}
    v_lshl_add_u32 v{vSst}, v251, 4, v252
    s_lshl_b32 s41, s17, 3
    v_add_u32 v{vSst}, s41, v{vSst}
    s_cmp_eq_u32 s22, 2
    s_cbranch_scc1 {L('sstc2')}
    s_lshl_b32 s41, s22, 3
    s_add_u32 s40, s40, s41
    v_lshlrev_b32 v{vSst}, 4, v{vSst}
    s_branch {L('sstc')}
    """)
    a.label(L('sstc2'))
    a(f"s_add_u32 s40, s40, {A_X2}\nv_lshlrev_b32 v{vSst}, 3, v{vSst}")
    a.label(L('sstc'))
    a(f"""
    v_add_u32 v{vSst}, s40, v{vSst}
    v_cndmask_b32 v{vSst}, v242, v{vSst}, vcc
    s_branch {L('sstd')}
    """)
    a.label(L('sst2'))
    a(f"""
    s_lshl_b32 s41, s22, 2
    s_add_u32 s40, s40, s41
    s_add_u32 s40, s40, {A_M}
    v_lshlrev_b32 v{vSst}, 4, v252
    v_lshl_add_u32 v{vSst}, v251, 8, v{vSst}
    v_add_u32 v{vSst}, s40, v{vSst}
    v_cndmask_b32 v{vSst}, v242, v{vSst}, vcc
    v_cmp_gt_u32 vcc, 2, v251
    s_nop 1
    v_cndmask_b32 v{vSst}, v242, v{vSst}, vcc
    """)
    a.label(L('sstd'))
    for qq, vq in ((1, vQ1), (2, vQ2), (3, vQ3)):
        a(f"s_add_u32 s40, s23, {qq}\ns_and_b32 s40, s40, 3\ns_mul_i32 s40, s40, 2560\ns_add_u32 s40, s40, {L_MEMX}\nv_add_u32 v{vq}, s40, v243")
    cs = DH ** -0.5 * math.log2(math.e)
    a(f"""
    s_mul_i32 s40, s23, {A_HEAD}
    v_add_u32 v{vAx}, s40, v249
    v_lshlrev_b32 v{vA2}, 3, v255
    v_add_u32 v{vA2}, s40, v{vA2}
    v_add_u32 v{vAm}, s40, v243
    v_lshlrev_b32 v{vU}, 9, v251
    v_lshl_add_u32 v{vU}, v250, 4, v{vU}
    s_lshl_b32 s36, s19, 2
    s_mul_i32 s36, s36, {UH}
    s_add_u32 s36, s36, {U_OFF}
    s_min_u32 s40, s20, 9
    s_lshl_b32 s40, s40, 12
    s_add_u32 s36, s36, s40
    s_lshr_b32 s40, s23, 1
    s_lshl_b32 s40, s40, 11
    s_add_u32 s36, s36, s40
    s_and_b32 s40, s23, 1
    s_lshl_b32 s40, s40, 8
    s_add_u32 s36, s36, s40
    s_mul_i32 s40, s19, 10240
    s_lshl_b32 s41, s20, 10
    s_add_u32 s40, s40, s41
    s_lshl_b32 s41, s23, 8
    s_add_u32 s40, s40, s41
    v_lshlrev_b32 v{vCst}, 6, v251
    v_lshl_add_u32 v{vCst}, v252, 3, v{vCst}
    v_add_u32 v{vCst}, s40, v{vCst}
    v_lshrrev_b32 v{T}, 13, v{vCst}
    v_lshlrev_b32 v{T}, 13, v{T}
    v_add_u32 v{vCst}, v{vCst}, v{T}
    v_cmp_eq_u32 vcc, 0, v253
    s_nop 1
    v_cndmask_b32 v{vCst}, v242, v{vCst}, vcc
    s_mov_b32 s53, {f32(cs)}
    """)
    s3_setup(a, vCld, vDst, T)
    if os.environ.get("X_ST"): a("s_memtime s[98:99]\ns_waitcnt lgkmcnt(0)\ns_mov_b32 s73, s98")
    k_init.wait_init(a, 160, out_par=41)
    a("s_and_b32 s41, s41, 8192\ns_add_u32 s24, s24, s41")
    if STAMP >= 0:
        for i in range(12): a(f"s_mov_b32 s{64+i}, 0")
    a(f"""
    s_mul_i32 s35, s25, {PH}
    s_add_u32 s35, s35, {K_OFF}
    s_memtime s[88:89]
    s_barrier
    s_memtime s[96:97]
    s_waitcnt lgkmcnt(0)
    s_cmp_eq_u32 s17, 1
    s_cselect_b32 s88, s80, s88
    s_waitcnt lgkmcnt(0)
    s_setprio 3
    """)
    a.label(L('loopA'))
    slot_bases(a)
    stamp(a, 0)
    poll(a, pfx, [f"buffer_load_dwordx4 v[{MF}:{MF+3}], v{vD}, s[12:15], s32 offen sc1",
                  f"buffer_load_dwordx4 v[{MF+4}:{MF+7}], v{vD}, s[12:15], s32 offen offset:1024 sc1",
                  f"buffer_load_dwordx4 v[{MF+8}:{MF+11}], v{vD3}, s[12:15], s32 offen offset:2048 sc1"],
         range(MF, MF + 12), TT)
    stamp(a, 1)
    def mm(p, f):
        for ti, wb in enumerate((0, 80)):
            c = '0' if p == 0 else f"v[{AC+4*ti}:{AC+4*ti+3}]"
            a(f"v_mfma_f32_16x16x32_bf16 v[{AC+4*ti}:{AC+4*ti+3}], v[{wb+4*p}:{wb+4*p+3}], v[{f}:{f+3}], {c}")
    def rd(p):
        nb = FB + 4 * ((p - 5) % NFB)
        a(f"ds_read_b128 v[{nb}:{nb+3}], v{(vQ1, vQ2, vQ3)[p//5-1]} offset:{512*(p%5)}")
    a(f"""
    ds_write_b128 v{vD}, v[{MF}:{MF+3}] offset:{L_MEMX}
    ds_write_b128 v{vD}, v[{MF+4}:{MF+7}] offset:{L_MEMX+1024}
    ds_write_b128 v{vD3}, v[{MF+8}:{MF+11}] offset:{L_MEMX+2048}
    """)
    mm(0, MF)
    for j in range(4): a(f"v_mov_b32_dpp v{MO+j}, v{MF+j} row_ror:8 row_mask:0xf bank_mask:0xf")
    mm(2, MF + 4)
    for j in range(4, 8): a(f"v_mov_b32_dpp v{MO+j}, v{MF+j} row_ror:8 row_mask:0xf bank_mask:0xf")
    a("s_waitcnt lgkmcnt(0)\ns_barrier")
    stamp(a, 2)
    for p in range(5, 5 + NFB - 1): rd(p)
    mm(4, MF + 8); mm(1, MO); mm(3, MO + 4)
    late = [f"buffer_load_dwordx2 v[{KX}:{KX+1}], v{vK0}, s[12:15], s35 offen",
            f"buffer_load_dwordx2 v[{KX+2}:{KX+3}], v{vK0}, s[12:15], s35 offen offset:128",
            f"s_add_u32 s35, s35, {0 if NOU else P_SEG}"]
    if not ULATE:
        for hd in range(4):
            late.append(f"s_add_u32 s40, s36, {hd*UH}\nbuffer_load_dwordx4 v[{UF+4*hd}:{UF+4*hd+3}], v{vU}, s[12:15], s40 offen")
        late.append(f"s_add_u32 s36, s36, {0 if NOU else U_SEG}")
    for p in range(5, 20):
        a(f"s_waitcnt lgkmcnt({min(NFB-2, 19-p)})")
        mm(p, FB + 4 * ((p - 5) % NFB))
        if p + NFB - 1 < 20: rd(p + NFB - 1)
        if late: a(late.pop(0))
    stamp(a, 3)
    a(f"""
    s_nop 6
    v_cvt_pk_bf16_f32 v{QF}, v{AC}, v{AC+1}
    v_cvt_pk_bf16_f32 v{QF+1}, v{AC+2}, v{AC+3}
    v_cvt_pk_bf16_f32 v{KF}, v{AC+4}, v{AC+5}
    v_cvt_pk_bf16_f32 v{KF+1}, v{AC+6}, v{AC+7}
    s_waitcnt vmcnt({0 if ULATE else 4})
    v_mfma_f32_16x16x16_bf16 v[{SD}:{SD+3}], v[{KX}:{KX+1}], v[{QF}:{QF+1}], 0
    v_mfma_f32_16x16x16_bf16 v[{SD+4}:{SD+7}], v[{KX+2}:{KX+3}], v[{QF}:{QF+1}], 0
    v_mfma_f32_16x16x16_bf16 v[{SD+8}:{SD+11}], v[{KF}:{KF+1}], v[{QF}:{QF+1}], 0
    s_nop 5
    ds_write_b128 v248, v[{SD}:{SD+3}] offset:{L_SX}
    ds_write_b128 v248, v[{SD+4}:{SD+7}] offset:{L_SX+1024}
    ds_write_b128 v248, v[{SD+8}:{SD+11}] offset:{L_SX+2048}
    s_waitcnt lgkmcnt(0)
    s_barrier
    """)
    stamp(a, 4)
    a(f"""
    s_cmp_eq_u32 s17, 3
    s_cbranch_scc1 {L('std')}
    ds_read_b128 v[{SD}:{SD+3}], v{vSXw} offset:{L_SX}
    ds_read_b128 v[{SD+4}:{SD+7}], v{vSXw} offset:{L_SX+3072}
    ds_read_b128 v[{SR}:{SR+3}], v{vSXw} offset:{L_SX+6144}
    ds_read_b128 v[{SR+4}:{SR+7}], v{vSXw} offset:{L_SX+9216}
    s_waitcnt lgkmcnt(2)
    v_add_f32 v{SD}, v{SD}, v{SD+4}
    v_add_f32 v{SD+1}, v{SD+1}, v{SD+5}
    v_add_f32 v{SD+2}, v{SD+2}, v{SD+6}
    v_add_f32 v{SD+3}, v{SD+3}, v{SD+7}
    s_waitcnt lgkmcnt(0)
    v_add_f32 v{SR}, v{SR}, v{SR+4}
    v_add_f32 v{SR+1}, v{SR+1}, v{SR+5}
    v_add_f32 v{SR+2}, v{SR+2}, v{SR+6}
    v_add_f32 v{SR+3}, v{SR+3}, v{SR+7}
    v_add_f32 v{SD}, v{SD}, v{SR}
    v_add_f32 v{SD+1}, v{SD+1}, v{SR+1}
    v_add_f32 v{SD+2}, v{SD+2}, v{SR+2}
    v_add_f32 v{SD+3}, v{SD+3}, v{SR+3}
    v_cvt_pk_bf16_f32 v{SR}, v{SD}, v{SD+1}
    v_cvt_pk_bf16_f32 v{SR+1}, v{SD+2}, v{SD+3}
    v_min_u32 v{SR}, s49, v{SR}
    v_min_u32 v{SR+1}, s49, v{SR+1}
    s_cmp_eq_u32 s17, 2
    s_cbranch_scc1 {L('st2')}
    buffer_store_dwordx2 v[{SR}:{SR+1}], v{vSst}, s[12:15], s28 offen
    s_branch {L('std')}
    """)
    a.label(L('st2'))
    a(f"""
    buffer_store_dword v{SR}, v{vSst}, s[12:15], s28 offen
    buffer_store_dword v{SR+1}, v{vSst}, s[12:15], s28 offen offset:128
    """)
    a.label(L('std'))
    stamp(a, 5)
    a(f"s_mov_b64 exec, s[44:45]\nds_write_b64 v{vKM}, v[{KF}:{KF+1}]\ns_mov_b64 exec, -1")
    a(f"s_cmp_ge_u32 s20, 10\ns_cbranch_scc1 {L('endA')}")
    if ULATE:
        for hd in range(4):
            a(f"s_add_u32 s40, s36, {hd*UH}\nbuffer_load_dwordx4 v[{UF+4*hd}:{UF+4*hd+3}], v{vU}, s[12:15], s40 offen")
        a(f"s_add_u32 s36, s36, {0 if NOU else U_SEG}")
    if SSLEEP: a(f"s_sleep {SSLEEP}")
    poll(a, pfx, [f"buffer_load_dwordx4 v[{SC}:{SC+3}], v{vAx}, s[12:15], s28 offen sc1",
                  f"buffer_load_dwordx2 v[{SC+4}:{SC+5}], v{vA2}, s[12:15], s28 offen offset:{A_X2} sc1",
                  f"buffer_load_dwordx3 v[{SC+8}:{SC+10}], v{vAm}, s[12:15], s28 offen offset:{A_M} sc1"],
         list(range(SC, SC + 6)) + list(range(SC + 8, SC + 11)), TT)
    stamp(a, 7)
    src = list(range(SC, SC + 6)) + list(range(SC + 8, SC + 11))
    for j, sreg in enumerate(src):
        a(f"v_lshlrev_b32 v{SL+2*j}, 16, v{sreg}")
        a(f"v_and_b32 v{SL+2*j+1}, 0xffff0000, v{sreg}")
    pk = lambda d, x, y: a(f"v_add_f32 v{d}, v{x}, v{y}\nv_add_f32 v{d+1}, v{x+1}, v{y+1}")
    pk(SL, SL, SL + 4); pk(SL + 2, SL + 2, SL + 6); pk(SL + 4, SL + 12, SL + 14)
    pk(SL, SL, SL + 8); pk(SL + 2, SL + 2, SL + 10); pk(SL + 4, SL + 4, SL + 16)
    mx, t2, sm = TT, TT + 1, TT + 2
    a(f"""
    v_max3_f32 v{mx}, v{SL}, v{SL+1}, v{SL+2}
    v_max3_f32 v{t2}, v{SL+3}, v{SL+4}, v{SL+5}
    v_max_f32 v{mx}, v{mx}, v{t2}
    s_nop 1
    v_max_f32_dpp v{mx}, v{mx}, v{mx} row_ror:8 row_mask:0xf bank_mask:0xf
    v_mov_b32 v{t2}, v{mx}
    s_nop 1
    v_permlane32_swap_b32 v{mx}, v{t2}
    v_max_f32 v{mx}, v{mx}, v{t2}
    v_mov_b32 v{t2}, v{mx}
    s_nop 1
    v_permlane16_swap_b32 v{mx}, v{t2}
    v_max_f32 v{mx}, v{mx}, v{t2}
    v_mul_f32 v{mx}, s53, v{mx}
    """)
    for j in range(6):
        a(f"v_fma_f32 v{SL+j}, v{SL+j}, s53, -v{mx}")
    for j in range(6):
        a(f"v_exp_f32 v{SL+j}, v{SL+j}")
    a(f"""
    v_add_f32 v{sm}, v{SL}, v{SL+2}
    v_add_f32 v{sm+1}, v{SL+1}, v{SL+3}
    v_add_f32 v{t2}, v{SL+4}, v{SL+5}
    v_add_f32 v{sm}, v{sm}, v{sm+1}
    v_fmac_f32 v{sm}, 0.5, v{t2}
    s_nop 1
    v_add_f32_dpp v{sm}, v{sm}, v{sm} row_ror:8 row_mask:0xf bank_mask:0xf
    v_mov_b32 v{t2}, v{sm}
    s_nop 1
    v_permlane32_swap_b32 v{sm}, v{t2}
    v_add_f32 v{sm}, v{sm}, v{t2}
    v_mov_b32 v{t2}, v{sm}
    s_nop 1
    v_permlane16_swap_b32 v{sm}, v{t2}
    v_add_f32 v{sm}, v{sm}, v{t2}
    v_rcp_f32 v{sm}, v{sm}
    s_nop 0
    v_mul_f32 v{SL}, v{SL}, v{sm}
    v_mul_f32 v{SL+1}, v{SL+1}, v{sm}
    v_mul_f32 v{SL+2}, v{SL+2}, v{sm}
    v_mul_f32 v{SL+3}, v{SL+3}, v{sm}
    v_mul_f32 v{SL+4}, v{SL+4}, v{sm}
    v_mul_f32 v{SL+5}, v{SL+5}, v{sm}
    v_cvt_pk_bf16_f32 v{PF}, v{SL}, v{SL+1}
    v_cvt_pk_bf16_f32 v{PF+1}, v{SL+2}, v{SL+3}
    v_cvt_pk_bf16_f32 v{PF+4}, v{SL+4}, v{SL+5}
    v_mov_b32_dpp v{PF+2}, v{PF} row_ror:8 row_mask:0xf bank_mask:0xf
    v_mov_b32_dpp v{PF+3}, v{PF+1} row_ror:8 row_mask:0xf bank_mask:0xf
    ds_write_b32 v{vPMw}, v{PF+4} offset:{L_PM}
    ds_write_b128 v{vSXw}, v[{PF}:{PF+3}] offset:{L_PX}
    """)
    stamp(a, 8)
    a("s_waitcnt lgkmcnt(0)\ns_barrier")
    stamp(a, 9)
    for hd in range(4):
        a(f"ds_read_b128 v[{PXR+4*hd}:{PXR+4*hd+3}], v249 offset:{L_PX+1024*hd}")
    a(f"ds_read_b128 v[{PMR}:{PMR+3}], v249 offset:{L_PM}")
    a(f"ds_read_b128 v[{ZR}:{ZR+3}], v{vSXw} offset:{L_ZM}")
    for hd in range(4):
        a(f"s_waitcnt lgkmcnt({5-hd})")
        c = '0' if hd == 0 else f"v[{OA}:{OA+3}]"
        a(f"v_mfma_f32_16x16x32_bf16 v[{OA}:{OA+3}], v[{UF+4*hd}:{UF+4*hd+3}], v[{PXR+4*hd}:{PXR+4*hd+3}], {c}")
    a(f"""
    s_waitcnt lgkmcnt(0)
    v_mfma_f32_16x16x32_bf16 v[{OA}:{OA+3}], v[{ZR}:{ZR+3}], v[{PMR}:{PMR+3}], v[{OA}:{OA+3}]
    s_nop 7
    v_cvt_pk_bf16_f32 v{TT}, v{OA}, v{OA+1}
    v_cvt_pk_bf16_f32 v{TT+1}, v{OA+2}, v{OA+3}
    v_min_u32 v{TT}, s49, v{TT}
    v_min_u32 v{TT+1}, s49, v{TT+1}
    buffer_store_dwordx2 v[{TT}:{TT+1}], v{vCst}, s[12:15], s30 offen sc1
    """)
    stamp(a, 10)
    if DUAL:
        a(f"s_sleep {CS2}")
        a(f"s_cmp_eq_u32 s27, {NST-1}\ns_cbranch_scc1 {L('endA')}")
        s3_run(a, pfx, vCld, vDst, 160)
    else:
        a(f"s_sleep {DSLEEP}")
    a.label(L('endA'))
    stamp(a, 11)
    a(f"""
    s_add_u32 s27, s27, 1
    s_cmp_lt_u32 s27, {NST}
    s_cbranch_scc1 {L('loopA')}
    s_waitcnt lgkmcnt(0)
    s_barrier
    """)
    if fused: a("s_barrier")
    a(f"s_branch {L('done')}")

    a.label(L('yw'))
    a(f"""
    s_cmp_ge_u32 s20, 10
    s_cbranch_scc1 {L('norecv')}
    v_add_u32 v248, s58, v249
    s_load_dwordx2 s[8:9], s[0:1], {KA['wv']}
    s_mov_b32 s10, {WB}
    s_mov_b32 s11, 0x00020000
    s_mul_i32 s52, s26, 384
    """)
    DV = 200; T = 236
    for n in range(6):
        a(f"""
        v_add_u32 v{T+1}, {64*n}, v255
        v_mul_u32_u24 v{T+2}, 2731, v{T+1}
        v_lshrrev_b32 v{T+2}, 16, v{T+2}
        v_mul_u32_u24 v{T+3}, 24, v{T+2}
        v_sub_u32 v{T+3}, v{T+1}, v{T+3}
        v_and_b32 v{T+4}, 7, v{T+2}
        v_xor_b32 v{T+3}, v{T+3}, v{T+4}
        v_mul_u32_u24 v{T+2}, 12288, v{T+2}
        v_lshl_add_u32 v{DV+n}, v{T+3}, 4, v{T+2}
        """)
    a("s_waitcnt lgkmcnt(0)")
    def bdma(c):
        if os.environ.get('X_NODMA'): return
        a(f"s_mov_b32 s43, s{76+c%3}")
        for n in range(6):
            a(f"s_mov_b32 m0, s43\ns_add_u32 s43, s43, 1024")
            a(f"buffer_load_dwordx4 v{DV+n}, s[8:11], s52 offen lds")
        a(f"s_add_u32 s52, s52, {16*12288}")
    bdma(0); bdma(1)
    for c in range(40):
        a(f"s_waitcnt vmcnt({6 if c < 39 else 0})\ns_barrier")
        if c + 2 < 40: bdma(c + 2)
        if c >= 3 and c % 2 == 1 and (c - 3) // 2 < 12:
            ks = (c - 3) // 2
            for t in range(4):
                if (ks, t) in regidx:
                    f = regidx[(ks, t)]
                    a(f"ds_read_b128 v[{4*f}:{4*f+3}], v248 offset:{MBOX + (ks&1)*4096 + 1024*t}")
            a("s_waitcnt lgkmcnt(0)")
    a.label(L('norecv'))
    a("s_memtime s[88:89]\ns_waitcnt lgkmcnt(0)")
    a(f"""
    s_load_dwordx2 s[8:9], s[0:1], {KA['wq']}
    s_load_dwordx2 s[60:61], s[0:1], {KA['wk']}
    s_mov_b32 s10, {WB}
    s_mov_b32 s11, 0x00020000
    s_mov_b32 s62, {WB}
    s_mov_b32 s63, 0x00020000
    v_lshrrev_b32 v200, 3, v255
    v_bfe_u32 v201, v200, 1, 2
    v_lshlrev_b32 v201, 1, v201
    v_xor_b32 v201, v201, v252
    v_mul_u32_u24 v200, 12288, v200
    v_lshl_add_u32 v200, v201, 4, v200
    s_mul_i32 s54, s25, 384
    s_lshl_b32 s40, s22, 7
    s_add_u32 s54, s54, s40
    s_mul_i32 s40, s23, {16*12288}
    s_add_u32 s54, s54, s40
    s_lshl_b32 s57, s23, 11
    s_waitcnt lgkmcnt(0)
    s_barrier
    """)
    def qdma(r):
        sr = 8 if r < 10 else 60
        a(f"s_add_u32 s52, s54, {(r%10)*64*12288}\ns_add_u32 s43, s57, {(r&3)*8192}")
        for n in range(2):
            a(f"s_mov_b32 m0, s43\ns_add_u32 s43, s43, 1024")
            a(f"buffer_load_dwordx4 v200, s[{sr}:{sr+3}], s52 offen lds")
            a(f"s_add_u32 s52, s52, {8*12288}")
    qdma(0); qdma(1); qdma(2)
    for r in range(20):
        a(f"s_waitcnt vmcnt({2*min(2, 19-r)})\ns_barrier")
        if r + 3 < 20: qdma(r + 3)
    a(f"s_cmp_lg_u32 s16, 11\ns_cbranch_scc1 {L('nopb')}\ns_cmp_lg_u32 s18, 0\ns_cbranch_scc1 {L('nopb')}\ns_cmp_lg_u32 s17, 7\ns_cbranch_scc1 {L('nopb')}")
    k_init.probe(a)
    a.label(L('nopb'))
    YFB = 4 * NBR
    YWB = YFB + 16
    YA = YWB + 16
    vZw, vYw, vCld, vDst, vBl = 244, 245, 246, 247, 248
    vRd, vYr, vMem = 250, 251, 252
    T = YFB
    a(f"""
    v_lshlrev_b32 v{vZw}, 9, v251
    v_lshl_add_u32 v{vZw}, v250, 4, v{vZw}
    s_lshl_b32 s40, s23, 2
    s_add_u32 s40, s40, {L_ZM}
    v_add_u32 v{vZw}, s40, v{vZw}
    v_lshlrev_b32 v{vYw}, 8, v251
    v_lshl_add_u32 v{vYw}, v250, 3, v{vYw}
    s_lshl_b32 s40, s23, 10
    s_add_u32 s40, s40, {L_Y}
    v_add_u32 v{vYw}, s40, v{vYw}
    s_mov_b32 s79, s40
    v_add_u32 v{vBl}, s58, v249
    s_mul_i32 s40, s21, {A_HEAD}
    s_lshl_b32 s61, s22, 3
    s_cmp_eq_u32 s22, 2
    s_cselect_b32 s61, {A_X2}, s61
    s_cselect_b32 s62, 3, 4
    s_add_u32 s61, s61, s40
    s_lshl_b32 s63, s22, 2
    s_add_u32 s63, s63, s40
    s_add_u32 s63, s63, {A_M}
    s_lshl_b32 s52, s55, 9
    s_mul_i32 s54, s19, 10240
    s_lshl_b32 s42, s20, 10
    s_add_u32 s54, s54, s42
    s_lshr_b32 s42, s54, 13
    s_lshl_b32 s42, s42, 13
    s_add_u32 s54, s54, s42
    """)
    s3_setup(a, vCld, vDst, T)
    a(f"""
    v_mov_b32 v{vMem}, v243
    v_add_u32 v{vYr}, s79, v249
    v_and_b32 v{vRd}, 31, v255
    v_lshlrev_b32 v{vRd}, 2, v{vRd}
    s_lshl_b32 s40, s18, 7
    s_add_u32 s59, s40, {PROG_OFF}
    s_add_u32 s40, s40, {RDY_OFF}
    v_add_u32 v{vRd}, s40, v{vRd}
    s_mul_i32 s60, s18, 24
    s_add_u32 s60, s60, s16
    s_lshl_b32 s60, s60, 6
    s_add_u32 s60, s60, {PR_OFF}
    s_mul_i32 s38, s26, {YH}
    s_add_u32 s38, s38, {Y_OFF - Y_SEG}
    s_lshl_b32 s40, s20, 10
    s_add_u32 s38, s38, s40
    s_mul_i32 s37, s25, {KMH}
    s_add_u32 s37, s37, {KM_OFF - KM_SEG}
    s_lshl_b32 s40, s22, 10
    s_add_u32 s37, s37, s40
    """)
    TT = YA
    def ready(need_expr):
        if not fused: return
        lp = a.uid(pfx + '_rlp'); ok = a.uid(pfx + '_rok')
        a(need_expr)
        a.label(lp)
        a(f"""
        buffer_load_dword v{TT}, v{vRd}, s[12:15], 0 offen sc1
        s_sub_u32 s46, s46, 1
        s_cbranch_scc1 {ok}_x
        s_waitcnt vmcnt(0)
        v_cmp_gt_u32 vcc, s57, v{TT}
        s_cbranch_vccz {ok}
        s_sleep 2
        s_branch {lp}
        """)
        a.label(ok + '_x')
        a("s_mov_b32 s46, 0")
        a.label(ok)
    def flush(FT):
        sk = a.uid(pfx + '_fl')
        a(f"ds_read_b128 v[{FT}:{FT+3}], v{vYr}")
        a(f"ds_read_b128 v[{FT+4}:{FT+7}], v249 offset:{L_KM}")
        a(f"s_waitcnt lgkmcnt(0)\ns_cmp_ge_u32 s20, 10\ns_cbranch_scc1 {sk}_a")
        a(f"buffer_store_dwordx4 v[{FT}:{FT+3}], v249, s[12:15], s38 offen sc1")
        a.label(sk + '_a')
        a(f"s_cmp_lg_u32 s17, 4\ns_cbranch_scc1 {sk}_b")
        a(f"buffer_store_dwordx4 v[{FT+4}:{FT+7}], v249, s[12:15], s37 offen sc1")
        a.label(sk + '_b')
        a(f"s_add_u32 s38, s38, {Y_SEG}\ns_add_u32 s37, s37, {KM_SEG}")
    def word_store(val_s, addr_s, t):
        a(f"v_mov_b32 v{t}, s{val_s}\nv_mov_b32 v{t+1}, s{addr_s}\nbuffer_store_dword v{t}, v{t+1}, s[12:15], 0 offen sc1")
    k_init.wait_init(a, YA, out_par=41)
    a("s_and_b32 s41, s41, 8192\ns_add_u32 s24, s24, s41")
    if STAMP >= 0:
        for i in range(12): a(f"s_mov_b32 s{64+i}, 0")
    ready("s_mov_b32 s57, 1")
    a("s_barrier\ns_memtime s[96:97]\ns_waitcnt lgkmcnt(0)\ns_setprio 1")
    a.label(L('loopS'))
    slot_bases(a)
    stamp(a, 0)
    a("s_barrier")
    stamp(a, 2)
    flush(YA)
    if fused:
        a(f"s_cmp_lg_u32 s17, 7\ns_cbranch_scc1 {L('nopr')}\ns_cmp_lt_u32 s27, 2\ns_cbranch_scc1 {L('nopr')}\ns_sub_u32 s40, s27, 1")
        word_store(40, 60, YA + 8)
        a.label(L('nopr'))
    a(f"s_cmp_lg_u32 s17, 6\ns_cbranch_scc1 {L('nopois')}")
    PO = YA + 12
    for j in range(4): a(f"v_mov_b32 v{PO+j}, -1")
    a(f"""
    v_lshlrev_b32 v{YA+8}, s62, v255
    v_and_b32 v{YA+9}, 0x1ff, v249
    s_add_u32 s40, s29, s61
    s_add_u32 s41, s29, s63
    buffer_store_dwordx2 v[{PO}:{PO+1}], v{YA+8}, s[12:15], s40 offen
    buffer_store_dword v{PO}, v{YA+9}, s[12:15], s41 offen
    s_cmp_ge_u32 s20, 10
    s_cbranch_scc1 {L('nopois')}
    s_add_u32 s40, s31, s54
    s_add_u32 s41, s34, s52
    buffer_store_dwordx4 v[{PO}:{PO+3}], v249, s[12:15], s40 offen sc1
    buffer_store_dwordx4 v[{PO}:{PO+3}], v{YA+9}, s[12:15], s41 offen
    """)
    a.label(L('nopois'))
    a(f"s_cmp_lg_u32 s17, 5\ns_cbranch_scc1 {L('noprog')}\ns_cmp_lg_u32 s16, 11\ns_cbranch_scc1 {L('noprog')}\ns_add_u32 s40, s27, 1")
    word_store(40, 59, YA + 8)
    if os.environ.get('MAIN_DUMP'):
        a(f"""
        s_memtime s[98:99]
        s_memrealtime s[100:101]
        s_waitcnt lgkmcnt(0)
        v_mov_b32 v{YA+2}, s98
        v_mov_b32 v{YA+3}, s100
        s_lshl_b32 s40, s18, 6
        s_add_u32 s40, s40, s27
        s_lshl_b32 s40, s40, 3
        s_add_u32 s40, s40, {WS_END+140000//16*16}
        v_mov_b32 v{YA+1}, 0
        buffer_store_dwordx2 v[{YA+2}:{YA+3}], v{YA+1}, s[12:15], s40 offen
        """)
    a.label(L('noprog'))
    a(f"s_cmp_lt_u32 s20, 10\ns_cbranch_scc1 {L('yjob')}\ns_barrier\ns_branch {L('endS')}")
    a.label(L('yjob'))
    B1AT = int(os.environ.get('REC_B1S', 4))
    issued = []
    def lds(tag, ins): a(ins); issued.append(tag)
    def need(tag):
        k = len(issued) - 1 - issued.index(tag)
        a(f"s_waitcnt lgkmcnt({min(k, 15)})")
    pairs_ = [(0, 12), (1, 13), (2, 14), (3, 15), (4, 16), (5, 17), (6, 18), (7, 19), (8, 9), (10, 11)]
    seq = []
    for (ka, kb) in pairs_[:8]:
        for t in range(4): seq += [(ka, t), (kb, t)]
    for t in range(4):
        seq += [(k, t) for k in (8, 9, 10, 11)]
    kseq = [k for p in pairs_ for k in p]
    mbuf = {k: YFB + 4 * (n % 4) for n, k in enumerate(kseq)}
    def rmem(ks): lds(('m', ks), f"ds_read_b128 v[{mbuf[ks]}:{mbuf[ks]+3}], v{vMem} offset:{L_MEMX+512*ks}")
    lkeys = [k for k in seq if k in ldsidx]
    lbuf = {k: YWB + 4 * (n % 4) for n, k in enumerate(lkeys)}
    nxt = [0]
    def rb_upto(n):
        while nxt[0] < min(n, len(lkeys)):
            k = lkeys[nxt[0]]
            lds(('b', k), f"ds_read_b128 v[{lbuf[k]}:{lbuf[k]+3}], v{vBl} offset:{1024*ldsidx[k]}"); nxt[0] += 1
    rmem(kseq[0]); rmem(kseq[1]); rb_upto(4)
    seen = set()
    ZO = YWB
    def zout(t):
        a(f"v_cvt_pk_bf16_f32 v{ZO+2*t}, v{YA+4*t}, v{YA+4*t+1}")
        a(f"v_cvt_pk_bf16_f32 v{ZO+2*t+1}, v{YA+4*t+2}, v{YA+4*t+3}")
        a("s_mov_b32 exec_hi, 0")
        a(f"ds_write_b32 v{vZw}, v{ZO+2*t} offset:{1024*t}")
        a(f"ds_write_b32 v{vZw}, v{ZO+2*t+1} offset:{1024*t+256}")
        a("s_mov_b32 exec_hi, -1")
    for n, (ks, t) in enumerate(seq):
        pi = n // 8
        if n % 8 == 0:
            if 2 * pi == B1AT or 2 * pi == B1AT + 1 and B1AT % 2: a("s_barrier")
            if pi + 1 < len(pairs_): rmem(kseq[2 * pi + 2]); rmem(kseq[2 * pi + 3])
        if ('m', ks) not in seen:
            need(('m', ks)); seen.add(('m', ks))
        if (ks, t) in ldsidx:
            need(('b', (ks, t))); w = lbuf[(ks, t)]
        else:
            w = 4 * regidx[(ks, t)]
        fb = mbuf[ks]
        c = '0' if n < 8 and n % 2 == 0 else f"v[{YA+4*t}:{YA+4*t+3}]"
        a(f"v_mfma_f32_16x16x32_bf16 v[{YA+4*t}:{YA+4*t+3}], v[{fb}:{fb+3}], v[{w}:{w+3}], {c}")
        if (ks, t) in ldsidx: rb_upto(lkeys.index((ks, t)) + 5)
        if n >= 64 and ks == 11 and t >= 1:
            a("s_nop 3")
            zout(t - 1)
    stamp(a, 7)
    a("s_nop 1")
    zout(3)
    a("s_mov_b32 exec_hi, 0")
    stamp(a, 8)
    a("s_waitcnt lgkmcnt(0)\ns_barrier")
    stamp(a, 9)
    for t in range(4):
        a(f"ds_write_b64 v{vYw}, v[{ZO+2*t}:{ZO+2*t+1}] offset:{(t>>1)*512+(t&1)*128}")
    a("s_mov_b32 exec_hi, -1\ns_waitcnt lgkmcnt(0)")
    a(f"s_cmp_eq_u32 s27, {NST-1}\ns_cbranch_scc1 {L('endS')}\ns_sleep {CSLEEP}")
    s3_run(a, pfx, vCld, vDst, YA)
    a.label(L('endS'))
    stamp(a, 11)
    ready(f"s_add_u32 s57, s27, 2\ns_min_u32 s57, s57, {NSEG}")
    a(f"s_add_u32 s27, s27, 1\ns_cmp_lt_u32 s27, {NST}\ns_cbranch_scc1 {L('loopS')}")
    a("s_barrier")
    flush(YA)
    if fused:
        a(f"s_cmp_lg_u32 s17, 5\ns_cbranch_scc1 {L('nofp')}\ns_cmp_lg_u32 s16, 11\ns_cbranch_scc1 {L('nofp')}\ns_mov_b32 s40, {NSEG+2}")
        word_store(40, 59, YA + 8)
        a.label(L('nofp'))
        a(f"s_waitcnt vmcnt(0)\ns_barrier\ns_cmp_lg_u32 s17, 7\ns_cbranch_scc1 {L('done')}")
        word_store(27, 60, YA + 8)
    a.label(L('done'))

def weight_prefetch(a, pfx):
    WB = DM * H * DH * 2
    a(f"""
    s_sub_u32 s19, s16, 24
    s_lshl_b32 s19, s19, 3
    s_add_u32 s19, s19, s17              ; gw 0..63
    s_mul_i32 s20, s19, 12288
    s_mul_i32 s40, s18, 3072
    s_add_u32 s20, s20, s40
    v_lshlrev_b32 v1, 4, v255
    s_mov_b32 s10, {WB}
    s_mov_b32 s11, 0x00020000
    """)
    def sweep(nm, nrows_per_wave, stride_rows):
        a(f"s_load_dwordx2 s[8:9], s[0:1], {KA[nm]}\ns_mov_b32 s21, s20\ns_mov_b32 s22, 0\ns_waitcnt lgkmcnt(0)")
        lp = a.uid(pfx + '_sw')
        a.label(lp)
        for r in range(10):
            for j in range(3):
                k = r * 3 + j
                a(f"buffer_load_dwordx4 v[{8+4*k}:{11+4*k}], v1, s[8:11], s21 offen offset:{1024*j}")
            a(f"s_add_u32 s21, s21, {stride_rows*12288}")
        a(f"s_waitcnt vmcnt(0)\ns_add_u32 s22, s22, 10\ns_cmp_lt_u32 s22, {nrows_per_wave}\ns_cbranch_scc1 {lp}")
    done = a.uid(pfx + '_dn'); lp = a.uid(pfx + '_wt'); qk = a.uid(pfx + '_qk')
    a(f"s_cmp_ge_u32 s16, 28\ns_cbranch_scc1 {qk}")
    sweep('wv', 20, 32)
    k_init.wait_init(a, 8)
    a(f"s_branch {done}")
    a.label(qk)
    k_init.wait_init(a, 8)
    a(f"""
    s_sub_u32 s20, s20, {32*12288}
    s_mov_b32 s46, 2000000
    v_mov_b32 v2, {PB_OFF + 384*4}
    """)
    a.label(lp)
    a(f"""
    buffer_load_dword v3, v2, s[12:15], 0 offen sc1
    s_sub_u32 s46, s46, 1
    s_cbranch_scc1 {lp}_go
    s_waitcnt vmcnt(0)
    v_cmp_eq_u32 vcc, 0, v3
    s_cbranch_vccz {lp}_go
    s_sleep 32
    s_branch {lp}
    """)
    a.label(lp + '_go')
    sweep('wq', 20, 32)
    sweep('wk', 20, 32)
    a.label(done)

def helper_body(a, pfx, fused=False):
    L = lambda n: f"{pfx}_{n}"
    PFD = int(os.environ.get('REC_PFD', 4))
    a(f"""
    s_sub_u32 s19, s16, 24
    s_lshl_b32 s19, s19, 3
    s_add_u32 s19, s19, s17              ; gw 0..31
    s_lshl_b32 s20, s18, 3
    s_mul_i32 s21, s20, {UH}
    s_mul_i32 s40, s19, 10240
    s_add_u32 s21, s21, s40
    s_add_u32 s21, s21, {U_OFF}
    s_mul_i32 s22, s20, {PH}
    s_mul_i32 s40, s19, 3072
    s_add_u32 s22, s22, s40
    s_add_u32 s22, s22, {K_OFF}
    v_lshlrev_b32 v1, 4, v255
    v_add_u32 v2, 4096, v1
    v_add_u32 v3, 8192, v1
    s_lshl_b32 s40, s18, 7
    s_add_u32 s40, s40, {PROG_OFF}
    v_mov_b32 v4, s40
    s_mov_b32 s27, 0
    s_mov_b32 s46, 4000000
    s_lshr_b32 s23, s19, 2
    s_add_u32 s23, s23, s20              ; head
    s_lshl_b32 s40, s23, 5
    s_add_u32 s40, s40, {PS_OFF}
    v_and_b32 v6, 7, v255
    v_lshlrev_b32 v6, 2, v6
    v_add_u32 v6, s40, v6
    s_mul_i32 s40, s23, 24
    s_add_u32 s40, s40, {PB_OFF + 192*4 - 32}
    v_lshlrev_b32 v7, 2, v255
    v_add_u32 v7, s40, v7
    v_cmp_gt_u32 vcc, 8, v255
    v_cmp_lt_u32 s[42:43], 13, v255
    s_or_b64 vcc, vcc, s[42:43]
    s_nop 1
    v_cndmask_b32 v6, v7, v6, vcc
    s_lshl_b32 s40, s18, 7
    s_lshl_b32 s41, s19, 2
    s_add_u32 s40, s40, s41
    s_add_u32 s40, s40, {RDY_OFF}
    v_mov_b32 v7, s40
    """)
    a.label(L('hloop'))
    a(f"s_cmp_lt_u32 s27, {PFD}\ns_cbranch_scc1 {L('hgo')}")
    a.label(L('hwait'))
    a(f"""
    buffer_load_dword v5, v4, s[12:15], 0 offen sc1
    s_sub_u32 s46, s46, 1
    s_cbranch_scc1 {L('hdone')}
    s_waitcnt vmcnt(0)
    v_readfirstlane_b32 s40, v5
    s_add_u32 s40, s40, {PFD}
    s_cmp_gt_u32 s40, s27
    s_cbranch_scc1 {L('hgo')}
    s_sleep 8
    s_branch {L('hwait')}
    """)
    a.label(L('hgo'))
    if fused:
        a(f"""
        buffer_load_dword v5, v6, s[12:15], 0 offen sc1
        s_sub_u32 s46, s46, 1
        s_cbranch_scc1 {L('hdone')}
        s_waitcnt vmcnt(0)
        v_cmp_ge_u32 vcc, s27, v5
        s_cbranch_vccz {L('hgo2')}
        s_sleep 8
        s_branch {L('hgo')}
        """)
        a.label(L('hgo2'))
    k = 0
    for j in range(3):
        a(f"buffer_load_dwordx4 v[{8+4*k}:{11+4*k}], v1, s[12:15], s22 offen offset:{1024*j}"); k += 1
    for j in range(10):
        a(f"buffer_load_dwordx4 v[{8+4*k}:{11+4*k}], v{1+j//4}, s[12:15], s21 offen offset:{1024*(j%4)}"); k += 1
    a(f"""
    s_add_u32 s21, s21, {U_SEG}
    s_add_u32 s22, s22, {P_SEG}
    s_add_u32 s27, s27, 1
    v_mov_b32 v5, s27
    s_waitcnt vmcnt(0)
    buffer_store_dword v5, v7, s[12:15], 0 offen
    s_cmp_lt_u32 s27, {NST}
    s_cbranch_scc1 {L('hloop')}
    """)
    a.label(L('hdone'))

def gen_rec(a, name='rec_kernel'):
    a.raw(kernel_header(name))
    a(f"""
    s_cmp_ge_u32 s2, 256
    s_cbranch_scc1 REC_end
    s_load_dwordx2 s[4:5], s[0:1], {KA['ws']}
    s_getreg_b32 s18, hwreg(HW_REG_XCC_ID)
    s_and_b32 s18, s18, 7
    v_lshrrev_b32 v1, 6, v0
    v_and_b32 v255, 63, v0
    s_nop 0
    v_readfirstlane_b32 s17, v1
    s_memtime s[60:61]
    s_waitcnt lgkmcnt(0)
    """)
    srd(a, 12, 4, WS_BYTES)
    a(f"""
    v_mov_b32 v3, 1
    s_lshl_b32 s16, s18, 7
    s_add_u32 s16, s16, {TK_OFF}
    v_mov_b32 v4, s16
    v_mov_b32 v5, 0
    v_cmp_eq_u32 vcc, 0, v0
    s_and_saveexec_b64 s[26:27], vcc
    s_cbranch_execz REC_notk
    buffer_atomic_add v3, v4, s[12:15], 0 offen sc0
    s_waitcnt vmcnt(0)
    ds_write_b32 v5, v3
    s_waitcnt lgkmcnt(0)
    """)
    a.label('REC_notk')
    a(f"""
    s_mov_b64 exec, s[26:27]
    s_barrier
    ds_read_b32 v3, v5
    s_waitcnt lgkmcnt(0)
    v_readfirstlane_b32 s16, v3
    s_barrier
    s_cmp_ge_u32 s18, 4
    s_cbranch_scc1 REC_end
    s_cmp_ge_u32 s16, 28
    s_cbranch_scc1 REC_end
    s_cmp_lt_u32 s16, 24
    s_cbranch_scc1 REC_main
    """)
    if not NOU: helper_body(a, 'HLP')
    a("s_branch REC_end")
    a.label('REC_main')
    if STAMP >= 0:
        for i in range(12): a(f"s_mov_b32 s{64+i}, 0")
    rec_body(a, 'REC')
    if STAMP >= 0:
        a(f"""
        s_lshl_b32 s61, s18, 5
        s_add_u32 s61, s61, s16
        s_lshl_b32 s61, s61, 3
        s_add_u32 s61, s61, s17
        s_lshl_b32 s61, s61, 6
        s_add_u32 s61, s61, {WS_END}
        v_mov_b32 v3, 0
        """)
        for i in range(12): a(f"v_mov_b32 v{4+i}, s{64+i}")
        for i in range(3): a(f"buffer_store_dwordx4 v[{4+4*i}:{7+4*i}], v3, s[12:15], s61 offen offset:{16*i}")
    a(f"""
    s_memtime s[62:63]
    s_load_dwordx2 s[56:57], s[0:1], {KA['dbg']}
    s_waitcnt lgkmcnt(0)
    s_sub_u32 s62, s62, s60
    s_mov_b32 s58, 256
    s_mov_b32 s59, 0x00020000
    v_mov_b32 v4, s62
    s_sub_u32 s96, s96, s60
    v_mov_b32 v5, s96
    s_lshl_b32 s60, s17, 3
    s_lshl_b32 s61, s18, 5
    s_add_u32 s61, s61, s16
    s_cmp_eq_u32 s61, 0
    s_cselect_b32 s60, s60, 256
    v_mov_b32 v3, s60
    buffer_store_dwordx2 v[4:5], v3, s[56:59], 0 offen
    """)
    a.label('REC_end')
    a("s_endpgm")
    return kernel_desc(name)
```

```python
from asmlib import *
from layout import *
from k_ln import ln_pass, cwindow

DB_TK = lambda x: 32 * x
DB_INIT = 8
DB_INIT2 = 4
DB_PAR = 12
DB_OVF = 16
NINIT = 64

def ln_part(a, wg):
    a(f"""
    s_load_dwordx2 s[8:9], s[0:1], {KA['x']}
    s_mov_b32 s10, {S*DM*2}
    s_mov_b32 s11, 0x00020000
    s_mov_b32 s20, 0x3acccccd
    s_mov_b32 s21, 0x3727c5ac
    v_lshrrev_b32 v1, 4, v0
    v_and_b32 v2, 15, v0
    s_lshl_b32 s3, s{wg}, 5
    v_add_u32 v1, s3, v1
    v_mul_u32_u24 v3, 1280, v1
    v_lshl_add_u32 v3, v2, 4, v3
    s_waitcnt lgkmcnt(0)
    """)
    for i in range(5):
        a(f"buffer_load_dwordx4 v[{12+4*i}:{15+4*i}], v3, s[8:11], 0 offen offset:{256*i}")
    a(f"""
    v_and_b32 v5, 31, v1
    v_lshlrev_b32 v4, 4, v5
    v_lshlrev_b32 v6, 4, v0
    s_mul_i32 s3, s{wg}, {XN_SEG}
    v_lshrrev_b32 v5, 1, v2
    v_lshl_add_u32 v4, v5, 10, v4
    v_and_b32 v5, 1, v2
    v_lshl_add_u32 v4, v5, 9, v4
    s_add_u32 s22, s3, {XN_OFF}
    s_mov_b32 s23, 0
    s_waitcnt vmcnt(0)
    """)
    X, P, T = 32, 12, 92
    for i in range(20):
        a(f"v_lshlrev_b32 v{X+2*i}, 16, v{12+i}")
        a(f"v_and_b32 v{X+2*i+1}, 0xffff0000, v{12+i}")
    lp = a.uid('INI_ln')
    a.label(lp)
    ln_pass(a, X, P, T)
    for i in range(5):
        a(f"ds_write_b128 v4, v[{P+4*i}:{P+4*i+3}] offset:{8192*i}")
    a("s_waitcnt lgkmcnt(0)\ns_barrier")
    for i in range(5):
        a(f"ds_read_b128 v[{100+4*i}:{103+4*i}], v6 offset:{8192*i}")
    for i in range(5):
        a(f"s_waitcnt lgkmcnt({4-i})\ns_add_u32 s25, s22, {8192*i}")
        a(f"buffer_store_dwordx4 v[{100+4*i}:{103+4*i}], v6, s[12:15], s25 offen sc1")
    sk = a.uid('INI_s')
    a(f"s_cmp_lg_u32 s23, 0\ns_cbranch_scc1 {sk}\ns_waitcnt vmcnt(0)")
    a.label(sk)
    a("s_barrier")
    a(f"s_cmp_lg_u32 s23, 0\ns_cbranch_scc1 {sk}_b\ns_cmp_lg_u32 s17, 0\ns_cbranch_scc1 {sk}_b")
    a(f"v_mov_b32 v7, 1\nv_mov_b32 v8, {DB_INIT}\ns_mov_b64 exec, 1\nbuffer_atomic_add v7, v8, s[68:71], 0 offen\ns_mov_b64 exec, -1")
    a.label(sk + '_b')
    a(f"s_add_u32 s22, s3, {YN_OFF}\ns_add_u32 s23, s23, 1\ns_cmp_lt_u32 s23, 2\ns_cbranch_scc1 {lp}")

def fill_part(a, wg, stage):
    NT = NINIT * 512
    cwindow(a, 24, 4)
    a(f"""
    s_lshl_b32 s3, s{wg}, 9
    v_add_u32 v1, s3, v0
    v_lshlrev_b32 v2, 4, v1
    """)
    for r in range(8, 12): a(f"v_mov_b32 v{r}, -1")
    for r in range(12, 16): a(f"v_mov_b32 v{r}, 0")
    def fill(base_s, base_imm, nbytes, vdata):
        units = nbytes // 16
        k = 0
        while k * NT < units:
            a(f"s_add_u32 s25, s{base_s}, {base_imm + k*NT*16}" if base_s is not None else f"s_mov_b32 s25, {base_imm + k*NT*16}")
            rem = units - k * NT
            if rem < NT:
                sk = a.uid('INI_sk')
                a(f"v_cmp_gt_u32 vcc, {rem}, v1\ns_and_saveexec_b64 s[26:27], vcc\ns_cbranch_execz {sk}")
                a(f"buffer_store_dwordx4 v[{vdata}:{vdata+3}], v2, s[12:15], s25 offen sc1")
                a.label(sk)
                a("s_mov_b64 exec, s[26:27]")
            else:
                a(f"buffer_store_dwordx4 v[{vdata}:{vdata+3}], v2, s[12:15], s25 offen sc1")
            k += 1
    if stage == 0:
        fill(None, FLAG_OFF, 65536, 12)
        fill(None, PROG_OFF, 1024, 12)
        return
    fill(24, 0, C_BYTES, 8)
    fill(None, A_OFF, NRING * A_SLOT, 8)
    fill(None, D_OFF + D_SLOT, (NRING - 1) * D_SLOT, 8)
    sk = a.uid('INI_nod0')
    a(f"""
    s_cmp_ge_u32 s{wg}, 5
    s_cbranch_scc1 {sk}
    s_load_dwordx2 s[28:29], s[0:1], {KA['mem0']}
    v_mul_u32_u24 v3, 52429, v1
    v_lshrrev_b32 v3, 25, v3
    v_mul_u32_u24 v3, 640, v3
    v_sub_u32 v3, v1, v3
    v_and_b32 v4, 7, v3
    v_mul_u32_u24 v4, 1280, v4
    v_lshrrev_b32 v5, 5, v3
    v_lshl_add_u32 v4, v5, 6, v4
    v_bfe_u32 v5, v3, 3, 2
    v_lshl_add_u32 v4, v5, 3, v4
    s_waitcnt lgkmcnt(0)
    s_mov_b32 s30, {M*DM*2}
    s_mov_b32 s31, 0x00020000
    buffer_load_dwordx2 v[16:17], v4, s[28:31], 0 offen
    buffer_load_dwordx2 v[18:19], v4, s[28:31], 0 offen offset:32
    s_mov_b32 s25, {D_OFF}
    s_mov_b32 s33, 0xfffffffe
    s_waitcnt vmcnt(0)
    v_min_u32 v16, s33, v16
    v_min_u32 v17, s33, v17
    v_min_u32 v18, s33, v18
    v_min_u32 v19, s33, v19
    buffer_store_dwordx4 v[16:19], v2, s[12:15], s25 offen sc1
    """)
    a.label(sk)

def probe(a):
    a("v_mov_b32 v8, -1\nv_mov_b32 v3, 0\ns_mov_b32 s34, 0x7fffffff\ns_mov_b32 s35, 0x7fffffff")
    for it in range(6):
        for par in range(2):
            a(f"""
            s_add_u32 s33, s24, {it*16384*5 + par*8192 + it*1024}
            buffer_store_dword v8, v3, s[12:15], s33 offen sc1
            s_waitcnt vmcnt(0)
            s_memtime s[36:37]
            s_waitcnt lgkmcnt(0)
            buffer_load_dword v5, v3, s[12:15], s33 offen sc1
            s_waitcnt vmcnt(0)
            s_memtime s[38:39]
            s_waitcnt lgkmcnt(0)
            s_sub_u32 s38, s38, s36
            s_min_u32 s{34+par}, s{34+par}, s38
            """)
    a(f"""
    s_getreg_b32 s36, hwreg(HW_REG_XCC_ID)
    s_lshr_b32 s36, s36, 2
    s_and_b32 s36, s36, 1
    s_cmp_lt_u32 s35, s34
    s_cselect_b32 s37, 1, 0
    s_xor_b32 s37, s37, s36
    s_lshl_b32 s37, s37, 13
    s_add_u32 s37, s37, 1
    v_mov_b32 v4, s37
    v_mov_b32 v3, {DB_PAR}
    buffer_store_dword v4, v3, s[68:71], 0 offen sc1
    """)

def wait_init(a, vt, out_par=None, sel=None):
    lp = a.uid('WINI')
    a(f"v_mov_b32 v{vt+4}, 0\ns_mov_b32 s73, 3000000")
    a.label(lp)
    a(f"""
    buffer_load_dwordx4 v[{vt}:{vt+3}], v{vt+4}, s[68:71], 0 offen sc1
    s_sub_u32 s73, s73, 1
    s_cbranch_scc1 {lp}_ok
    s_waitcnt vmcnt(0)
    v_readfirstlane_b32 s72, v{vt+2 if out_par is None else vt+1}
    """)
    if sel is not None:
        a(f"v_readfirstlane_b32 s75, v{vt+1}\ns_cmp_ge_u32 s{sel[0]}, {sel[1]}\ns_cselect_b32 s72, s75, s72")
    a(f"s_cmp_lt_u32 s72, {NINIT}\ns_cbranch_scc1 {lp}_sl")
    if out_par is not None:
        a(f"v_readfirstlane_b32 s{out_par}, v{vt+3}\ns_cmp_lg_u32 s{out_par}, 0\ns_cbranch_scc1 {lp}_ok")
    else:
        a(f"s_branch {lp}_ok")
    a.label(lp + '_sl')
    a(f"s_sleep {24 if out_par is not None else 8}\ns_branch {lp}")
    a.label(lp + '_ok')
    a("s_waitcnt vmcnt(0)")

def init_all(a, wg):
    fill_part(a, wg, 0)
    ln_part(a, wg)
    fill_part(a, wg, 1)
    sk = a.uid('INI_d')
    a(f"""
    s_waitcnt vmcnt(0)
    s_barrier
    s_cmp_lg_u32 s17, 0
    s_cbranch_scc1 {sk}
    v_mov_b32 v3, 1
    v_mov_b32 v4, {DB_INIT2}
    s_mov_b64 exec, 1
    buffer_atomic_add v3, v4, s[68:71], 0 offen
    s_mov_b64 exec, -1
    """)
    a.label(sk)

def census(a, vt, out_s):
    lp = a.uid('CEN')
    a(f"v_and_b32 v{vt+1}, 7, v255\nv_lshlrev_b32 v{vt+1}, 5, v{vt+1}\ns_mov_b32 s73, 3000000")
    a.label(lp)
    a(f"""
    buffer_load_dword v{vt}, v{vt+1}, s[68:71], 0 offen sc1
    s_mov_b32 s{out_s}, 1
    s_sub_u32 s73, s73, 1
    s_cbranch_scc1 {lp}_ok
    s_waitcnt vmcnt(0)
    v_cmp_ne_u32 vcc, 32, v{vt}
    s_cbranch_vccz {lp}_ok
    s_mov_b32 s72, 0
    """)
    for x in range(8):
        a(f"v_readlane_b32 s75, v{vt}, {x}\ns_add_u32 s72, s72, s75")
        if x < 4:
            a(f"s_cmp_lt_u32 s75, 32\ns_cselect_b32 s{out_s}, 0, s{out_s}")
    a(f"s_cmp_ge_u32 s72, 256\ns_cbranch_scc1 {lp}_ok\ns_sleep 4\ns_branch {lp}")
    a.label(lp + '_ok')
    a("s_waitcnt vmcnt(0)")
```

```python
from asmlib import *
from layout import *
import k_big, k_small, k_post2, k_init, importlib, os
k_rec = importlib.import_module(os.environ.get('REC_MOD', 'k_rec'))
import os

def gen_main(a, name='main_kernel'):
    a.raw(kernel_header(name))
    a(f"""
    s_cmp_ge_u32 s2, 256
    s_cbranch_scc1 MAIN_end
    s_load_dwordx2 s[4:5], s[0:1], {KA['ws']}
    s_load_dwordx2 s[68:69], s[0:1], {KA['dbg']}
    s_mov_b32 s70, 256
    s_mov_b32 s71, 0x00020000
    s_getreg_b32 s18, hwreg(HW_REG_XCC_ID)
    s_and_b32 s18, s18, 7
    v_lshrrev_b32 v1, 6, v0
    v_and_b32 v255, 63, v0
    s_nop 0
    v_readfirstlane_b32 s17, v1
    s_memtime s[90:91]
    s_memrealtime s[84:85]
    s_waitcnt lgkmcnt(0)
    """)
    srd(a, 12, 4, WS_BYTES)
    def ticket(off_s, lab, sr=12):
        a(f"""
        v_mov_b32 v3, 1
        v_mov_b32 v4, s{off_s}
        v_mov_b32 v5, 0
        s_cmp_lg_u32 s17, 0
        s_cbranch_scc1 {lab}
        s_mov_b64 exec, 1
        buffer_atomic_add v3, v4, s[{sr}:{sr+3}], 0 offen sc0
        s_waitcnt vmcnt(0)
        ds_write_b32 v5, v3
        s_waitcnt lgkmcnt(0)
        s_mov_b64 exec, -1
        """)
        a.label(lab)
        a(f"""
        s_barrier
        ds_read_b32 v3, v5
        s_waitcnt lgkmcnt(0)
        v_readfirstlane_b32 s16, v3
        s_barrier
        """)
    if os.environ.get('FAKE_XCC') == 'hi': a("s_min_u32 s18, s18, 6")
    if os.environ.get('FAKE_XCC') == 'lo': a("s_max_u32 s18, s18, 1")
    a(f"s_lshl_b32 s16, s18, 5")
    ticket(16, 'MAIN_tk1', 68)
    a(f"""
    s_mov_b32 s96, 0
    s_mov_b32 s88, 0
    s_mov_b32 s75, 0
    s_mov_b32 s92, s16
    s_cmp_lt_u32 s16, 32
    s_cbranch_scc1 MAIN_role
    """)
    k_init.census(a, 8, 39)
    a(f"s_mov_b32 s16, {k_init.DB_OVF}")
    ticket(16, 'MAIN_tk3', 68)
    for x in range(8):
        a(f"""
        v_readlane_b32 s40, v8, {x}
        s_min_u32 s40, s40, 32
        s_sub_u32 s41, 32, s40
        s_mov_b32 s18, {x}
        s_cmp_lt_u32 s16, s41
        s_cbranch_scc1 MAIN_ovf
        s_sub_u32 s16, s16, s41
        """)
    a("s_branch MAIN_wpost")
    a.label('MAIN_ovf')
    a("s_add_u32 s16, s16, s40")
    a.label('MAIN_role')
    a(f"""
    s_mov_b32 s92, s16
    s_mov_b32 s74, 64
    s_cmp_ge_u32 s18, 4
    s_cbranch_scc1 MAIN_gi0
    s_cmp_lt_u32 s16, 24
    s_cbranch_scc1 MAIN_rec
    s_cmp_lt_u32 s16, 28
    s_cbranch_scc1 MAIN_ini
    s_lshl_b32 s74, s18, 2
    s_add_u32 s74, s74, s16
    s_add_u32 s74, s74, 20
    s_branch MAIN_ini
    """)
    a.label('MAIN_gi0')
    a(f"""
    s_lshl_b32 s16, s16, 2
    s_add_u32 s16, s16, s18
    s_sub_u32 s16, s16, 4
    s_cmp_lt_u32 s16, 24
    s_cselect_b32 s74, s16, s74
    s_sub_u32 s40, s16, 72
    s_cmp_lt_u32 s40, 12
    s_cbranch_scc0 MAIN_gi1
    s_add_u32 s74, s40, 24
    """)
    a.label('MAIN_gi1')
    a(f"""
    s_cmp_lt_u32 s16, 116
    s_cbranch_scc1 MAIN_ini
    s_sub_u32 s74, s16, 80
    """)
    a.label('MAIN_ini')
    a("s_cmp_ge_u32 s74, 64\ns_cbranch_scc1 MAIN_inid")
    k_init.init_all(a, 74)
    if os.environ.get('MAIN_DUMP'): a("s_memtime s[86:87]\ns_waitcnt lgkmcnt(0)\ns_mov_b32 s75, s86")
    a.label('MAIN_inid')
    a("s_cmp_ge_u32 s18, 4\ns_cbranch_scc1 MAIN_gemm")
    k_rec.weight_prefetch(a, 'WPF')
    a(f"s_cmp_ge_u32 s16, 28\ns_cbranch_scc1 {'MAIN_post' if int(os.environ.get('IDLE_POST', 0)) else 'MAIN_end'}")
    k_rec.helper_body(a, 'HLP', fused=True)
    a("s_branch MAIN_end")
    a.label('MAIN_rec')
    k_rec.rec_body(a, 'REC', fused=True, alt='RECB')
    a("s_branch RECB_done")
    k_rec.rec_body(a, 'RECB', fused=True, lsc=' sc1')
    a("s_setprio 0")
    dump(a)
    a("s_branch MAIN_post")
    a.label('MAIN_wpost')
    k_init.wait_init(a, 8)
    a("s_branch MAIN_post")
    a.label('MAIN_gemm')
    a(f"""
    s_cmp_ge_u32 s16, 124
    s_cbranch_scc1 MAIN_wpost
    s_cmp_ge_u32 s74, 64
    s_cbranch_scc1 MAIN_go
    """)
    a.label('MAIN_late')
    a(f"""
    s_mov_b32 s46, 2000000
    s_lshl_b32 s40, s16, 2
    s_add_u32 s40, s40, {PB_OFF + 384*4}
    v_mov_b32 v1, s40
    s_cmp_lg_u32 s17, 0
    s_cbranch_scc1 MAIN_late2
    """)
    k_init.wait_init(a, 8)
    a.label('MAIN_latep')
    a(f"""
    buffer_load_dword v2, v1, s[12:15], 0 offen sc1
    s_sub_u32 s46, s46, 1
    s_cbranch_scc1 MAIN_late2
    s_waitcnt vmcnt(0)
    v_cmp_eq_u32 vcc, 0, v2
    s_cbranch_vccz MAIN_late2
    s_sleep 32
    s_branch MAIN_latep
    """)
    a.label('MAIN_late2')
    a("s_waitcnt vmcnt(0)\ns_barrier")
    a.label('MAIN_go')
    a(f"""
    s_cmp_ge_u32 s16, 84
    s_cbranch_scc1 MAIN_small
    """)
    k_big.big_body(a, 'BIG', fused=True)
    dump(a)
    a("s_branch MAIN_post")
    a.label('MAIN_small')
    a("s_sub_u32 s16, s16, 84")
    k_small.small_body(a, 'SM', fused=True)
    dump(a)
    a.label('MAIN_post')
    a(f"""
    s_load_dwordx2 s[4:5], s[0:1], {KA['ws']}
    s_waitcnt lgkmcnt(0) vmcnt(0)
    s_barrier
    s_mov_b32 s46, 8000000
    """)
    srd(a, 12, 4, WS_BYTES)
    NI = 15
    def wait_flags(tag, loads, regs, cmp_s, sleep):
        lp = f"MAIN_w{tag}"
        a.label(lp)
        for ld in loads: a(ld)
        a(f"s_sub_u32 s46, s46, 1\ns_cbranch_scc1 {lp}_x\ns_waitcnt vmcnt(0)")
        regs = list(regs)
        a(f"v_mov_b32 v4, v{regs[0]}")
        k = 1
        while k < len(regs):
            if k + 1 < len(regs):
                a(f"v_min3_u32 v4, v4, v{regs[k]}, v{regs[k+1]}"); k += 2
            else:
                a(f"v_min_u32 v4, v4, v{regs[k]}"); k += 1
        a(f"v_cmp_ge_u32 vcc, s{cmp_s}, v4\ns_cbranch_vccz {lp}_ok\ns_sleep {sleep}\ns_branch {lp}")
        a.label(lp + '_x')
        a("s_mov_b32 s46, 0\ns_waitcnt vmcnt(0)")
        a.label(lp + '_ok')
    a.label('MAIN_ploop')
    a(f"s_mov_b32 s16, {QUE_OFF}")
    ticket(16, 'MAIN_tk2')
    a(f"""
    s_cmp_ge_u32 s16, {NSEG*NI}
    s_cbranch_scc1 {'MAIN_exit' if os.environ.get('MAIN_DUMP') else 'MAIN_end'}
    s_mul_i32 s40, s16, 4370
    s_lshr_b32 s40, s40, 16              ; seg = t/15
    s_mul_i32 s41, s40, {NI}
    s_sub_u32 s19, s16, s41              ; item
    s_mov_b32 s16, s40
    v_lshlrev_b32 v1, 4, v255
    v_min_u32 v2, {31*16}, v1
    v_min_u32 v3, {15*16}, v1
    s_cmp_eq_u32 s19, 0
    s_cbranch_scc1 MAIN_gi
    s_cmp_ge_u32 s19, 5
    s_cbranch_scc1 MAIN_zi
    """)
    a("s_sub_u32 s19, s19, 1\ns_cmp_lg_u32 s17, 0\ns_cbranch_scc1 MAIN_pgo")
    a(f"v_and_b32 v5, 3, v255\nv_lshlrev_b32 v5, 7, v5\ns_mov_b32 s42, {PROG_OFF}\ns_add_u32 s43, s16, 2")
    wait_flags('c', ["buffer_load_dword v8, v5, s[12:15], s42 offen sc1"], [8], 43, int(os.environ.get('POST_SLEEP', 24)))
    a(f"s_mov_b32 s42, {PR_OFF}\ns_mov_b32 s40, {PB_OFF}")
    a("v_lshlrev_b32 v5, 6, v255\nv_lshlrev_b32 v6, 2, v2\ns_add_u32 s43, s42, 4096")
    wait_flags('p', ["buffer_load_dword v24, v5, s[12:15], s42 offen sc1",
                     "buffer_load_dword v25, v6, s[12:15], s43 offen sc1",
                     "buffer_load_dwordx4 v[8:11], v1, s[12:15], s40 offen sc1",
                     "buffer_load_dwordx4 v[12:15], v2, s[12:15], s40 offen offset:1024 sc1"],
               [24, 25] + list(range(8, 16)), 16, 6)
    a.label('MAIN_pgo')
    a("s_barrier")
    k_post2.p_item(a, 'PI')
    a("s_branch MAIN_ploop")
    a.label('MAIN_gi')
    a("s_cmp_lg_u32 s17, 0\ns_cbranch_scc1 MAIN_ggo")
    a(f"s_mov_b32 s41, {PS_OFF+1024}")
    wait_flags('g', ["buffer_load_dwordx4 v[8:11], v3, s[12:15], s41 offen sc1"], range(8, 12), 16, 32)
    a.label('MAIN_ggo')
    a("s_barrier")
    k_post2.g_item(a, 'GI')
    a("s_branch MAIN_ploop")
    a.label('MAIN_zi')
    a("s_sub_u32 s19, s19, 5\ns_cmp_lg_u32 s17, 0\ns_cbranch_scc1 MAIN_zgo")
    a(f"v_and_b32 v5, 3, v255\nv_lshlrev_b32 v5, 7, v5\ns_mov_b32 s42, {PROG_OFF}\ns_add_u32 s43, s16, 2")
    wait_flags('zc', ["buffer_load_dword v8, v5, s[12:15], s42 offen sc1"], [8], 43, int(os.environ.get('POST_SLEEP', 24)))
    a(f"v_min_u32 v5, 4, v255\nv_lshlrev_b32 v5, 2, v5\ns_lshl_b32 s42, s16, 7\ns_add_u32 s42, s42, {PF_OFF}\ns_mov_b32 s43, 0")
    wait_flags('z', ["buffer_load_dword v8, v5, s[12:15], s42 offen sc1"], [8], 43, 6)
    a.label('MAIN_zgo')
    a("s_barrier")
    k_post2.z_item(a, 'ZI')
    a("s_branch MAIN_ploop")
    if os.environ.get('MAIN_DUMP'):
        a("s_branch MAIN_end")
        a.label('MAIN_exit')
        a(f"""
        s_memrealtime s[82:83]
        s_getreg_b32 s93, hwreg(HW_REG_XCC_ID)
        s_and_b32 s93, s93, 7
        s_waitcnt lgkmcnt(0)
        s_lshl_b32 s93, s93, 5
        s_add_u32 s93, s93, s92
        s_lshl_b32 s93, s93, 3
        s_add_u32 s93, s93, {WS_END}+131072
        v_mov_b32 v3, 0
        v_mov_b32 v4, s84
        v_mov_b32 v5, s82
        buffer_store_dwordx2 v[4:5], v3, s[12:15], s93 offen
        """)
    a.label('MAIN_end')
    a("s_endpgm")
    return kernel_desc(name)

def dump(a):
    if not os.environ.get('MAIN_DUMP'): return
    a(f"""
    s_memtime s[94:95]
    s_memrealtime s[82:83]
    s_getreg_b32 s93, hwreg(HW_REG_XCC_ID)
    s_and_b32 s93, s93, 7
    s_waitcnt lgkmcnt(0)
    s_sub_u32 s94, s94, s90
    s_sub_u32 s95, s96, s90
    s_lshl_b32 s93, s93, 5
    s_add_u32 s93, s93, s92
    s_lshl_b32 s93, s93, 3
    s_add_u32 s93, s93, s17
    s_lshl_b32 s93, s93, 6
    s_add_u32 s93, s93, {WS_END}
    v_mov_b32 v3, 0
    """)
    a("s_sub_u32 s75, s75, s90")
    for i in range(12): a(f"v_mov_b32 v{4+i}, s{64+i}" if (k_rec.STAMP >= 0 or i == 11) else f"v_mov_b32 v{4+i}, 0")
    a("s_sub_u32 s88, s88, s90\nv_mov_b32 v16, s94\nv_mov_b32 v17, s95\nv_mov_b32 v18, s88\ns_sub_u32 s82, s82, s84\nv_mov_b32 v19, s82")
    for i in range(4): a(f"buffer_store_dwordx4 v[{4+4*i}:{7+4*i}], v3, s[12:15], s93 offen offset:{16*i}")
```

```python
from asmlib import *
from layout import *
import math, struct
from k_ln import cwindow
import k_init

def f32(x):
    return hex(struct.unpack('<I', struct.pack('<f', x))[0])

L_MEMX = 0
L_SX = 10240
L_PX = 10240
L_PM = 14336
L_ZM = 22528
L_Y = 26624
L_KM = 30720
L_B = 32768
NBL = 32
NBR = 80 - NBL
RP = 208
OOB = 0x7f000000
import os
NST = int(os.environ.get('REC_NST', NSEG))

STAMP = int(os.environ.get('REC_STAMP', -1))
def stamp(a, i):
    if STAMP < 0: return
    sk = a.uid('STMP')
    a(f"s_cmp_lg_u32 s27, {STAMP}\ns_cbranch_scc1 {sk}\ns_memtime s[98:99]\ns_waitcnt lgkmcnt(0)\ns_mov_b32 s{64+i}, s98")
    a.label(sk)

class R:
    def __init__(self, base): self.n = base
    def __call__(self, k=1, align=1):
        self.n = (self.n + align - 1) // align * align
        r = self.n; self.n += k
        assert self.n <= 250
        return r

def lane_fields(a):
    a("""
    v_and_b32 v250, 15, v255
    v_lshrrev_b32 v251, 4, v255
    v_and_b32 v252, 7, v255
    v_bfe_u32 v253, v255, 3, 1
    """)

def cphys(a, v, t):
    a(f"""
    v_lshrrev_b32 v{t}, 13, v{v}
    v_lshlrev_b32 v{t}, 13, v{t}
    v_add_u32 v{v}, v{v}, v{t}
    """)

def check_poison(a, regs, t):
    regs = list(regs)
    if len(regs) == 2:
        a(f"v_max_u32 v{t}, v{regs[0]}, v{regs[1]}")
    else:
        a(f"v_max3_u32 v{t}, v{regs[0]}, v{regs[1]}, v{regs[2]}")
        i = 3
        while i < len(regs):
            if i + 1 < len(regs):
                a(f"v_max3_u32 v{t}, v{t}, v{regs[i]}, v{regs[i+1]}"); i += 2
            else:
                a(f"v_max_u32 v{t}, v{t}, v{regs[i]}"); i += 1
    a(f"v_cmp_eq_u32 vcc, -1, v{t}")

def poll(a, pfx, loads, regs, t):
    lp = a.uid(pfx + '_poll'); dn = a.uid(pfx + '_pdone')
    a.label(lp)
    for ld in loads: a(ld)
    a(f"s_sub_u32 s46, s46, 1\ns_cbranch_scc1 {dn}_x")
    a("s_waitcnt vmcnt(0)")
    check_poison(a, regs, t)
    a(f"s_cbranch_vccnz {lp}")
    a(f"s_branch {dn}")
    a.label(dn + '_x')
    a("s_mov_b32 s46, 0\ns_waitcnt vmcnt(0)")
    a.label(dn)

def load_tile(a, kaoff, nbytes, sbase, raw, T):
    a(f"s_load_dwordx2 s[8:9], s[0:1], {kaoff}\ns_mov_b32 s10, {nbytes}\ns_mov_b32 s11, 0x00020000")
    a(f"""
    v_lshrrev_b32 v{T}, 1, v255
    v_mul_u32_u24 v{T}, 12288, v{T}
    v_and_b32 v{T+1}, 1, v255
    v_lshl_add_u32 v{T}, v{T+1}, 4, v{T}
    s_mov_b32 s40, s{sbase}
    s_waitcnt lgkmcnt(0)
    """)
    for n in range(20):
        a(f"buffer_load_dwordx4 v[{raw+4*n}:{raw+4*n+3}], v{T}, s[8:11], s40 offen")
        a(f"s_add_u32 s40, s40, {32*12288}")

def load_slice(a, kaoff, nbytes, sbase, pitch, nrows, raw, T):
    a(f"s_load_dwordx2 s[8:9], s[0:1], {kaoff}\ns_mov_b32 s10, {nbytes}\ns_mov_b32 s11, 0x00020000\ns_mov_b32 s40, {pitch}\ns_waitcnt lgkmcnt(0)")
    for n in range(nrows * 6 // 64):
        a(f"""
        v_add_u32 v{T}, {64*n}, v255
        v_mul_u32_u24 v{T+1}, 43691, v{T}
        v_lshrrev_b32 v{T+1}, 18, v{T+1}
        v_mul_u32_u24 v{T+2}, 6, v{T+1}
        v_sub_u32 v{T+2}, v{T}, v{T+2}
        v_mul_lo_u32 v{T+1}, v{T+1}, s40
        v_lshl_add_u32 v{T+1}, v{T+2}, 4, v{T+1}
        buffer_load_dwordx4 v[{raw+4*n}:{raw+4*n+3}], v{T+1}, s[8:11], s{sbase} offen
        """)


def slot_bases(a):
    a(f"""
    s_and_b32 s40, s27, 3
    s_add_u32 s41, s27, 2
    s_and_b32 s41, s41, 3
    s_mul_i32 s28, s40, {A_SLOT}
    s_add_u32 s28, s28, s47
    s_mul_i32 s29, s41, {A_SLOT}
    s_add_u32 s29, s29, s47
    s_mul_i32 s30, s40, {C_SLOT}
    s_add_u32 s30, s30, s24
    s_mul_i32 s31, s41, {C_SLOT}
    s_add_u32 s31, s31, s24
    s_mul_i32 s32, s40, {D_SLOT}
    s_add_u32 s32, s32, s48
    s_add_u32 s41, s27, 1
    s_and_b32 s41, s41, 3
    s_mul_i32 s33, s41, {D_SLOT}
    s_add_u32 s33, s33, s48
    s_add_u32 s41, s27, 3
    s_and_b32 s41, s41, 3
    s_mul_i32 s34, s41, {D_SLOT}
    s_add_u32 s34, s34, s48
    """)

def s3_setup(a, vCld, vDst, T):
    a(f"""
    v_lshrrev_b32 v{T}, 3, v255                 ; vgl
    v_mul_u32_u24 v{vCld}, 10240, v{T}
    s_lshl_b32 s40, s55, 9
    s_lshl_b32 s41, s23, 7
    s_add_u32 s41, s41, s40
    v_add_u32 v{vCld}, s41, v{vCld}
    v_lshl_add_u32 v{vCld}, v252, 4, v{vCld}
    """)
    cphys(a, vCld, T + 1)
    a(f"""
    v_lshrrev_b32 v{T}, 2, v252
    s_lshl_b32 s41, s23, 1
    v_add_u32 v{T}, s41, v{T}                   ; cq
    v_and_b32 v{T+1}, 3, v{T}
    v_lshlrev_b32 v{vDst}, 7, v{T+1}
    v_lshrrev_b32 v{T+1}, 2, v{T}
    v_lshl_add_u32 v{vDst}, v{T+1}, 3, v{vDst}
    v_and_b32 v{T+1}, 3, v255
    v_lshl_add_u32 v{vDst}, v{T+1}, 5, v{vDst}
    v_lshrrev_b32 v{T+1}, 5, v255
    v_lshl_add_u32 v{vDst}, v{T+1}, 4, v{vDst}
    v_bfe_u32 v{T+1}, v255, 4, 1
    v_lshl_add_u32 v{vDst}, v{T+1}, 2, v{vDst}
    v_add_u32 v{vDst}, s40, v{vDst}
    v_cmp_eq_u32 vcc, 0, v253
    s_nop 1
    v_cndmask_b32 v{vDst}, v242, v{vDst}, vcc
    """)

def s3_run(a, pfx, vCld, vDst, T, lsc=''):
    poll(a, pfx, [f"buffer_load_dwordx4 v[{T}:{T+3}], v{vCld}, s[12:15], s30 offen sc1"], range(T, T + 4), T + 4)
    V = T + 4
    for j in (0, 2, 1, 3):
        a(f"v_lshlrev_b32 v{V+2*j}, 16, v{T+j}")
        a(f"v_and_b32 v{V+2*j+1}, 0xffff0000, v{T+j}")
    for j in range(4):
        a(f"v_permlane32_swap_b32 v{V+j}, v{V+4+j}")
    a(f"v_pk_add_f32 v[{V}:{V+1}], v[{V}:{V+1}], v[{V+4}:{V+5}]")
    a(f"v_pk_add_f32 v[{V+2}:{V+3}], v[{V+2}:{V+3}], v[{V+6}:{V+7}]")
    a(f"""
    s_nop 1
    v_permlane16_swap_b32 v{V}, v{V+2}
    v_permlane16_swap_b32 v{V+1}, v{V+3}
    v_pk_add_f32 v[{V}:{V+1}], v[{V}:{V+1}], v[{V+2}:{V+3}]
    s_nop 1
    v_add_f32_dpp v{V}, v{V}, v{V} row_ror:8 row_mask:0xf bank_mask:0xf
    v_add_f32_dpp v{V+1}, v{V+1}, v{V+1} row_ror:8 row_mask:0xf bank_mask:0xf
    v_cvt_pk_bf16_f32 v{T}, v{V}, v{V+1}
    v_min_u32 v{T}, s49, v{T}
    buffer_store_dword v{T}, v{vDst}, s[12:15], s33 offen{lsc}
    """)

CSLEEP = int(os.environ.get('REC_CSLEEP', 11))
CSLEEP0 = int(os.environ.get('REC_CSLEEP0', 4))
ASLEEP = int(os.environ.get('REC_ASLEEP', 6))
SSLEEP = int(os.environ.get('REC_SSLEEP', 3))
A_X2 = 1024
A_M = 1536
A_V = 2048
DSLEEP = int(os.environ.get('REC_DSLEEP', 16))
DUAL = int(os.environ.get('REC_DUAL', 1))
CS2 = int(os.environ.get('REC_CS2', 7))
YDELAY = int(os.environ.get('REC_YDELAY', 0))
ULATE = int(os.environ.get('REC_ULATE', 0))
NOU = int(os.environ.get('REC_NOU', 0))
NOST = int(os.environ.get('REC_NOST', 0))

def rec_body(a, pfx, fused=False, lsc='', alt=None):
    L = lambda n: f"{pfx}_{n}"
    lane_fields(a)
    cwindow(a, 24, 4)
    a(f"""
    s_cmp_ge_u32 s16, 12
    s_cselect_b32 s19, 1, 0              ; vgl
    s_mul_i32 s40, s19, 12
    s_sub_u32 s20, s16, s40              ; m (0..11)
    s_mul_i32 s55, s19, 10
    s_add_u32 s55, s55, s20
    s_lshl_b32 s40, s18, 1
    s_add_u32 s19, s19, s40              ; vg
    s_mul_i32 s21, s20, 11
    s_lshr_b32 s21, s21, 5               ; hh = m/3
    s_mul_i32 s40, s21, 3
    s_sub_u32 s22, s20, s40              ; c = m%3
    s_and_b32 s23, s17, 3                ; kq
    s_lshl_b32 s25, s19, 2
    s_add_u32 s26, s25, s23              ; head2
    s_add_u32 s25, s25, s21              ; H1
    s_mul_i32 s47, s19, {A_VG}
    s_add_u32 s47, s47, {A_OFF}
    s_mul_i32 s48, s18, {D_X}
    s_add_u32 s48, s48, {D_OFF}
    s_mov_b32 s49, 0xfffffffe
    s_mov_b32 s46, 4000000
    s_lshl_b32 s56, s22, 2
    s_add_u32 s56, s56, s23
    s_mul_i32 s50, s25, 384
    s_lshl_b32 s40, s56, 5
    s_add_u32 s50, s50, s40
    s_mul_i32 s51, s17, 20480
    v_lshlrev_b32 v249, 4, v255
    v_add_u32 v248, s51, v249
    v_bfe_u32 v247, v255, 2, 2           ; r
    v_and_b32 v245, 3, v255
    v_lshl_add_u32 v246, v251, 2, v247   ; 4g + r
    v_lshlrev_b32 v246, 5, v246
    v_lshl_add_u32 v246, v245, 3, v246
    v_add_u32 v246, s51, v246
    v_lshl_add_u32 v244, v251, 3, v247   ; 8g + r
    v_lshlrev_b32 v244, 7, v244
    v_lshl_add_u32 v244, v245, 3, v244
    v_add_u32 v244, s51, v244
    v_lshlrev_b32 v243, 7, v251
    v_lshl_add_u32 v243, v252, 4, v243   ; g*128 + row*16
    v_mov_b32 v242, {OOB}
    s_mov_b32 s27, 0
    """)
    WB = DM * H * DH * 2
    T = 236
    inlds = lambda ks, t: ks >= 12
    regidx = {}; ldsidx = {}
    for ks in range(20):
        for t in range(4):
            if inlds(ks, t): ldsidx[(ks, t)] = len(ldsidx)
            else: regidx[(ks, t)] = len(regidx)
    assert len(ldsidx) == NBL and len(regidx) == NBR
    MBOX = 8 * 1024
    a(f"""
    s_mul_i32 s58, s23, {NBL*1024}
    s_add_u32 s58, s58, {L_B}
    s_lshl_b32 s51, s23, 13
    s_mov_b32 s76, s51
    s_add_u32 s77, s58, {20*1024}
    s_add_u32 s78, s58, {26*1024}
    s_mov_b32 s44, 0x00ff00ff
    s_mov_b32 s45, 0x00ff00ff
    s_cmp_ge_u32 s17, 4
    s_cbranch_scc1 {L('yw')}
    s_cmp_ge_u32 s20, 10
    s_cbranch_scc1 {L('qkw')}
    """)
    if os.environ.get("X_ST"): a("s_memtime s[98:99]\ns_waitcnt lgkmcnt(0)\ns_mov_b32 s64, s98")
    a(f"""
    s_load_dwordx2 s[8:9], s[0:1], {KA['wo']}
    s_mov_b32 s10, {WB}
    s_mov_b32 s11, 0x00020000
    s_mul_i32 s54, s26, {DH*DM*2}
    s_lshl_b32 s40, s20, 7
    s_add_u32 s54, s54, s40
    v_lshrrev_b32 v{T}, 3, v255
    v_mul_u32_u24 v{T}, 1280, v{T}
    v_lshl_add_u32 v{T}, v252, 4, v{T}
    s_waitcnt lgkmcnt(0)
    """)
    for n in range(24):
        a(f"buffer_load_dwordx4 v[{4*n}:{4*n+3}], v{T}, s[8:11], s54 offen")
        a(f"s_add_u32 s54, s54, {8*1280}")
    if os.environ.get("X_ST"): a("s_memtime s[98:99]\ns_waitcnt lgkmcnt(0)\ns_mov_b32 s65, s98")
    AB, BA, RB, HOLD = 96, 144, 240, 176
    a(f"""
    v_mul_u32_u24 v{T+1}, 384, v250
    v_xor_b32 v{T+2}, v251, v252
    v_lshl_add_u32 v{RB}, v{T+2}, 4, v{T+1}
    v_or_b32 v{T+2}, 4, v251
    v_xor_b32 v{T+2}, v{T+2}, v252
    v_lshl_add_u32 v{RB+1}, v{T+2}, 4, v{T+1}
    v_add_u32 v248, s58, v249
    v_lshl_add_u32 v244, v251, 3, v247
    v_lshlrev_b32 v244, 7, v244
    v_lshl_add_u32 v244, v245, 3, v244
    v_add_u32 v244, s58, v244
    s_waitcnt vmcnt(0)
    """)
    if os.environ.get("X_ST"): a("s_memtime s[98:99]\ns_waitcnt lgkmcnt(0)\ns_mov_b32 s66, s98")
    for half in range(2):
        for n in range(12):
            k = 12 * half + n
            a(f"ds_write_b128 v248, v[{4*k}:{4*k+3}] offset:{1024*n}")
        a("s_waitcnt lgkmcnt(0)")
        for e3 in range(3):
            for t in range(4):
                for hr in range(2):
                    rr = ((3 * half + e3) * 4 + t) * 4 + 2 * hr
                    a(f"ds_read_b64_tr_b16 v[{rr}:{rr+1}], v244 offset:{e3*4096+hr*512+t*32}")
        a("s_waitcnt lgkmcnt(0)")
    def chunk_read(buf):
        a("s_barrier")
        a(f"v_add_u32 v246, s76, v{RB}\nv_add_u32 v244, s76, v{RB+1}")
        a("s_mov_b32 s40, s76\ns_mov_b32 s76, s77\ns_mov_b32 s77, s78\ns_mov_b32 s78, s40")
        ab = AB + 24 * buf
        for es in range(6):
            a(f"ds_read_b128 v[{ab+4*es}:{ab+4*es+3}], v{(246, 244)[es&1]} offset:{128*(es>>1)}")
    def chunk_mfma(tt):
        if os.environ.get('X_NOMFMA'): return
        ab = AB + 24 * tt
        for es in range(6):
            for t in range(4):
                ac = BA + (tt * 4 + t) * 4; w = (es * 4 + t) * 4
                cc = '0' if es == 0 else f"v[{ac}:{ac+3}]"
                a(f"v_mfma_f32_16x16x32_bf16 v[{ac}:{ac+3}], v[{ab+4*es}:{ab+4*es+3}], v[{w}:{w+3}], {cc}")
    if os.environ.get("X_ST"): a("s_memtime s[98:99]\ns_waitcnt lgkmcnt(0)\ns_mov_b32 s67, s98")
    chunk_read(0)
    if os.environ.get("X_ST"): a("s_memtime s[98:99]\ns_waitcnt lgkmcnt(0)\ns_mov_b32 s68, s98")
    a("s_memtime s[80:81]")
    a("s_waitcnt lgkmcnt(0)\ns_mov_b32 s53, 0")
    a.label(L('bloop'))
    chunk_read(1)
    chunk_mfma(0)
    a(f"s_waitcnt lgkmcnt(0)\ns_cmp_eq_u32 s53, 19\ns_cbranch_scc1 {L('blast')}")
    chunk_read(0)
    a.label(L('blast'))
    chunk_mfma(1)
    a(f"""
    s_and_b32 s40, s53, 1
    s_lshl_b32 s40, s40, 12
    s_add_u32 s40, s40, {MBOX}
    s_sub_u32 s41, s53, 12
    s_lshl_b32 s41, s41, 12
    s_cmp_lt_u32 s53, 12
    s_cselect_b32 s40, s40, s41
    v_add_u32 v{RB+2 if False else 242}, s40, v248
    s_nop 3
    """)
    for t in range(4):
        o = 224 + 4 * t
        for t2 in range(2):
            ac = BA + (t2 * 4 + t) * 4
            a(f"v_cvt_pk_bf16_f32 v{o+2*t2}, v{ac}, v{ac+1}")
            a(f"v_cvt_pk_bf16_f32 v{o+2*t2+1}, v{ac+2}, v{ac+3}")
    a(f"s_cmp_ge_u32 s53, 17\ns_cbranch_scc1 {L('bhold')}")
    for t in range(4):
        a(f"ds_write_b128 v242, v[{224+4*t}:{227+4*t}] offset:{1024*t}")
    a(f"s_branch {L('bnext')}")
    a.label(L('bhold'))
    for h in range(3):
        a(f"s_cmp_lg_u32 s53, {17+h}\ns_cbranch_scc1 {L(f'bh{h}')}")
        for r in range(16): a(f"v_mov_b32 v{HOLD+16*h+r}, v{224+r}")
        a.label(L(f'bh{h}'))
    a.label(L('bnext'))
    a(f"s_waitcnt lgkmcnt(0)\ns_add_u32 s53, s53, 1\ns_cmp_lt_u32 s53, 20\ns_cbranch_scc1 {L('bloop')}")
    a(f"v_mov_b32 v242, {OOB}")
    for ks in range(17, 20):
        for t in range(4):
            o = HOLD + ((ks - 17) * 4 + t) * 4
            a(f"ds_write_b128 v248, v[{o}:{o+3}] offset:{1024*ldsidx[(ks,t)]}")
    a("s_waitcnt lgkmcnt(0)")

    a.label(L('qkw'))
    if os.environ.get("X_ST"): a("s_memtime s[98:99]\ns_waitcnt lgkmcnt(0)\ns_mov_b32 s69, s98")
    a(f"""
    v_lshl_add_u32 v246, v251, 2, v247           ; 4g + rr
    v_bfe_u32 v244, v246, 1, 2
    v_xor_b32 v244, s23, v244
    v_lshlrev_b32 v246, 7, v246
    v_lshl_add_u32 v246, v244, 5, v246
    v_lshl_add_u32 v246, v245, 3, v246
    s_barrier
    """)
    for kq in range(4):
        if kq < 3: a(f"s_cmp_lg_u32 s23, {kq}\ns_cbranch_scc1 {L(f'qk{kq+1}')}")
        for r in range(20):
            a("s_barrier")
            for k4 in range(2):
                ks = 2 * (r % 10) + k4
                p = (ks - 5 * kq) % 20
                for hr in range(2):
                    rg = 80 * (r // 10) + 4 * p + 2 * hr
                    a(f"ds_read_b64_tr_b16 v[{rg}:{rg+1}], v246 offset:{(r&3)*8192 + k4*4096 + hr*2048}")
            a("s_waitcnt lgkmcnt(0)")
        if kq < 3:
            a(f"s_branch {L('qkd')}")
            a.label(L(f'qk{kq+1}'))
    a.label(L('qkd'))
    if os.environ.get("X_ST"): a("s_memtime s[98:99]\ns_waitcnt lgkmcnt(0)\ns_mov_b32 s72, s98")
    NFB = 5
    MF, MO, FB, AC = 160, 172, 176 + 4, 200
    QF, KF = 192, 194
    SD, SR = 160, 172
    SC, SL = 160, 172
    PF = 192
    PXR, ZR, PMR, OA = 160, 176, 180, 184
    TT = 198
    UF = 208
    KX = 244
    al = R(224)
    vD, vD3, vCld, vDst, vK0, vSXw, vSst, vKM, vQ1, vQ2, vQ3, vAx, vA2, vAm, vU, vCst, vPMw = [al() for _ in range(17)]
    T = 160
    a(f"""
    s_mul_i32 s40, s23, 2560
    v_add_u32 v{vD3}, s40, v243
    v_lshl_add_u32 v{vD}, v253, 9, v{vD3}
    s_lshl_b32 s41, s56, 10
    v_lshl_add_u32 v{T}, v253, 4, v252
    v_lshlrev_b32 v{vK0}, 4, v{T}
    v_and_b32 v{T+1}, 1, v251
    v_lshrrev_b32 v{T+2}, 1, v251
    v_lshl_add_u32 v{vK0}, v{T+1}, 9, v{vK0}
    v_lshl_add_u32 v{vK0}, v{T+2}, 3, v{vK0}
    v_add_u32 v{vK0}, s41, v{vK0}
    s_lshl_b32 s41, s23, 8
    s_add_u32 s41, s41, {L_KM}
    v_lshlrev_b32 v{vKM}, 7, v{T+1}
    v_lshl_add_u32 v{vKM}, v252, 4, v{vKM}
    v_lshl_add_u32 v{vKM}, v{T+2}, 3, v{vKM}
    v_add_u32 v{vKM}, s41, v{vKM}
    v_cmp_eq_u32 vcc, 0, v253
    s_lshl_b32 s40, s17, 10
    v_add_u32 v{vSXw}, s40, v249
    s_mul_i32 s40, s17, 3072
    v_add_u32 v248, s40, v249
    s_lshl_b32 s40, s17, 2
    v_add_u32 v{vPMw}, s40, v249
    s_mul_i32 s40, s21, {A_HEAD}
    s_cmp_ge_u32 s17, 2
    s_cbranch_scc1 {L('sst2')}
    v_lshl_add_u32 v{vSst}, v251, 4, v252
    s_lshl_b32 s41, s17, 3
    v_add_u32 v{vSst}, s41, v{vSst}
    s_cmp_eq_u32 s22, 2
    s_cbranch_scc1 {L('sstc2')}
    s_lshl_b32 s41, s22, 3
    s_add_u32 s40, s40, s41
    v_lshlrev_b32 v{vSst}, 4, v{vSst}
    s_branch {L('sstc')}
    """)
    a.label(L('sstc2'))
    a(f"s_add_u32 s40, s40, {A_X2}\nv_lshlrev_b32 v{vSst}, 3, v{vSst}")
    a.label(L('sstc'))
    a(f"""
    v_add_u32 v{vSst}, s40, v{vSst}
    v_cndmask_b32 v{vSst}, v242, v{vSst}, vcc
    s_branch {L('sstd')}
    """)
    a.label(L('sst2'))
    a(f"""
    s_lshl_b32 s41, s22, 2
    s_add_u32 s40, s40, s41
    s_add_u32 s40, s40, {A_M}
    v_lshlrev_b32 v{vSst}, 4, v252
    v_lshl_add_u32 v{vSst}, v251, 8, v{vSst}
    v_add_u32 v{vSst}, s40, v{vSst}
    v_cndmask_b32 v{vSst}, v242, v{vSst}, vcc
    v_cmp_gt_u32 vcc, 2, v251
    s_nop 1
    v_cndmask_b32 v{vSst}, v242, v{vSst}, vcc
    """)
    a.label(L('sstd'))
    for qq, vq in ((1, vQ1), (2, vQ2), (3, vQ3)):
        a(f"s_add_u32 s40, s23, {qq}\ns_and_b32 s40, s40, 3\ns_mul_i32 s40, s40, 2560\ns_add_u32 s40, s40, {L_MEMX}\nv_add_u32 v{vq}, s40, v243")
    cs = DH ** -0.5 * math.log2(math.e)
    a(f"""
    s_mul_i32 s40, s23, {A_HEAD}
    v_add_u32 v{vAx}, s40, v249
    v_lshlrev_b32 v{vA2}, 3, v255
    v_add_u32 v{vA2}, s40, v{vA2}
    v_add_u32 v{vAm}, s40, v243
    v_lshlrev_b32 v{vU}, 9, v251
    v_lshl_add_u32 v{vU}, v250, 4, v{vU}
    s_lshl_b32 s36, s19, 2
    s_mul_i32 s36, s36, {UH}
    s_add_u32 s36, s36, {U_OFF}
    s_min_u32 s40, s20, 9
    s_lshl_b32 s40, s40, 12
    s_add_u32 s36, s36, s40
    s_lshr_b32 s40, s23, 1
    s_lshl_b32 s40, s40, 11
    s_add_u32 s36, s36, s40
    s_and_b32 s40, s23, 1
    s_lshl_b32 s40, s40, 8
    s_add_u32 s36, s36, s40
    s_mul_i32 s40, s19, 10240
    s_lshl_b32 s41, s20, 10
    s_add_u32 s40, s40, s41
    s_lshl_b32 s41, s23, 8
    s_add_u32 s40, s40, s41
    v_lshlrev_b32 v{vCst}, 6, v251
    v_lshl_add_u32 v{vCst}, v252, 3, v{vCst}
    v_add_u32 v{vCst}, s40, v{vCst}
    v_lshrrev_b32 v{T}, 13, v{vCst}
    v_lshlrev_b32 v{T}, 13, v{T}
    v_add_u32 v{vCst}, v{vCst}, v{T}
    v_cmp_eq_u32 vcc, 0, v253
    s_nop 1
    v_cndmask_b32 v{vCst}, v242, v{vCst}, vcc
    s_mov_b32 s53, {f32(cs)}
    """)
    s3_setup(a, vCld, vDst, T)
    if os.environ.get("X_ST"): a("s_memtime s[98:99]\ns_waitcnt lgkmcnt(0)\ns_mov_b32 s73, s98")
    k_init.census(a, 160, 39)
    k_init.wait_init(a, 160, out_par=41)
    a("s_and_b32 s41, s41, 8192\ns_add_u32 s24, s24, s41")
    if STAMP >= 0:
        for i in range(12): a(f"s_mov_b32 s{64+i}, 0")
    a(f"""
    s_mul_i32 s35, s25, {PH}
    s_add_u32 s35, s35, {K_OFF}
    s_memtime s[88:89]
    s_barrier
    s_memtime s[96:97]
    s_waitcnt lgkmcnt(0)
    s_cmp_eq_u32 s17, 1
    s_cselect_b32 s88, s80, s88
    s_waitcnt lgkmcnt(0)
    s_setprio 3
    """)
    if alt: a(f"s_cmp_eq_u32 s39, {int(os.environ.get('FORCE_IMPURE', 0))}\ns_cbranch_scc1 {alt}_loopA")
    a.label(L('loopA'))
    slot_bases(a)
    stamp(a, 0)
    poll(a, pfx, [f"buffer_load_dwordx4 v[{MF}:{MF+3}], v{vD}, s[12:15], s32 offen sc1",
                  f"buffer_load_dwordx4 v[{MF+4}:{MF+7}], v{vD}, s[12:15], s32 offen offset:1024 sc1",
                  f"buffer_load_dwordx4 v[{MF+8}:{MF+11}], v{vD3}, s[12:15], s32 offen offset:2048 sc1"],
         range(MF, MF + 12), TT)
    stamp(a, 1)
    def mm(p, f):
        for ti, wb in enumerate((0, 80)):
            c = '0' if p == 0 else f"v[{AC+4*ti}:{AC+4*ti+3}]"
            a(f"v_mfma_f32_16x16x32_bf16 v[{AC+4*ti}:{AC+4*ti+3}], v[{wb+4*p}:{wb+4*p+3}], v[{f}:{f+3}], {c}")
    def rd(p):
        nb = FB + 4 * ((p - 5) % NFB)
        a(f"ds_read_b128 v[{nb}:{nb+3}], v{(vQ1, vQ2, vQ3)[p//5-1]} offset:{512*(p%5)}")
    a(f"""
    ds_write_b128 v{vD}, v[{MF}:{MF+3}] offset:{L_MEMX}
    ds_write_b128 v{vD}, v[{MF+4}:{MF+7}] offset:{L_MEMX+1024}
    ds_write_b128 v{vD3}, v[{MF+8}:{MF+11}] offset:{L_MEMX+2048}
    """)
    mm(0, MF)
    for j in range(4): a(f"v_mov_b32_dpp v{MO+j}, v{MF+j} row_ror:8 row_mask:0xf bank_mask:0xf")
    mm(2, MF + 4)
    for j in range(4, 8): a(f"v_mov_b32_dpp v{MO+j}, v{MF+j} row_ror:8 row_mask:0xf bank_mask:0xf")
    a("s_waitcnt lgkmcnt(0)\ns_barrier")
    stamp(a, 2)
    for p in range(5, 5 + NFB - 1): rd(p)
    mm(4, MF + 8); mm(1, MO); mm(3, MO + 4)
    late = [f"buffer_load_dwordx2 v[{KX}:{KX+1}], v{vK0}, s[12:15], s35 offen",
            f"buffer_load_dwordx2 v[{KX+2}:{KX+3}], v{vK0}, s[12:15], s35 offen offset:128",
            f"s_add_u32 s35, s35, {0 if NOU else P_SEG}"]
    if not ULATE:
        for hd in range(4):
            late.append(f"s_add_u32 s40, s36, {hd*UH}\nbuffer_load_dwordx4 v[{UF+4*hd}:{UF+4*hd+3}], v{vU}, s[12:15], s40 offen")
        late.append(f"s_add_u32 s36, s36, {0 if NOU else U_SEG}")
    for p in range(5, 20):
        a(f"s_waitcnt lgkmcnt({min(NFB-2, 19-p)})")
        mm(p, FB + 4 * ((p - 5) % NFB))
        if p + NFB - 1 < 20: rd(p + NFB - 1)
        if late: a(late.pop(0))
    stamp(a, 3)
    a(f"""
    s_nop 6
    v_cvt_pk_bf16_f32 v{QF}, v{AC}, v{AC+1}
    v_cvt_pk_bf16_f32 v{QF+1}, v{AC+2}, v{AC+3}
    v_cvt_pk_bf16_f32 v{KF}, v{AC+4}, v{AC+5}
    v_cvt_pk_bf16_f32 v{KF+1}, v{AC+6}, v{AC+7}
    s_waitcnt vmcnt({0 if ULATE else 4})
    v_mfma_f32_16x16x16_bf16 v[{SD}:{SD+3}], v[{KX}:{KX+1}], v[{QF}:{QF+1}], 0
    v_mfma_f32_16x16x16_bf16 v[{SD+4}:{SD+7}], v[{KX+2}:{KX+3}], v[{QF}:{QF+1}], 0
    v_mfma_f32_16x16x16_bf16 v[{SD+8}:{SD+11}], v[{KF}:{KF+1}], v[{QF}:{QF+1}], 0
    s_nop 5
    ds_write_b128 v248, v[{SD}:{SD+3}] offset:{L_SX}
    ds_write_b128 v248, v[{SD+4}:{SD+7}] offset:{L_SX+1024}
    ds_write_b128 v248, v[{SD+8}:{SD+11}] offset:{L_SX+2048}
    s_waitcnt lgkmcnt(0)
    s_barrier
    """)
    stamp(a, 4)
    a(f"""
    s_cmp_eq_u32 s17, 3
    s_cbranch_scc1 {L('std')}
    ds_read_b128 v[{SD}:{SD+3}], v{vSXw} offset:{L_SX}
    ds_read_b128 v[{SD+4}:{SD+7}], v{vSXw} offset:{L_SX+3072}
    ds_read_b128 v[{SR}:{SR+3}], v{vSXw} offset:{L_SX+6144}
    ds_read_b128 v[{SR+4}:{SR+7}], v{vSXw} offset:{L_SX+9216}
    s_waitcnt lgkmcnt(2)
    v_add_f32 v{SD}, v{SD}, v{SD+4}
    v_add_f32 v{SD+1}, v{SD+1}, v{SD+5}
    v_add_f32 v{SD+2}, v{SD+2}, v{SD+6}
    v_add_f32 v{SD+3}, v{SD+3}, v{SD+7}
    s_waitcnt lgkmcnt(0)
    v_add_f32 v{SR}, v{SR}, v{SR+4}
    v_add_f32 v{SR+1}, v{SR+1}, v{SR+5}
    v_add_f32 v{SR+2}, v{SR+2}, v{SR+6}
    v_add_f32 v{SR+3}, v{SR+3}, v{SR+7}
    v_add_f32 v{SD}, v{SD}, v{SR}
    v_add_f32 v{SD+1}, v{SD+1}, v{SR+1}
    v_add_f32 v{SD+2}, v{SD+2}, v{SR+2}
    v_add_f32 v{SD+3}, v{SD+3}, v{SR+3}
    v_cvt_pk_bf16_f32 v{SR}, v{SD}, v{SD+1}
    v_cvt_pk_bf16_f32 v{SR+1}, v{SD+2}, v{SD+3}
    v_min_u32 v{SR}, s49, v{SR}
    v_min_u32 v{SR+1}, s49, v{SR+1}
    s_cmp_eq_u32 s17, 2
    s_cbranch_scc1 {L('st2')}
    buffer_store_dwordx2 v[{SR}:{SR+1}], v{vSst}, s[12:15], s28 offen{lsc}
    s_branch {L('std')}
    """)
    a.label(L('st2'))
    a(f"""
    buffer_store_dword v{SR}, v{vSst}, s[12:15], s28 offen{lsc}
    buffer_store_dword v{SR+1}, v{vSst}, s[12:15], s28 offen offset:128{lsc}
    """)
    a.label(L('std'))
    stamp(a, 5)
    a(f"s_mov_b64 exec, s[44:45]\nds_write_b64 v{vKM}, v[{KF}:{KF+1}]\ns_mov_b64 exec, -1")
    a(f"s_cmp_ge_u32 s20, 10\ns_cbranch_scc1 {L('endA')}")
    if ULATE:
        for hd in range(4):
            a(f"s_add_u32 s40, s36, {hd*UH}\nbuffer_load_dwordx4 v[{UF+4*hd}:{UF+4*hd+3}], v{vU}, s[12:15], s40 offen")
        a(f"s_add_u32 s36, s36, {0 if NOU else U_SEG}")
    if SSLEEP: a(f"s_sleep {SSLEEP}")
    poll(a, pfx, [f"buffer_load_dwordx4 v[{SC}:{SC+3}], v{vAx}, s[12:15], s28 offen sc1",
                  f"buffer_load_dwordx2 v[{SC+4}:{SC+5}], v{vA2}, s[12:15], s28 offen offset:{A_X2} sc1",
                  f"buffer_load_dwordx3 v[{SC+8}:{SC+10}], v{vAm}, s[12:15], s28 offen offset:{A_M} sc1"],
         list(range(SC, SC + 6)) + list(range(SC + 8, SC + 11)), TT)
    stamp(a, 7)
    src = list(range(SC, SC + 6)) + list(range(SC + 8, SC + 11))
    for j, sreg in enumerate(src):
        a(f"v_lshlrev_b32 v{SL+2*j}, 16, v{sreg}")
        a(f"v_and_b32 v{SL+2*j+1}, 0xffff0000, v{sreg}")
    pk = lambda d, x, y: a(f"v_add_f32 v{d}, v{x}, v{y}\nv_add_f32 v{d+1}, v{x+1}, v{y+1}")
    pk(SL, SL, SL + 4); pk(SL + 2, SL + 2, SL + 6); pk(SL + 4, SL + 12, SL + 14)
    pk(SL, SL, SL + 8); pk(SL + 2, SL + 2, SL + 10); pk(SL + 4, SL + 4, SL + 16)
    mx, t2, sm = TT, TT + 1, TT + 2
    a(f"""
    v_max3_f32 v{mx}, v{SL}, v{SL+1}, v{SL+2}
    v_max3_f32 v{t2}, v{SL+3}, v{SL+4}, v{SL+5}
    v_max_f32 v{mx}, v{mx}, v{t2}
    s_nop 1
    v_max_f32_dpp v{mx}, v{mx}, v{mx} row_ror:8 row_mask:0xf bank_mask:0xf
    v_mov_b32 v{t2}, v{mx}
    s_nop 1
    v_permlane32_swap_b32 v{mx}, v{t2}
    v_max_f32 v{mx}, v{mx}, v{t2}
    v_mov_b32 v{t2}, v{mx}
    s_nop 1
    v_permlane16_swap_b32 v{mx}, v{t2}
    v_max_f32 v{mx}, v{mx}, v{t2}
    v_mul_f32 v{mx}, s53, v{mx}
    """)
    for j in range(6):
        a(f"v_fma_f32 v{SL+j}, v{SL+j}, s53, -v{mx}")
    for j in range(6):
        a(f"v_exp_f32 v{SL+j}, v{SL+j}")
    a(f"""
    v_add_f32 v{sm}, v{SL}, v{SL+2}
    v_add_f32 v{sm+1}, v{SL+1}, v{SL+3}
    v_add_f32 v{t2}, v{SL+4}, v{SL+5}
    v_add_f32 v{sm}, v{sm}, v{sm+1}
    v_fmac_f32 v{sm}, 0.5, v{t2}
    s_nop 1
    v_add_f32_dpp v{sm}, v{sm}, v{sm} row_ror:8 row_mask:0xf bank_mask:0xf
    v_mov_b32 v{t2}, v{sm}
    s_nop 1
    v_permlane32_swap_b32 v{sm}, v{t2}
    v_add_f32 v{sm}, v{sm}, v{t2}
    v_mov_b32 v{t2}, v{sm}
    s_nop 1
    v_permlane16_swap_b32 v{sm}, v{t2}
    v_add_f32 v{sm}, v{sm}, v{t2}
    v_rcp_f32 v{sm}, v{sm}
    s_nop 0
    v_mul_f32 v{SL}, v{SL}, v{sm}
    v_mul_f32 v{SL+1}, v{SL+1}, v{sm}
    v_mul_f32 v{SL+2}, v{SL+2}, v{sm}
    v_mul_f32 v{SL+3}, v{SL+3}, v{sm}
    v_mul_f32 v{SL+4}, v{SL+4}, v{sm}
    v_mul_f32 v{SL+5}, v{SL+5}, v{sm}
    v_cvt_pk_bf16_f32 v{PF}, v{SL}, v{SL+1}
    v_cvt_pk_bf16_f32 v{PF+1}, v{SL+2}, v{SL+3}
    v_cvt_pk_bf16_f32 v{PF+4}, v{SL+4}, v{SL+5}
    v_mov_b32_dpp v{PF+2}, v{PF} row_ror:8 row_mask:0xf bank_mask:0xf
    v_mov_b32_dpp v{PF+3}, v{PF+1} row_ror:8 row_mask:0xf bank_mask:0xf
    ds_write_b32 v{vPMw}, v{PF+4} offset:{L_PM}
    ds_write_b128 v{vSXw}, v[{PF}:{PF+3}] offset:{L_PX}
    """)
    stamp(a, 8)
    a("s_waitcnt lgkmcnt(0)\ns_barrier")
    stamp(a, 9)
    for hd in range(4):
        a(f"ds_read_b128 v[{PXR+4*hd}:{PXR+4*hd+3}], v249 offset:{L_PX+1024*hd}")
    a(f"ds_read_b128 v[{PMR}:{PMR+3}], v249 offset:{L_PM}")
    a(f"ds_read_b128 v[{ZR}:{ZR+3}], v{vSXw} offset:{L_ZM}")
    for hd in range(4):
        a(f"s_waitcnt lgkmcnt({5-hd})")
        c = '0' if hd == 0 else f"v[{OA}:{OA+3}]"
        a(f"v_mfma_f32_16x16x32_bf16 v[{OA}:{OA+3}], v[{UF+4*hd}:{UF+4*hd+3}], v[{PXR+4*hd}:{PXR+4*hd+3}], {c}")
    a(f"""
    s_waitcnt lgkmcnt(0)
    v_mfma_f32_16x16x32_bf16 v[{OA}:{OA+3}], v[{ZR}:{ZR+3}], v[{PMR}:{PMR+3}], v[{OA}:{OA+3}]
    s_nop 7
    v_cvt_pk_bf16_f32 v{TT}, v{OA}, v{OA+1}
    v_cvt_pk_bf16_f32 v{TT+1}, v{OA+2}, v{OA+3}
    v_min_u32 v{TT}, s49, v{TT}
    v_min_u32 v{TT+1}, s49, v{TT+1}
    buffer_store_dwordx2 v[{TT}:{TT+1}], v{vCst}, s[12:15], s30 offen sc1
    """)
    stamp(a, 10)
    if DUAL:
        a(f"s_sleep {CS2}")
        a(f"s_cmp_eq_u32 s27, {NST-1}\ns_cbranch_scc1 {L('endA')}")
        s3_run(a, pfx, vCld, vDst, 160, lsc)
    else:
        a(f"s_sleep {DSLEEP}")
    a.label(L('endA'))
    stamp(a, 11)
    a(f"""
    s_add_u32 s27, s27, 1
    s_cmp_lt_u32 s27, {NST}
    s_cbranch_scc1 {L('loopA')}
    s_waitcnt lgkmcnt(0)
    s_barrier
    """)
    if fused: a("s_barrier")
    a(f"s_branch {L('done')}")

    a.label(L('yw'))
    a(f"""
    s_cmp_ge_u32 s20, 10
    s_cbranch_scc1 {L('norecv')}
    v_add_u32 v248, s58, v249
    s_load_dwordx2 s[8:9], s[0:1], {KA['wv']}
    s_mov_b32 s10, {WB}
    s_mov_b32 s11, 0x00020000
    s_mul_i32 s52, s26, 384
    """)
    DV = 200; T = 236
    for n in range(6):
        a(f"""
        v_add_u32 v{T+1}, {64*n}, v255
        v_mul_u32_u24 v{T+2}, 2731, v{T+1}
        v_lshrrev_b32 v{T+2}, 16, v{T+2}
        v_mul_u32_u24 v{T+3}, 24, v{T+2}
        v_sub_u32 v{T+3}, v{T+1}, v{T+3}
        v_and_b32 v{T+4}, 7, v{T+2}
        v_xor_b32 v{T+3}, v{T+3}, v{T+4}
        v_mul_u32_u24 v{T+2}, 12288, v{T+2}
        v_lshl_add_u32 v{DV+n}, v{T+3}, 4, v{T+2}
        """)
    a("s_waitcnt lgkmcnt(0)")
    def bdma(c):
        if os.environ.get('X_NODMA'): return
        a(f"s_mov_b32 s43, s{76+c%3}")
        for n in range(6):
            a(f"s_mov_b32 m0, s43\ns_add_u32 s43, s43, 1024")
            a(f"buffer_load_dwordx4 v{DV+n}, s[8:11], s52 offen lds")
        a(f"s_add_u32 s52, s52, {16*12288}")
    bdma(0); bdma(1)
    for c in range(40):
        a(f"s_waitcnt vmcnt({6 if c < 39 else 0})\ns_barrier")
        if c + 2 < 40: bdma(c + 2)
        if c >= 3 and c % 2 == 1 and (c - 3) // 2 < 12:
            ks = (c - 3) // 2
            for t in range(4):
                if (ks, t) in regidx:
                    f = regidx[(ks, t)]
                    a(f"ds_read_b128 v[{4*f}:{4*f+3}], v248 offset:{MBOX + (ks&1)*4096 + 1024*t}")
            a("s_waitcnt lgkmcnt(0)")
    a.label(L('norecv'))
    a("s_memtime s[88:89]\ns_waitcnt lgkmcnt(0)")
    a(f"""
    s_load_dwordx2 s[8:9], s[0:1], {KA['wq']}
    s_load_dwordx2 s[60:61], s[0:1], {KA['wk']}
    s_mov_b32 s10, {WB}
    s_mov_b32 s11, 0x00020000
    s_mov_b32 s62, {WB}
    s_mov_b32 s63, 0x00020000
    v_lshrrev_b32 v200, 3, v255
    v_bfe_u32 v201, v200, 1, 2
    v_lshlrev_b32 v201, 1, v201
    v_xor_b32 v201, v201, v252
    v_mul_u32_u24 v200, 12288, v200
    v_lshl_add_u32 v200, v201, 4, v200
    s_mul_i32 s54, s25, 384
    s_lshl_b32 s40, s22, 7
    s_add_u32 s54, s54, s40
    s_mul_i32 s40, s23, {16*12288}
    s_add_u32 s54, s54, s40
    s_lshl_b32 s57, s23, 11
    s_waitcnt lgkmcnt(0)
    s_barrier
    """)
    def qdma(r):
        sr = 8 if r < 10 else 60
        a(f"s_add_u32 s52, s54, {(r%10)*64*12288}\ns_add_u32 s43, s57, {(r&3)*8192}")
        for n in range(2):
            a(f"s_mov_b32 m0, s43\ns_add_u32 s43, s43, 1024")
            a(f"buffer_load_dwordx4 v200, s[{sr}:{sr+3}], s52 offen lds")
            a(f"s_add_u32 s52, s52, {8*12288}")
    qdma(0); qdma(1); qdma(2)
    for r in range(20):
        a(f"s_waitcnt vmcnt({2*min(2, 19-r)})\ns_barrier")
        if r + 3 < 20: qdma(r + 3)
    a(f"s_cmp_lg_u32 s16, 11\ns_cbranch_scc1 {L('nopb')}\ns_cmp_lg_u32 s18, 0\ns_cbranch_scc1 {L('nopb')}\ns_cmp_lg_u32 s17, 7\ns_cbranch_scc1 {L('nopb')}")
    k_init.probe(a)
    a.label(L('nopb'))
    YFB = 4 * NBR
    YWB = YFB + 16
    YA = YWB + 16
    vZw, vYw, vCld, vDst, vBl = 244, 245, 246, 247, 248
    vRd, vYr, vMem = 250, 251, 252
    T = YFB
    a(f"""
    v_lshlrev_b32 v{vZw}, 9, v251
    v_lshl_add_u32 v{vZw}, v250, 4, v{vZw}
    s_lshl_b32 s40, s23, 2
    s_add_u32 s40, s40, {L_ZM}
    v_add_u32 v{vZw}, s40, v{vZw}
    v_lshlrev_b32 v{vYw}, 8, v251
    v_lshl_add_u32 v{vYw}, v250, 3, v{vYw}
    s_lshl_b32 s40, s23, 10
    s_add_u32 s40, s40, {L_Y}
    v_add_u32 v{vYw}, s40, v{vYw}
    s_mov_b32 s79, s40
    v_add_u32 v{vBl}, s58, v249
    s_mul_i32 s40, s21, {A_HEAD}
    s_lshl_b32 s61, s22, 3
    s_cmp_eq_u32 s22, 2
    s_cselect_b32 s61, {A_X2}, s61
    s_cselect_b32 s62, 3, 4
    s_add_u32 s61, s61, s40
    s_lshl_b32 s63, s22, 2
    s_add_u32 s63, s63, s40
    s_add_u32 s63, s63, {A_M}
    s_lshl_b32 s52, s55, 9
    s_mul_i32 s54, s19, 10240
    s_lshl_b32 s42, s20, 10
    s_add_u32 s54, s54, s42
    s_lshr_b32 s42, s54, 13
    s_lshl_b32 s42, s42, 13
    s_add_u32 s54, s54, s42
    """)
    s3_setup(a, vCld, vDst, T)
    a(f"""
    v_mov_b32 v{vMem}, v243
    v_add_u32 v{vYr}, s79, v249
    v_and_b32 v{vRd}, 31, v255
    v_lshlrev_b32 v{vRd}, 2, v{vRd}
    s_lshl_b32 s40, s18, 7
    s_add_u32 s59, s40, {PROG_OFF}
    s_add_u32 s40, s40, {RDY_OFF}
    v_add_u32 v{vRd}, s40, v{vRd}
    s_mul_i32 s60, s18, 24
    s_add_u32 s60, s60, s16
    s_lshl_b32 s60, s60, 6
    s_add_u32 s60, s60, {PR_OFF}
    s_mul_i32 s38, s26, {YH}
    s_add_u32 s38, s38, {Y_OFF - Y_SEG}
    s_lshl_b32 s40, s20, 10
    s_add_u32 s38, s38, s40
    s_mul_i32 s37, s25, {KMH}
    s_add_u32 s37, s37, {KM_OFF - KM_SEG}
    s_lshl_b32 s40, s22, 10
    s_add_u32 s37, s37, s40
    """)
    TT = YA
    def ready(need_expr):
        if not fused: return
        lp = a.uid(pfx + '_rlp'); ok = a.uid(pfx + '_rok')
        a(need_expr)
        a.label(lp)
        a(f"""
        buffer_load_dword v{TT}, v{vRd}, s[12:15], 0 offen sc1
        s_sub_u32 s46, s46, 1
        s_cbranch_scc1 {ok}_x
        s_waitcnt vmcnt(0)
        v_cmp_gt_u32 vcc, s57, v{TT}
        s_cbranch_vccz {ok}
        s_sleep 2
        s_branch {lp}
        """)
        a.label(ok + '_x')
        a("s_mov_b32 s46, 0")
        a.label(ok)
    def flush(FT):
        sk = a.uid(pfx + '_fl')
        a(f"ds_read_b128 v[{FT}:{FT+3}], v{vYr}")
        a(f"ds_read_b128 v[{FT+4}:{FT+7}], v249 offset:{L_KM}")
        a(f"s_waitcnt lgkmcnt(0)\ns_cmp_ge_u32 s20, 10\ns_cbranch_scc1 {sk}_a")
        a(f"buffer_store_dwordx4 v[{FT}:{FT+3}], v249, s[12:15], s38 offen sc1")
        a.label(sk + '_a')
        a(f"s_cmp_lg_u32 s17, 4\ns_cbranch_scc1 {sk}_b")
        a(f"buffer_store_dwordx4 v[{FT+4}:{FT+7}], v249, s[12:15], s37 offen sc1")
        a.label(sk + '_b')
        a(f"s_add_u32 s38, s38, {Y_SEG}\ns_add_u32 s37, s37, {KM_SEG}")
    def word_store(val_s, addr_s, t):
        a(f"v_mov_b32 v{t}, s{val_s}\nv_mov_b32 v{t+1}, s{addr_s}\nbuffer_store_dword v{t}, v{t+1}, s[12:15], 0 offen sc1")
    k_init.census(a, YA, 39)
    k_init.wait_init(a, YA, out_par=41)
    a("s_and_b32 s41, s41, 8192\ns_add_u32 s24, s24, s41")
    if STAMP >= 0:
        for i in range(12): a(f"s_mov_b32 s{64+i}, 0")
    ready("s_mov_b32 s57, 1")
    a("s_barrier\ns_memtime s[96:97]\ns_waitcnt lgkmcnt(0)\ns_setprio 1")
    if alt: a(f"s_cmp_eq_u32 s39, {int(os.environ.get('FORCE_IMPURE', 0))}\ns_cbranch_scc1 {alt}_loopS")
    a.label(L('loopS'))
    slot_bases(a)
    stamp(a, 0)
    a("s_barrier")
    stamp(a, 2)
    flush(YA)
    if fused:
        a(f"s_cmp_lg_u32 s17, 7\ns_cbranch_scc1 {L('nopr')}\ns_cmp_lt_u32 s27, 2\ns_cbranch_scc1 {L('nopr')}\ns_sub_u32 s40, s27, 1")
        word_store(40, 60, YA + 8)
        a.label(L('nopr'))
    a(f"s_cmp_lg_u32 s17, 6\ns_cbranch_scc1 {L('nopois')}")
    PO = YA + 12
    for j in range(4): a(f"v_mov_b32 v{PO+j}, -1")
    a(f"""
    v_lshlrev_b32 v{YA+8}, s62, v255
    v_and_b32 v{YA+9}, 0x1ff, v249
    s_add_u32 s40, s29, s61
    s_add_u32 s41, s29, s63
    buffer_store_dwordx2 v[{PO}:{PO+1}], v{YA+8}, s[12:15], s40 offen{lsc}
    buffer_store_dword v{PO}, v{YA+9}, s[12:15], s41 offen{lsc}
    s_cmp_ge_u32 s20, 10
    s_cbranch_scc1 {L('nopois')}
    s_add_u32 s40, s31, s54
    s_add_u32 s41, s34, s52
    buffer_store_dwordx4 v[{PO}:{PO+3}], v249, s[12:15], s40 offen sc1
    buffer_store_dwordx4 v[{PO}:{PO+3}], v{YA+9}, s[12:15], s41 offen{lsc}
    """)
    a.label(L('nopois'))
    a(f"s_cmp_lg_u32 s17, 5\ns_cbranch_scc1 {L('noprog')}\ns_cmp_lg_u32 s16, 11\ns_cbranch_scc1 {L('noprog')}\ns_add_u32 s40, s27, 1")
    word_store(40, 59, YA + 8)
    if os.environ.get('MAIN_DUMP'):
        a(f"""
        s_memtime s[98:99]
        s_memrealtime s[100:101]
        s_waitcnt lgkmcnt(0)
        v_mov_b32 v{YA+2}, s98
        v_mov_b32 v{YA+3}, s100
        s_lshl_b32 s40, s18, 6
        s_add_u32 s40, s40, s27
        s_lshl_b32 s40, s40, 3
        s_add_u32 s40, s40, {WS_END+140000//16*16}
        v_mov_b32 v{YA+1}, 0
        buffer_store_dwordx2 v[{YA+2}:{YA+3}], v{YA+1}, s[12:15], s40 offen
        """)
    a.label(L('noprog'))
    a(f"s_cmp_lt_u32 s20, 10\ns_cbranch_scc1 {L('yjob')}\ns_barrier\ns_branch {L('endS')}")
    a.label(L('yjob'))
    B1AT = int(os.environ.get('REC_B1S', 4))
    issued = []
    def lds(tag, ins): a(ins); issued.append(tag)
    def need(tag):
        k = len(issued) - 1 - issued.index(tag)
        a(f"s_waitcnt lgkmcnt({min(k, 15)})")
    pairs_ = [(0, 12), (1, 13), (2, 14), (3, 15), (4, 16), (5, 17), (6, 18), (7, 19), (8, 9), (10, 11)]
    seq = []
    for (ka, kb) in pairs_[:8]:
        for t in range(4): seq += [(ka, t), (kb, t)]
    for t in range(4):
        seq += [(k, t) for k in (8, 9, 10, 11)]
    kseq = [k for p in pairs_ for k in p]
    mbuf = {k: YFB + 4 * (n % 4) for n, k in enumerate(kseq)}
    def rmem(ks): lds(('m', ks), f"ds_read_b128 v[{mbuf[ks]}:{mbuf[ks]+3}], v{vMem} offset:{L_MEMX+512*ks}")
    lkeys = [k for k in seq if k in ldsidx]
    lbuf = {k: YWB + 4 * (n % 4) for n, k in enumerate(lkeys)}
    nxt = [0]
    def rb_upto(n):
        while nxt[0] < min(n, len(lkeys)):
            k = lkeys[nxt[0]]
            lds(('b', k), f"ds_read_b128 v[{lbuf[k]}:{lbuf[k]+3}], v{vBl} offset:{1024*ldsidx[k]}"); nxt[0] += 1
    rmem(kseq[0]); rmem(kseq[1]); rb_upto(4)
    seen = set()
    ZO = YWB
    def zout(t):
        a(f"v_cvt_pk_bf16_f32 v{ZO+2*t}, v{YA+4*t}, v{YA+4*t+1}")
        a(f"v_cvt_pk_bf16_f32 v{ZO+2*t+1}, v{YA+4*t+2}, v{YA+4*t+3}")
        a("s_mov_b32 exec_hi, 0")
        a(f"ds_write_b32 v{vZw}, v{ZO+2*t} offset:{1024*t}")
        a(f"ds_write_b32 v{vZw}, v{ZO+2*t+1} offset:{1024*t+256}")
        a("s_mov_b32 exec_hi, -1")
    for n, (ks, t) in enumerate(seq):
        pi = n // 8
        if n % 8 == 0:
            if 2 * pi == B1AT or 2 * pi == B1AT + 1 and B1AT % 2: a("s_barrier")
            if pi + 1 < len(pairs_): rmem(kseq[2 * pi + 2]); rmem(kseq[2 * pi + 3])
        if ('m', ks) not in seen:
            need(('m', ks)); seen.add(('m', ks))
        if (ks, t) in ldsidx:
            need(('b', (ks, t))); w = lbuf[(ks, t)]
        else:
            w = 4 * regidx[(ks, t)]
        fb = mbuf[ks]
        c = '0' if n < 8 and n % 2 == 0 else f"v[{YA+4*t}:{YA+4*t+3}]"
        a(f"v_mfma_f32_16x16x32_bf16 v[{YA+4*t}:{YA+4*t+3}], v[{fb}:{fb+3}], v[{w}:{w+3}], {c}")
        if (ks, t) in ldsidx: rb_upto(lkeys.index((ks, t)) + 5)
        if n >= 64 and ks == 11 and t >= 1:
            a("s_nop 3")
            zout(t - 1)
    stamp(a, 7)
    a("s_nop 1")
    zout(3)
    a("s_mov_b32 exec_hi, 0")
    stamp(a, 8)
    a("s_waitcnt lgkmcnt(0)\ns_barrier")
    stamp(a, 9)
    for t in range(4):
        a(f"ds_write_b64 v{vYw}, v[{ZO+2*t}:{ZO+2*t+1}] offset:{(t>>1)*512+(t&1)*128}")
    a("s_mov_b32 exec_hi, -1\ns_waitcnt lgkmcnt(0)")
    a(f"s_cmp_eq_u32 s27, {NST-1}\ns_cbranch_scc1 {L('endS')}\ns_sleep {CSLEEP}")
    s3_run(a, pfx, vCld, vDst, YA, lsc)
    a.label(L('endS'))
    stamp(a, 11)
    ready(f"s_add_u32 s57, s27, 2\ns_min_u32 s57, s57, {NSEG}")
    a(f"s_add_u32 s27, s27, 1\ns_cmp_lt_u32 s27, {NST}\ns_cbranch_scc1 {L('loopS')}")
    a("s_barrier")
    flush(YA)
    if fused:
        a(f"s_cmp_lg_u32 s17, 5\ns_cbranch_scc1 {L('nofp')}\ns_cmp_lg_u32 s16, 11\ns_cbranch_scc1 {L('nofp')}\ns_mov_b32 s40, {NSEG+2}")
        word_store(40, 59, YA + 8)
        a.label(L('nofp'))
        a(f"s_waitcnt vmcnt(0)\ns_barrier\ns_cmp_lg_u32 s17, 7\ns_cbranch_scc1 {L('done')}")
        word_store(27, 60, YA + 8)
    a.label(L('done'))

def weight_prefetch(a, pfx):
    WB = DM * H * DH * 2
    a(f"""
    s_sub_u32 s19, s16, 24
    s_lshl_b32 s19, s19, 3
    s_add_u32 s19, s19, s17              ; gw 0..63
    s_mul_i32 s20, s19, 12288
    s_mul_i32 s40, s18, 3072
    s_add_u32 s20, s20, s40
    v_lshlrev_b32 v1, 4, v255
    s_mov_b32 s10, {WB}
    s_mov_b32 s11, 0x00020000
    """)
    def sweep(nm, nrows_per_wave, stride_rows):
        a(f"s_load_dwordx2 s[8:9], s[0:1], {KA[nm]}\ns_mov_b32 s21, s20\ns_mov_b32 s22, 0\ns_waitcnt lgkmcnt(0)")
        lp = a.uid(pfx + '_sw')
        a.label(lp)
        for r in range(10):
            for j in range(3):
                k = r * 3 + j
                a(f"buffer_load_dwordx4 v[{8+4*k}:{11+4*k}], v1, s[8:11], s21 offen offset:{1024*j}")
            a(f"s_add_u32 s21, s21, {stride_rows*12288}")
        a(f"s_waitcnt vmcnt(0)\ns_add_u32 s22, s22, 10\ns_cmp_lt_u32 s22, {nrows_per_wave}\ns_cbranch_scc1 {lp}")
    done = a.uid(pfx + '_dn'); lp = a.uid(pfx + '_wt'); qk = a.uid(pfx + '_qk')
    a(f"s_cmp_ge_u32 s16, 28\ns_cbranch_scc1 {qk}")
    sweep('wv', 20, 32)
    k_init.wait_init(a, 8)
    a(f"s_branch {done}")
    a.label(qk)
    k_init.wait_init(a, 8)
    a(f"""
    s_sub_u32 s20, s20, {32*12288}
    s_mov_b32 s46, 2000000
    v_mov_b32 v2, {PB_OFF + 384*4}
    """)
    a.label(lp)
    a(f"""
    buffer_load_dword v3, v2, s[12:15], 0 offen sc1
    s_sub_u32 s46, s46, 1
    s_cbranch_scc1 {lp}_go
    s_waitcnt vmcnt(0)
    v_cmp_eq_u32 vcc, 0, v3
    s_cbranch_vccz {lp}_go
    s_sleep 32
    s_branch {lp}
    """)
    a.label(lp + '_go')
    sweep('wq', 20, 32)
    sweep('wk', 20, 32)
    a.label(done)

def helper_body(a, pfx, fused=False):
    L = lambda n: f"{pfx}_{n}"
    PFD = int(os.environ.get('REC_PFD', 4))
    k_init.census(a, 8, 39)
    a(f"""
    s_sub_u32 s19, s16, 24
    s_lshl_b32 s19, s19, 3
    s_add_u32 s19, s19, s17              ; gw 0..31
    s_lshl_b32 s20, s18, 3
    s_mul_i32 s21, s20, {UH}
    s_mul_i32 s40, s19, 10240
    s_add_u32 s21, s21, s40
    s_add_u32 s21, s21, {U_OFF}
    s_mul_i32 s22, s20, {PH}
    s_mul_i32 s40, s19, 3072
    s_add_u32 s22, s22, s40
    s_add_u32 s22, s22, {K_OFF}
    v_lshlrev_b32 v1, 4, v255
    v_add_u32 v2, 4096, v1
    v_add_u32 v3, 8192, v1
    s_lshl_b32 s40, s18, 7
    s_add_u32 s40, s40, {PROG_OFF}
    v_mov_b32 v4, s40
    s_mov_b32 s27, 0
    s_mov_b32 s46, 4000000
    s_lshr_b32 s23, s19, 2
    s_add_u32 s23, s23, s20              ; head
    s_lshl_b32 s40, s23, 5
    s_add_u32 s40, s40, {PS_OFF}
    v_and_b32 v6, 7, v255
    v_lshlrev_b32 v6, 2, v6
    v_add_u32 v6, s40, v6
    s_mul_i32 s40, s23, 24
    s_add_u32 s40, s40, {PB_OFF + 192*4 - 32}
    v_lshlrev_b32 v7, 2, v255
    v_add_u32 v7, s40, v7
    v_cmp_gt_u32 vcc, 8, v255
    v_cmp_lt_u32 s[42:43], 13, v255
    s_or_b64 vcc, vcc, s[42:43]
    s_nop 1
    v_cndmask_b32 v6, v7, v6, vcc
    s_lshl_b32 s40, s18, 7
    s_lshl_b32 s41, s19, 2
    s_add_u32 s40, s40, s41
    s_add_u32 s40, s40, {RDY_OFF}
    v_mov_b32 v7, s40
    """)
    a.label(L('hloop'))
    a(f"s_cmp_lt_u32 s27, {PFD}\ns_cbranch_scc1 {L('hgo')}")
    a.label(L('hwait'))
    a(f"""
    buffer_load_dword v5, v4, s[12:15], 0 offen sc1
    s_sub_u32 s46, s46, 1
    s_cbranch_scc1 {L('hdone')}
    s_waitcnt vmcnt(0)
    v_readfirstlane_b32 s40, v5
    s_add_u32 s40, s40, {PFD}
    s_cmp_gt_u32 s40, s27
    s_cbranch_scc1 {L('hgo')}
    s_sleep 8
    s_branch {L('hwait')}
    """)
    a.label(L('hgo'))
    if fused:
        a(f"""
        buffer_load_dword v5, v6, s[12:15], 0 offen sc1
        s_sub_u32 s46, s46, 1
        s_cbranch_scc1 {L('hdone')}
        s_waitcnt vmcnt(0)
        v_cmp_ge_u32 vcc, s27, v5
        s_cbranch_vccz {L('hgo2')}
        s_sleep 8
        s_branch {L('hgo')}
        """)
        a.label(L('hgo2'))
    k = 0
    for j in range(3):
        a(f"buffer_load_dwordx4 v[{8+4*k}:{11+4*k}], v1, s[12:15], s22 offen offset:{1024*j}"); k += 1
    for j in range(10):
        a(f"buffer_load_dwordx4 v[{8+4*k}:{11+4*k}], v{1+j//4}, s[12:15], s21 offen offset:{1024*(j%4)}"); k += 1
    a(f"""
    s_add_u32 s21, s21, {U_SEG}
    s_add_u32 s22, s22, {P_SEG}
    s_add_u32 s27, s27, 1
    v_mov_b32 v5, s27
    s_waitcnt vmcnt(0)
    s_cmp_eq_u32 s39, {int(os.environ.get('FORCE_IMPURE', 0))}
    s_cbranch_scc1 {L('himp')}
    buffer_store_dword v5, v7, s[12:15], 0 offen
    s_branch {L('hnx')}
    """)
    a.label(L('himp'))
    a("buffer_store_dword v5, v7, s[12:15], 0 offen sc1")
    a.label(L('hnx'))
    a(f"""
    s_cmp_lt_u32 s27, {NST}
    s_cbranch_scc1 {L('hloop')}
    """)
    a.label(L('hdone'))

def gen_rec(a, name='rec_kernel'):
    a.raw(kernel_header(name))
    a(f"""
    s_cmp_ge_u32 s2, 256
    s_cbranch_scc1 REC_end
    s_load_dwordx2 s[4:5], s[0:1], {KA['ws']}
    s_getreg_b32 s18, hwreg(HW_REG_XCC_ID)
    s_and_b32 s18, s18, 7
    v_lshrrev_b32 v1, 6, v0
    v_and_b32 v255, 63, v0
    s_nop 0
    v_readfirstlane_b32 s17, v1
    s_memtime s[60:61]
    s_waitcnt lgkmcnt(0)
    """)
    srd(a, 12, 4, WS_BYTES)
    a(f"""
    v_mov_b32 v3, 1
    s_lshl_b32 s16, s18, 7
    s_add_u32 s16, s16, {TK_OFF}
    v_mov_b32 v4, s16
    v_mov_b32 v5, 0
    v_cmp_eq_u32 vcc, 0, v0
    s_and_saveexec_b64 s[26:27], vcc
    s_cbranch_execz REC_notk
    buffer_atomic_add v3, v4, s[12:15], 0 offen sc0
    s_waitcnt vmcnt(0)
    ds_write_b32 v5, v3
    s_waitcnt lgkmcnt(0)
    """)
    a.label('REC_notk')
    a(f"""
    s_mov_b64 exec, s[26:27]
    s_barrier
    ds_read_b32 v3, v5
    s_waitcnt lgkmcnt(0)
    v_readfirstlane_b32 s16, v3
    s_barrier
    s_cmp_ge_u32 s18, 4
    s_cbranch_scc1 REC_end
    s_cmp_ge_u32 s16, 28
    s_cbranch_scc1 REC_end
    s_cmp_lt_u32 s16, 24
    s_cbranch_scc1 REC_main
    """)
    if not NOU: helper_body(a, 'HLP')
    a("s_branch REC_end")
    a.label('REC_main')
    if STAMP >= 0:
        for i in range(12): a(f"s_mov_b32 s{64+i}, 0")
    rec_body(a, 'REC')
    if STAMP >= 0:
        a(f"""
        s_lshl_b32 s61, s18, 5
        s_add_u32 s61, s61, s16
        s_lshl_b32 s61, s61, 3
        s_add_u32 s61, s61, s17
        s_lshl_b32 s61, s61, 6
        s_add_u32 s61, s61, {WS_END}
        v_mov_b32 v3, 0
        """)
        for i in range(12): a(f"v_mov_b32 v{4+i}, s{64+i}")
        for i in range(3): a(f"buffer_store_dwordx4 v[{4+4*i}:{7+4*i}], v3, s[12:15], s61 offen offset:{16*i}")
    a(f"""
    s_memtime s[62:63]
    s_load_dwordx2 s[56:57], s[0:1], {KA['dbg']}
    s_waitcnt lgkmcnt(0)
    s_sub_u32 s62, s62, s60
    s_mov_b32 s58, 256
    s_mov_b32 s59, 0x00020000
    v_mov_b32 v4, s62
    s_sub_u32 s96, s96, s60
    v_mov_b32 v5, s96
    s_lshl_b32 s60, s17, 3
    s_lshl_b32 s61, s18, 5
    s_add_u32 s61, s61, s16
    s_cmp_eq_u32 s61, 0
    s_cselect_b32 s60, s60, 256
    v_mov_b32 v3, s60
    buffer_store_dwordx2 v[4:5], v3, s[56:59], 0 offen
    """)
    a.label('REC_end')
    a("s_endpgm")
    return kernel_desc(name)
```

```python
from asmlib import *
from layout import *
import math, struct, os

def f32(x):
    return hex(struct.unpack('<I', struct.pack('<f', x))[0])

SLOT = 40 * KB
NSLOT = 4
WF = 0
ACC = (160, 176)
FB = 192
NFB = 6
BIAS = 216
VT = 232
V_LANE16 = 240
V_LDSRD = 241
V_ST = 242
V_TMP = 243

def big_body(a, pfx, fused=False):
    L = lambda n: f"{pfx}_{n}"
    a(f"""
    s_load_dwordx2 s[4:5], s[0:1], {KA['ws']}
    s_load_dwordx2 s[24:25], s[0:1], {KA['b1']}
    s_cmp_ge_u32 s16, 72
    s_cbranch_scc1 {L('rw1')}
    s_mul_i32 s26, s16, 2731
    s_lshr_b32 s26, s26, 16
    s_mul_i32 s27, s26, 24
    s_sub_u32 s27, s16, s27            ; role%24
    s_lshl_b32 s28, s26, 3
    s_add_u32 s28, s28, {KA['wq']}
    s_load_dwordx2 s[6:7], s[0:1], s28
    s_mov_b32 s18, 12288
    s_mov_b32 s10, {DM*H*DH*2}
    s_mov_b32 s20, {XN_OFF}
    s_mul_i32 s21, s26, {NSEG*P_SEG}
    s_add_u32 s21, s21, {Q_OFF}
    s_mov_b32 s22, {P_SEG}
    s_mul_i32 s45, s26, 192
    s_branch {L('rdone')}
    """)
    a.label(L('rw1'))
    a(f"""
    s_sub_u32 s27, s16, 72
    s_load_dwordx2 s[6:7], s[0:1], {KA['w1']}
    s_mov_b32 s18, 3072
    s_mov_b32 s10, {DM*F*2}
    s_mov_b32 s20, {YN_OFF}
    s_mov_b32 s21, {HID_OFF}
    s_mov_b32 s22, {HID_SEG}
    s_mov_b32 s45, 576
    """)
    a.label(L('rdone'))
    a(f"""
    s_cmp_ge_u32 s16, 72
    s_cselect_b32 s30, 8, 9
    s_cselect_b32 s29, 2, 3
    s_lshl_b32 s19, s27, s30
    s_lshl_b32 s28, s27, s29
    s_add_u32 s28, s28, s17            ; gt
    s_lshl_b32 s29, s28, 11
    s_add_u32 s21, s21, s29
    s_lshl_b32 s45, s16, 6
    s_add_u32 s45, s45, {PB_OFF}
    s_waitcnt lgkmcnt(0)
    s_mov_b32 s8, s6
    s_mov_b32 s9, s7
    s_mov_b32 s11, 0x00020000
    """)
    srd(a, 12, 4, WS_BYTES)
    a(f"""
    v_lshrrev_b32 v{VT}, 5, v255               ; lane>>5
    s_lshl_b32 s30, s17, 1
    v_add_u32 v{VT}, s30, v{VT}
    v_and_b32 v{VT+1}, 3, v{VT}
    v_lshlrev_b32 v{VT+1}, 2, v{VT+1}
    v_and_b32 v{VT+2}, 31, v255
    v_xor_b32 v{VT+2}, v{VT+2}, v{VT+1}
    v_lshlrev_b32 v{VT+2}, 4, v{VT+2}
    v_mul_lo_u32 v{VT}, v{VT}, s18
    v_add_u32 v{VT}, v{VT}, v{VT+2}
    v_lshrrev_b32 v{VT+1}, 5, v255             ; G>>1
    v_lshlrev_b32 v{VT+1}, 3, v{VT+1}
    v_bfe_u32 v{VT+2}, v255, 2, 2              ; r
    v_add_u32 v{VT+1}, v{VT+1}, v{VT+2}
    v_lshlrev_b32 v{VT+1}, 9, v{VT+1}
    v_xor_b32 v{VT+2}, s17, v{VT+2}
    v_lshl_add_u32 v{VT+1}, v{VT+2}, 6, v{VT+1}
    v_bfe_u32 v{VT+2}, v255, 4, 1
    v_lshl_add_u32 v{VT+1}, v{VT+2}, 5, v{VT+1}
    v_and_b32 v{VT+2}, 3, v255
    v_lshl_add_u32 v{VT+1}, v{VT+2}, 3, v{VT+1}
    s_lshl_b32 s31, s18, 4
    s_mul_i32 s32, s18, 80
    """)
    def stage_issue(q):
        a(f"s_mul_i32 s33, s32, {q}\ns_add_u32 s33, s33, s19")
        for n in range(5):
            a(f"s_lshl_b32 s34, s17, 10")
            a(f"s_add_u32 s34, s34, {(q % NSLOT) * SLOT + n * 8192}")
            a(f"s_mov_b32 m0, s34")
            a("s_nop 0")
            a(f"buffer_load_dwordx4 v{VT}, s[8:11], s33 offen lds")
            if n < 4:
                a("s_add_u32 s33, s33, s31")
    for q in range(NSLOT):
        stage_issue(q)
    for q in range(8):
        outstanding = 5 * (min(q + NSLOT, 8) - q - 1)
        a(f"s_waitcnt vmcnt({outstanding})")
        a("s_barrier")
        a(f"v_add_u32 v{VT+2}, {(q % NSLOT) * SLOT}, v{VT+1}")
        for ksl in range(5):
            ks = 5 * q + ksl
            for hr in range(2):
                a(f"ds_read_b64_tr_b16 v[{WF+4*ks+2*hr}:{WF+4*ks+2*hr+1}], v{VT+2} offset:{ksl*8192+hr*2048}")
        a("s_waitcnt lgkmcnt(0)")
        a("s_barrier")
        if q + NSLOT < 8:
            stage_issue(q + NSLOT)
    if not fused: a("s_memtime s[52:53]")
    elif os.environ.get('MAIN_DUMP'): a("s_memtime s[96:97]\ns_waitcnt lgkmcnt(0)")
    sc = ' sc1' if fused else ''
    def publish(delta):
        if not fused: return
        sk = a.uid(pfx + '_np')
        a(f"s_cmp_lg_u32 s17, 0\ns_cbranch_scc1 {sk}")
        a(f"s_add_u32 s33, s42, {delta}" if delta >= 0 else f"s_sub_u32 s33, s42, {-delta}")
        a(f"v_mov_b32 v247, s33\nbuffer_store_dword v247, v246, s[12:15], s93 offen sc1")
        a.label(sk)
    a("v_mov_b32 v246, s45")
    a(f"""
    v_lshlrev_b32 v{V_ST}, 4, v255
    s_mul_i32 s30, s17, 5120
    v_add_u32 v{V_LANE16}, s30, v{V_ST}
    """)
    a(f"s_cmp_lt_u32 s16, 72\ns_cbranch_scc1 {L('nobias')}")
    srd(a, 36, 24, F * 2)
    a(f"""
    v_lshrrev_b32 v{VT}, 5, v255
    v_lshlrev_b32 v{VT}, 3, v{VT}
    s_lshl_b32 s30, s28, 6
    v_add_u32 v{VT}, s30, v{VT}
    """)
    for q in range(4):
        a(f"buffer_load_dwordx2 v[{FB+2*q}:{FB+1+2*q}], v{VT}, s[36:39], 0 offen offset:{16*q}")
    a("s_waitcnt vmcnt(0)")
    for q in range(4):
        for j in range(2):
            a(f"v_lshlrev_b32 v{BIAS+4*q+2*j}, 16, v{FB+2*q+j}")
            a(f"v_and_b32 v{BIAS+4*q+2*j+1}, 0xffff0000, v{FB+2*q+j}")
    c0 = -2.0 * math.sqrt(2.0 / math.pi) * math.log2(math.e)
    a(f"s_mov_b32 s40, {f32(c0)}\ns_mov_b32 s41, {f32(c0*0.044715)}")
    a.label(L('nobias'))

    def dma(segreg_off):
        a(f"s_mul_i32 s34, s17, 5120\ns_add_u32 s34, s34, s35\ns_mov_b32 m0, s34\ns_nop 0")
        for n in range(4):
            a(f"buffer_load_dwordx4 v{V_LANE16}, s[12:15], s{segreg_off} offen offset:{1024*n}{sc} lds")
        a(f"s_add_u32 s34, s34, 4096\ns_mov_b32 m0, s34\ns_add_u32 s33, s{segreg_off}, 4096")
        a(f"buffer_load_dwordx4 v{V_LANE16}, s[12:15], s33 offen{sc} lds")

    if fused:
        import k_init
        k_init.wait_init(a, FB, sel=(16, 72))
        if os.environ.get('MAIN_DUMP'): a("s_memtime s[88:89]\ns_waitcnt lgkmcnt(0)")
    PD = 3
    V_RD2 = 248
    a(f"s_mov_b32 s43, s20")
    for p in range(PD):
        a(f"s_mov_b32 s35, {p*SLOT}")
        dma(43)
        a(f"s_add_u32 s43, s43, {XN_SEG}")
    a(f"s_mov_b32 s42, 0\ns_sub_u32 s44, s21, s22\ns_waitcnt vmcnt(0)\ns_barrier")
    a(f"v_mov_b32 v{V_LDSRD}, v{V_ST}")

    def epilogue_ops(acc, gelu):
        ops = []
        if not gelu:
            for i in range(8):
                ops.append(f"v_cvt_pk_bf16_f32 v{VT+i}, v{acc+2*i}, v{acc+2*i+1}")
        else:
            t = V_TMP
            for i in range(8):
                x0, x1 = acc + 2 * i, acc + 2 * i + 1
                ops.append(f"v_cvt_pk_bf16_f32 v{t}, v{x0}, v{x1}")
                ops.append(f"v_lshlrev_b32 v{x0}, 16, v{t}")
                ops.append(f"v_and_b32 v{x1}, 0xffff0000, v{t}")
                ops.append(f"v_add_f32 v{x0}, v{x0}, v{BIAS+2*i}")
                ops.append(f"v_add_f32 v{x1}, v{x1}, v{BIAS+2*i+1}")
                ops.append(f"v_cvt_pk_bf16_f32 v{t}, v{x0}, v{x1}")
                ops.append(f"v_lshlrev_b32 v{x0}, 16, v{t}")
                ops.append(f"v_and_b32 v{x1}, 0xffff0000, v{t}")
                for k, x in enumerate((x0, x1)):
                    u = t + 1 + k
                    ops.append(f"v_mul_f32 v{u}, v{x}, v{x}")
                    ops.append(f"v_mul_f32 v{u}, s41, v{u}")
                    ops.append(f"v_add_f32 v{u}, s40, v{u}")
                    ops.append(f"v_mul_f32 v{u}, v{u}, v{x}")
                    ops.append(f"v_exp_f32 v{u}, v{u}")
                for k, x in enumerate((x0, x1)):
                    u = t + 1 + k
                    ops.append(f"v_add_f32 v{u}, 1.0, v{u}")
                    ops.append(f"v_rcp_f32 v{u}, v{u}")
                for k, x in enumerate((x0, x1)):
                    u = t + 1 + k
                    ops.append(f"v_mul_f32 v{x}, v{x}, v{u}")
                ops.append(f"v_cvt_pk_bf16_f32 v{VT+i}, v{x0}, v{x1}")
        ops.append(f"buffer_store_dwordx4 v[{VT}:{VT+3}], v{V_ST}, s[12:15], s44 offen{sc}")
        ops.append(f"buffer_store_dwordx4 v[{VT+4}:{VT+7}], v{V_ST}, s[12:15], s44 offen offset:1024{sc}")
        return ops

    MID = int(os.environ.get('BIG_MID', 26))
    LAZY = int(os.environ.get('BIG_LAZY', 0))
    def midpoint(pub, keep=0):
        a(f"s_waitcnt vmcnt({keep})")
        a("s_barrier")
        if pub is not None: publish(pub)
        sk = a.uid(pfx + '_nopf')
        a(f"""
        s_add_u32 s35, s42, {PD}
        s_cmp_ge_u32 s35, {NSEG}
        s_cbranch_scc1 {sk}
        s_and_b32 s35, s35, {NSLOT-1}
        s_mul_i32 s35, s35, {SLOT}
        """)
        dma(43)
        a(f"s_add_u32 s43, s43, {XN_SEG}")
        a.label(sk)
    NF = 5
    def seg_iter(par, gelu, first):
        acc = ACC[par]
        cur, nxt = (V_LDSRD, V_RD2) if par == 0 else (V_RD2, V_LDSRD)
        a(f"""
        s_add_u32 s35, s42, 1
        s_and_b32 s35, s35, {NSLOT-1}
        s_mul_i32 s35, s35, {SLOT}
        v_add_u32 v{nxt}, s35, v{V_ST}
        """)
        ep = [] if first else epilogue_ops(ACC[par ^ 1], gelu)
        per = 7 if gelu else 2
        for ks in range(40):
            fb = FB + 4 * (ks % NF)
            a(f"s_waitcnt lgkmcnt({NF-2})")
            c = '0' if ks == 0 else f"v[{acc}:{acc+15}]"
            a(f"v_mfma_f32_32x32x16_bf16 v[{acc}:{acc+15}], v[{WF+4*ks}:{WF+4*ks+3}], v[{fb}:{fb+3}], {c}")
            nk = ks + NF - 1
            nb = FB + 4 * (nk % NF)
            a(f"ds_read_b128 v[{nb}:{nb+3}], v{cur if nk < 40 else nxt} offset:{1024*(nk % 40)}")
            if ks >= 4:
                for _ in range(per):
                    if ep: a(ep.pop(0))
            if ks == MID:
                if LAZY and not gelu and not first: midpoint(-1 if fused else None, 2)
                else: midpoint(None if (first or not fused) else (-1 if gelu else 0))
        assert not ep
        a(f"s_add_u32 s42, s42, 1\ns_add_u32 s44, s44, s22")

    for gelu in (0, 1):
        lp = L(f'loop{gelu}')
        if gelu == 0:
            a(f"s_cmp_ge_u32 s16, 72\ns_cbranch_scc1 {L('gelu_path')}")
        else:
            a.label(L('gelu_path'))
            a(f"s_cmp_ge_u32 s17, 4\ns_cbranch_scc1 {L('idle')}")
        for i in range(NF - 1):
            a(f"ds_read_b128 v[{FB+4*i}:{FB+4*i+3}], v{V_LDSRD} offset:{1024*i}")
        seg_iter(0, gelu, True)
        a.label(lp)
        seg_iter(1, gelu, False)
        a(f"s_cmp_ge_u32 s42, {NSEG}\ns_cbranch_scc1 {L(f'fin{gelu}')}")
        seg_iter(0, gelu, False)
        a(f"s_branch {lp}")
        a.label(L(f'fin{gelu}'))
        a("s_nop 15\ns_waitcnt lgkmcnt(0)")
        for op in epilogue_ops(ACC[1], gelu):
            a(op)
        if fused:
            a("s_waitcnt vmcnt(0)\ns_barrier")
            publish(0)
        a(f"s_branch {L('done')}")
    a.label(L('idle'))
    midpoint(None)
    a(f"s_add_u32 s42, s42, 1\ns_cmp_lt_u32 s42, {NSEG}\ns_cbranch_scc1 {L('idle')}")
    if fused: a("s_barrier")
    a.label(L('done'))

def gen_big(a, name='big_kernel'):
    a.raw(kernel_header(name))
    a(f"""
    s_cmp_ge_u32 s2, 84
    s_cbranch_scc1 BIG_end
    s_mov_b32 s16, s2
    v_lshrrev_b32 v1, 6, v0
    v_and_b32 v255, 63, v0
    s_nop 0
    v_readfirstlane_b32 s17, v1
    s_nop 3
    """)
    a("s_memtime s[50:51]")
    big_body(a, 'BIG')
    a(f"""
    s_memtime s[54:55]
    s_load_dwordx2 s[56:57], s[0:1], {KA['dbg']}
    s_waitcnt lgkmcnt(0)
    s_sub_u32 s54, s54, s52
    s_sub_u32 s52, s52, s50
    s_mov_b32 s58, 256
    s_mov_b32 s59, 0x00020000
    v_mov_b32 v4, s52
    v_mov_b32 v5, s54
    s_cmp_eq_u32 s16, 0
    s_cselect_b32 s60, 0, 256
    s_cmp_eq_u32 s16, 75
    s_cselect_b32 s60, 8, s60
    v_mov_b32 v3, s60
    buffer_store_dwordx2 v[4:5], v3, s[56:59], 0 offen
    """)
    a.label('BIG_end')
    a("s_endpgm")
    return kernel_desc(name)
```

```python
from asmlib import *
from layout import *
from k_ln import ln_pass, cwindow

DB_TK = lambda x: 32 * x
DB_INIT = 8
DB_INIT2 = 4
DB_PAR = 12
DB_OVF = 16
NINIT = 64

def ln_part(a, wg):
    a(f"""
    s_load_dwordx2 s[8:9], s[0:1], {KA['x']}
    s_mov_b32 s10, {S*DM*2}
    s_mov_b32 s11, 0x00020000
    s_mov_b32 s20, 0x3acccccd
    s_mov_b32 s21, 0x3727c5ac
    v_lshrrev_b32 v1, 4, v0
    v_and_b32 v2, 15, v0
    s_lshl_b32 s3, s{wg}, 5
    v_add_u32 v1, s3, v1
    v_mul_u32_u24 v3, 1280, v1
    v_lshl_add_u32 v3, v2, 4, v3
    s_waitcnt lgkmcnt(0)
    """)
    for i in range(5):
        a(f"buffer_load_dwordx4 v[{12+4*i}:{15+4*i}], v3, s[8:11], 0 offen offset:{256*i}")
    a(f"""
    v_and_b32 v5, 31, v1
    v_lshlrev_b32 v4, 4, v5
    v_lshlrev_b32 v6, 4, v0
    s_mul_i32 s3, s{wg}, {XN_SEG}
    v_lshrrev_b32 v5, 1, v2
    v_lshl_add_u32 v4, v5, 10, v4
    v_and_b32 v5, 1, v2
    v_lshl_add_u32 v4, v5, 9, v4
    s_add_u32 s22, s3, {XN_OFF}
    s_mov_b32 s23, 0
    s_waitcnt vmcnt(0)
    """)
    X, P, T = 32, 12, 92
    for i in range(20):
        a(f"v_lshlrev_b32 v{X+2*i}, 16, v{12+i}")
        a(f"v_and_b32 v{X+2*i+1}, 0xffff0000, v{12+i}")
    lp = a.uid('INI_ln')
    a.label(lp)
    ln_pass(a, X, P, T)
    for i in range(5):
        a(f"ds_write_b128 v4, v[{P+4*i}:{P+4*i+3}] offset:{8192*i}")
    a("s_waitcnt lgkmcnt(0)\ns_barrier")
    for i in range(5):
        a(f"ds_read_b128 v[{100+4*i}:{103+4*i}], v6 offset:{8192*i}")
    for i in range(5):
        a(f"s_waitcnt lgkmcnt({4-i})\ns_add_u32 s25, s22, {8192*i}")
        a(f"buffer_store_dwordx4 v[{100+4*i}:{103+4*i}], v6, s[12:15], s25 offen sc1")
    sk = a.uid('INI_s')
    a(f"s_cmp_lg_u32 s23, 0\ns_cbranch_scc1 {sk}\ns_waitcnt vmcnt(0)")
    a.label(sk)
    a("s_barrier")
    a(f"s_cmp_lg_u32 s23, 0\ns_cbranch_scc1 {sk}_b\ns_cmp_lg_u32 s17, 0\ns_cbranch_scc1 {sk}_b")
    a(f"v_mov_b32 v7, 1\nv_mov_b32 v8, {DB_INIT}\ns_mov_b64 exec, 1\nbuffer_atomic_add v7, v8, s[68:71], 0 offen\ns_mov_b64 exec, -1")
    a.label(sk + '_b')
    a(f"s_add_u32 s22, s3, {YN_OFF}\ns_add_u32 s23, s23, 1\ns_cmp_lt_u32 s23, 2\ns_cbranch_scc1 {lp}")

def fill_part(a, wg, stage):
    NT = NINIT * 512
    cwindow(a, 24, 4)
    a(f"""
    s_lshl_b32 s3, s{wg}, 9
    v_add_u32 v1, s3, v0
    v_lshlrev_b32 v2, 4, v1
    """)
    for r in range(8, 12): a(f"v_mov_b32 v{r}, -1")
    for r in range(12, 16): a(f"v_mov_b32 v{r}, 0")
    def fill(base_s, base_imm, nbytes, vdata):
        units = nbytes // 16
        k = 0
        while k * NT < units:
            a(f"s_add_u32 s25, s{base_s}, {base_imm + k*NT*16}" if base_s is not None else f"s_mov_b32 s25, {base_imm + k*NT*16}")
            rem = units - k * NT
            if rem < NT:
                sk = a.uid('INI_sk')
                a(f"v_cmp_gt_u32 vcc, {rem}, v1\ns_and_saveexec_b64 s[26:27], vcc\ns_cbranch_execz {sk}")
                a(f"buffer_store_dwordx4 v[{vdata}:{vdata+3}], v2, s[12:15], s25 offen sc1")
                a.label(sk)
                a("s_mov_b64 exec, s[26:27]")
            else:
                a(f"buffer_store_dwordx4 v[{vdata}:{vdata+3}], v2, s[12:15], s25 offen sc1")
            k += 1
    if stage == 0:
        fill(None, FLAG_OFF, FLAG_BYTES, 12)
        return
    fill(24, 0, C_BYTES, 8)
    fill(None, A_OFF, NRING * A_SLOT, 8)
    fill(None, D_OFF + D_SLOT, (NRING - 1) * D_SLOT, 8)
    sk = a.uid('INI_nod0')
    a(f"""
    s_cmp_ge_u32 s{wg}, 5
    s_cbranch_scc1 {sk}
    s_load_dwordx2 s[28:29], s[0:1], {KA['mem0']}
    v_mul_u32_u24 v3, 52429, v1
    v_lshrrev_b32 v3, 25, v3
    v_mul_u32_u24 v3, 640, v3
    v_sub_u32 v3, v1, v3
    v_and_b32 v4, 7, v3
    v_mul_u32_u24 v4, 1280, v4
    v_lshrrev_b32 v5, 5, v3
    v_lshl_add_u32 v4, v5, 6, v4
    v_bfe_u32 v5, v3, 3, 2
    v_lshl_add_u32 v4, v5, 3, v4
    s_waitcnt lgkmcnt(0)
    s_mov_b32 s30, {M*DM*2}
    s_mov_b32 s31, 0x00020000
    buffer_load_dwordx2 v[16:17], v4, s[28:31], 0 offen
    buffer_load_dwordx2 v[18:19], v4, s[28:31], 0 offen offset:32
    s_mov_b32 s25, {D_OFF}
    s_mov_b32 s33, 0xfffffffe
    s_waitcnt vmcnt(0)
    v_min_u32 v16, s33, v16
    v_min_u32 v17, s33, v17
    v_min_u32 v18, s33, v18
    v_min_u32 v19, s33, v19
    buffer_store_dwordx4 v[16:19], v2, s[12:15], s25 offen sc1
    """)
    a.label(sk)

def probe(a):
    a("v_mov_b32 v8, -1\nv_mov_b32 v3, 0\ns_mov_b32 s34, 0x7fffffff\ns_mov_b32 s35, 0x7fffffff")
    for it in range(7):
        for par in range(2):
            a(f"""
            s_add_u32 s33, s24, {it*16384*5 + par*8192 + it*1024}
            buffer_store_dword v8, v3, s[12:15], s33 offen sc1
            s_waitcnt vmcnt(0)
            s_memtime s[36:37]
            s_waitcnt lgkmcnt(0)
            buffer_load_dword v5, v3, s[12:15], s33 offen sc1
            s_waitcnt vmcnt(0)
            s_memtime s[38:39]
            s_waitcnt lgkmcnt(0)
            s_sub_u32 s38, s38, s36
            s_min_u32 s{34+par}, s{34+par}, s38
            """)
    a(f"""
    s_getreg_b32 s36, hwreg(HW_REG_XCC_ID)
    s_lshr_b32 s36, s36, 2
    s_and_b32 s36, s36, 1
    s_cmp_lt_u32 s35, s34
    s_cselect_b32 s37, 1, 0
    s_xor_b32 s37, s37, s36
    s_lshl_b32 s37, s37, 13
    s_add_u32 s37, s37, 1
    v_mov_b32 v4, s37
    v_mov_b32 v3, {DB_PAR}
    buffer_store_dword v4, v3, s[68:71], 0 offen sc1
    """)

def wait_init(a, vt, out_par=None, sel=None):
    lp = a.uid('WINI')
    a(f"v_mov_b32 v{vt+4}, 0\ns_mov_b32 s73, 3000000\ns_mov_b32 s93, 0")
    a.label(lp)
    a(f"""
    buffer_load_dwordx4 v[{vt}:{vt+3}], v{vt+4}, s[68:71], 0 offen sc1
    s_sub_u32 s73, s73, 1
    s_cbranch_scc1 {lp}_ok
    s_waitcnt vmcnt(0)
    v_readfirstlane_b32 s72, v{vt+2 if out_par is None else vt+1}
    """)
    if sel is not None:
        a(f"v_readfirstlane_b32 s75, v{vt+1}\ns_cmp_ge_u32 s{sel[0]}, {sel[1]}\ns_cselect_b32 s72, s75, s72")
    a(f"s_cmp_lt_u32 s72, {NINIT}\ns_cbranch_scc1 {lp}_sl")
    a(f"v_readfirstlane_b32 s93, v{vt+3}\ns_cmp_lg_u32 s93, 0\ns_cbranch_scc1 {lp}_ok")
    a.label(lp + '_sl')
    a(f"s_sleep {24 if out_par is not None else 8}\ns_branch {lp}")
    a.label(lp + '_ok')
    a("s_waitcnt vmcnt(0)\ns_and_b32 s93, s93, 8192")
    if out_par is not None: a(f"s_mov_b32 s{out_par}, s93")

def init_all(a, wg):
    fill_part(a, wg, 0)
    ln_part(a, wg)
    fill_part(a, wg, 1)
    sk = a.uid('INI_d')
    a(f"""
    s_waitcnt vmcnt(0)
    s_barrier
    s_cmp_lg_u32 s17, 0
    s_cbranch_scc1 {sk}
    v_mov_b32 v3, 1
    v_mov_b32 v4, {DB_INIT2}
    s_mov_b64 exec, 1
    buffer_atomic_add v3, v4, s[68:71], 0 offen
    s_mov_b64 exec, -1
    """)
    a.label(sk)

def census(a, vt, out_s):
    lp = a.uid('CEN')
    a(f"v_and_b32 v{vt+1}, 7, v255\nv_lshlrev_b32 v{vt+1}, 5, v{vt+1}\ns_mov_b32 s73, 3000000")
    a.label(lp)
    a(f"""
    buffer_load_dword v{vt}, v{vt+1}, s[68:71], 0 offen sc1
    s_mov_b32 s{out_s}, 1
    s_sub_u32 s73, s73, 1
    s_cbranch_scc1 {lp}_ok
    s_waitcnt vmcnt(0)
    v_cmp_ne_u32 vcc, 32, v{vt}
    s_cbranch_vccz {lp}_ok
    s_mov_b32 s72, 0
    """)
    for x in range(8):
        a(f"v_readlane_b32 s75, v{vt}, {x}\ns_add_u32 s72, s72, s75")
        if x < 4:
            a(f"s_cmp_lt_u32 s75, 32\ns_cselect_b32 s{out_s}, 0, s{out_s}")
    a(f"s_cmp_ge_u32 s72, 256\ns_cbranch_scc1 {lp}_ok\ns_sleep 4\ns_branch {lp}")
    a.label(lp + '_ok')
    a("s_waitcnt vmcnt(0)")
```

```python
from asmlib import *
from layout import *
import k_big, k_small, k_post2, k_init, importlib, os
k_rec = importlib.import_module(os.environ.get('REC_MOD', 'k_rec'))
import os

def gen_main(a, name='main_kernel'):
    a.raw(kernel_header(name))
    a(f"""
    s_cmp_ge_u32 s2, 256
    s_cbranch_scc1 MAIN_end
    s_load_dwordx2 s[4:5], s[0:1], {KA['ws']}
    s_load_dwordx2 s[68:69], s[0:1], {KA['dbg']}
    s_mov_b32 s70, 256
    s_mov_b32 s71, 0x00020000
    s_getreg_b32 s18, hwreg(HW_REG_XCC_ID)
    s_and_b32 s18, s18, 7
    v_lshrrev_b32 v1, 6, v0
    v_and_b32 v255, 63, v0
    s_nop 0
    v_readfirstlane_b32 s17, v1
    s_memtime s[90:91]
    s_memrealtime s[84:85]
    s_waitcnt lgkmcnt(0)
    """)
    srd(a, 12, 4, WS_BYTES)
    def ticket(off_s, lab, sr=12):
        a(f"""
        v_mov_b32 v3, 1
        v_mov_b32 v4, s{off_s}
        v_mov_b32 v5, 0
        s_cmp_lg_u32 s17, 0
        s_cbranch_scc1 {lab}
        s_mov_b64 exec, 1
        buffer_atomic_add v3, v4, s[{sr}:{sr+3}], 0 offen sc0
        s_waitcnt vmcnt(0)
        ds_write_b32 v5, v3
        s_waitcnt lgkmcnt(0)
        s_mov_b64 exec, -1
        """)
        a.label(lab)
        a(f"""
        s_barrier
        ds_read_b32 v3, v5
        s_waitcnt lgkmcnt(0)
        v_readfirstlane_b32 s16, v3
        s_barrier
        """)
    if os.environ.get('FAKE_XCC') == 'hi': a("s_min_u32 s18, s18, 6")
    if os.environ.get('FAKE_XCC') == 'lo': a("s_max_u32 s18, s18, 1")
    a(f"s_lshl_b32 s16, s18, 5")
    ticket(16, 'MAIN_tk1', 68)
    a(f"""
    s_mov_b32 s96, 0
    s_mov_b32 s88, 0
    s_mov_b32 s75, 0
    s_mov_b32 s92, s16
    s_cmp_lt_u32 s16, 32
    s_cbranch_scc1 MAIN_role
    """)
    k_init.census(a, 8, 39)
    a(f"s_mov_b32 s16, {k_init.DB_OVF}")
    ticket(16, 'MAIN_tk3', 68)
    for x in range(8):
        a(f"""
        v_readlane_b32 s40, v8, {x}
        s_min_u32 s40, s40, 32
        s_sub_u32 s41, 32, s40
        s_mov_b32 s18, {x}
        s_cmp_lt_u32 s16, s41
        s_cbranch_scc1 MAIN_ovf
        s_sub_u32 s16, s16, s41
        """)
    a("s_branch MAIN_wpost")
    a.label('MAIN_ovf')
    a("s_add_u32 s16, s16, s40")
    a.label('MAIN_role')
    a(f"""
    s_mov_b32 s92, s16
    s_mov_b32 s74, 64
    s_cmp_ge_u32 s18, 4
    s_cbranch_scc1 MAIN_gi0
    s_cmp_lt_u32 s16, 24
    s_cbranch_scc1 MAIN_rec
    s_cmp_lt_u32 s16, 28
    s_cbranch_scc1 MAIN_ini
    s_lshl_b32 s74, s18, 2
    s_add_u32 s74, s74, s16
    s_add_u32 s74, s74, 20
    s_branch MAIN_ini
    """)
    a.label('MAIN_gi0')
    a(f"""
    s_lshl_b32 s16, s16, 2
    s_add_u32 s16, s16, s18
    s_sub_u32 s16, s16, 4
    s_cmp_lt_u32 s16, 24
    s_cselect_b32 s74, s16, s74
    s_sub_u32 s40, s16, 72
    s_cmp_lt_u32 s40, 12
    s_cbranch_scc0 MAIN_gi1
    s_add_u32 s74, s40, 24
    """)
    a.label('MAIN_gi1')
    a(f"""
    s_cmp_lt_u32 s16, 116
    s_cbranch_scc1 MAIN_ini
    s_sub_u32 s74, s16, 80
    """)
    a.label('MAIN_ini')
    a("s_cmp_ge_u32 s74, 64\ns_cbranch_scc1 MAIN_inid")
    k_init.init_all(a, 74)
    if os.environ.get('MAIN_DUMP'): a("s_memtime s[86:87]\ns_waitcnt lgkmcnt(0)\ns_mov_b32 s75, s86")
    a.label('MAIN_inid')
    a("s_cmp_ge_u32 s18, 4\ns_cbranch_scc1 MAIN_gemm")
    k_rec.weight_prefetch(a, 'WPF')
    a(f"s_cmp_ge_u32 s16, 28\ns_cbranch_scc1 {'MAIN_post' if int(os.environ.get('IDLE_POST', 0)) else 'MAIN_end'}")
    k_rec.helper_body(a, 'HLP', fused=True)
    a("s_branch MAIN_end")
    a.label('MAIN_rec')
    k_rec.rec_body(a, 'REC', fused=True, alt='RECB')
    a("s_branch RECB_done")
    k_rec.rec_body(a, 'RECB', fused=True, lsc=' sc1')
    a("s_setprio 0")
    dump(a)
    a("s_branch MAIN_post")
    a.label('MAIN_wpost')
    k_init.wait_init(a, 8)
    a("s_branch MAIN_post")
    a.label('MAIN_gemm')
    a(f"""
    s_cmp_ge_u32 s16, 124
    s_cbranch_scc1 MAIN_wpost
    s_cmp_ge_u32 s74, 64
    s_cbranch_scc1 MAIN_go
    """)
    a.label('MAIN_late')
    a(f"""
    s_mov_b32 s46, 2000000
    s_and_b32 s40, s16, 15
    s_lshl_b32 s40, s40, 6
    s_add_u32 s40, s40, {PB_OFF + 48*64}
    v_mov_b32 v1, s40
    s_cmp_lg_u32 s17, 0
    s_cbranch_scc1 MAIN_late2
    """)
    k_init.wait_init(a, 8)
    a.label('MAIN_latep')
    a(f"""
    buffer_load_dword v2, v1, s[12:15], s93 offen sc1
    s_sub_u32 s46, s46, 1
    s_cbranch_scc1 MAIN_late2
    s_waitcnt vmcnt(0)
    v_cmp_eq_u32 vcc, 0, v2
    s_cbranch_vccz MAIN_late2
    s_sleep 32
    s_branch MAIN_latep
    """)
    a.label('MAIN_late2')
    a("s_waitcnt vmcnt(0)\ns_barrier")
    a.label('MAIN_go')
    a(f"""
    s_cmp_ge_u32 s16, 84
    s_cbranch_scc1 MAIN_small
    """)
    k_big.big_body(a, 'BIG', fused=True)
    dump(a)
    a("s_branch MAIN_post")
    a.label('MAIN_small')
    a("s_sub_u32 s16, s16, 84")
    k_small.small_body(a, 'SM', fused=True)
    dump(a)
    a.label('MAIN_post')
    a(f"""
    s_load_dwordx2 s[4:5], s[0:1], {KA['ws']}
    s_waitcnt lgkmcnt(0) vmcnt(0)
    s_barrier
    s_mov_b32 s46, 8000000
    """)
    srd(a, 12, 4, WS_BYTES)
    NI = 15
    def wait_flags(tag, loads, regs, cmp_s, sleep, tv=4):
        lp = f"MAIN_w{tag}"
        a.label(lp)
        for ld in loads: a(ld)
        a(f"s_sub_u32 s46, s46, 1\ns_cbranch_scc1 {lp}_x\ns_waitcnt vmcnt(0)")
        regs = list(regs)
        a(f"v_mov_b32 v{tv}, v{regs[0]}")
        k = 1
        while k < len(regs):
            if k + 1 < len(regs):
                a(f"v_min3_u32 v{tv}, v{tv}, v{regs[k]}, v{regs[k+1]}"); k += 2
            else:
                a(f"v_min_u32 v{tv}, v{tv}, v{regs[k]}"); k += 1
        a(f"v_cmp_ge_u32 vcc, s{cmp_s}, v{tv}\ns_cbranch_vccz {lp}_ok\ns_sleep {sleep}\ns_branch {lp}")
        a.label(lp + '_x')
        a("s_mov_b32 s46, 0\ns_waitcnt vmcnt(0)")
        a.label(lp + '_ok')
    a.label('MAIN_ploop')
    a(f"s_add_u32 s16, s93, {QUE_OFF}")
    ticket(16, 'MAIN_tk2')
    a(f"""
    s_cmp_ge_u32 s16, {NSEG*NI}
    s_cbranch_scc1 {'MAIN_exit' if os.environ.get('MAIN_DUMP') else 'MAIN_end'}
    s_mul_i32 s40, s16, 4370
    s_lshr_b32 s40, s40, 16              ; seg = t/15
    s_mul_i32 s41, s40, {NI}
    s_sub_u32 s19, s16, s41              ; item
    s_mov_b32 s16, s40
    v_lshlrev_b32 v1, 4, v255
    v_min_u32 v2, {31*16}, v1
    v_min_u32 v3, {15*16}, v1
    s_cmp_eq_u32 s19, 0
    s_cbranch_scc1 MAIN_gi
    s_cmp_ge_u32 s19, 5
    s_cbranch_scc1 MAIN_zi
    """)
    W = 220
    PS = int(os.environ.get('POST_SLEEP', 16))
    def coarse(tag, delta):
        a(f"v_and_b32 v{W}, 3, v255\nv_lshlrev_b32 v{W}, 7, v{W}\ns_add_u32 s42, s93, {PROG_OFF}\ns_add_u32 s43, s16, {delta}")
        wait_flags(tag, [f"buffer_load_dword v{W+1}, v{W}, s[12:15], s42 offen sc1"], [W + 1], 43, PS, W + 2)
    a("s_sub_u32 s19, s19, 1\ns_cmp_lg_u32 s17, 0\ns_cbranch_scc1 MAIN_pgo")
    coarse('c0', 0)
    a(f"s_add_u32 s40, s93, {PB_OFF}")
    a("v_min_u32 v5, 47, v255\nv_lshlrev_b32 v5, 6, v5")
    wait_flags('p0', ["buffer_load_dword v8, v5, s[12:15], s40 offen sc1"], [8], 16, 16)
    a.label('MAIN_pgo')
    a("s_barrier")
    def pmid():
        a("s_cmp_lg_u32 s17, 0\ns_cbranch_scc1 MAIN_pgo2")
        coarse('c', 2)
        a(f"s_add_u32 s42, s93, {PR_OFF}\nv_lshlrev_b32 v{W}, 6, v255\nv_min_u32 v{W+3}, {31*64}, v{W}\ns_add_u32 s43, s42, 4096")
        wait_flags('p', [f"buffer_load_dword v{W+4}, v{W}, s[12:15], s42 offen sc1",
                         f"buffer_load_dword v{W+5}, v{W+3}, s[12:15], s43 offen sc1"], [W + 4, W + 5], 16, 4, W + 2)
        a.label('MAIN_pgo2')
        a("s_barrier")
    k_post2.p_item(a, 'PI', pmid)
    a("s_branch MAIN_ploop")
    a.label('MAIN_gi')
    a("s_cmp_lg_u32 s17, 0\ns_cbranch_scc1 MAIN_ggo")
    a(f"s_add_u32 s41, s93, {PS_OFF+32*64}\nv_lshrrev_b32 v5, 3, v255\nv_lshlrev_b32 v5, 6, v5\nv_and_b32 v6, 7, v255\nv_lshl_add_u32 v5, v6, 2, v5")
    wait_flags('g', ["buffer_load_dword v8, v5, s[12:15], s41 offen sc1"], [8], 16, 32)
    a.label('MAIN_ggo')
    a("s_barrier")
    k_post2.g_item(a, 'GI')
    a("s_branch MAIN_ploop")
    a.label('MAIN_zi')
    a("s_sub_u32 s19, s19, 5\ns_cmp_lg_u32 s17, 0\ns_cbranch_scc1 MAIN_zgo")
    coarse('zc0', 0)
    a.label('MAIN_zgo')
    a("s_barrier")
    def zmid():
        a("s_cmp_lg_u32 s17, 0\ns_cbranch_scc1 MAIN_zgo2")
        coarse('zc', 2)
        a(f"v_min_u32 v{W}, 4, v255\nv_lshlrev_b32 v{W}, 2, v{W}\ns_lshl_b32 s42, s16, 7\ns_add_u32 s42, s42, {PF_OFF}\ns_add_u32 s42, s42, s93\ns_mov_b32 s43, 0")
        wait_flags('z', [f"buffer_load_dword v{W+1}, v{W}, s[12:15], s42 offen sc1"], [W + 1], 43, 4, W + 2)
        a.label('MAIN_zgo2')
        a("s_barrier")
    k_post2.z_item(a, 'ZI', zmid)
    a("s_branch MAIN_ploop")
    if os.environ.get('MAIN_DUMP'):
        a("s_branch MAIN_end")
        a.label('MAIN_exit')
        a(f"""
        s_memrealtime s[82:83]
        s_getreg_b32 s91, hwreg(HW_REG_XCC_ID)
        s_and_b32 s91, s91, 7
        s_waitcnt lgkmcnt(0)
        s_lshl_b32 s91, s91, 5
        s_add_u32 s91, s91, s92
        s_lshl_b32 s91, s91, 3
        s_add_u32 s91, s91, {WS_END}+131072
        v_mov_b32 v3, 0
        v_mov_b32 v4, s84
        v_mov_b32 v5, s82
        buffer_store_dwordx2 v[4:5], v3, s[12:15], s91 offen
        """)
    a.label('MAIN_end')
    a("s_endpgm")
    return kernel_desc(name)

def dump(a):
    if not os.environ.get('MAIN_DUMP'): return
    a(f"""
    s_memtime s[94:95]
    s_memrealtime s[82:83]
    s_getreg_b32 s91, hwreg(HW_REG_XCC_ID)
    s_and_b32 s91, s91, 7
    s_waitcnt lgkmcnt(0)
    s_sub_u32 s94, s94, s90
    s_sub_u32 s95, s96, s90
    s_lshl_b32 s91, s91, 5
    s_add_u32 s91, s91, s92
    s_lshl_b32 s91, s91, 3
    s_add_u32 s91, s91, s17
    s_lshl_b32 s91, s91, 6
    s_add_u32 s91, s91, {WS_END}
    v_mov_b32 v3, 0
    """)
    a("s_sub_u32 s75, s75, s90")
    for i in range(12): a(f"v_mov_b32 v{4+i}, s{64+i}" if (k_rec.STAMP >= 0 or i == 11) else f"v_mov_b32 v{4+i}, 0")
    a("s_sub_u32 s88, s88, s90\nv_mov_b32 v16, s94\nv_mov_b32 v17, s95\nv_mov_b32 v18, s88\ns_sub_u32 s82, s82, s84\nv_mov_b32 v19, s82")
    for i in range(4): a(f"buffer_store_dwordx4 v[{4+4*i}:{7+4*i}], v3, s[12:15], s91 offen offset:{16*i}")
```

```python
from asmlib import *
from layout import *
import math, struct

def f32(x):
    return hex(struct.unpack('<I', struct.pack('<f', x))[0])

def common(a):
    a(f"""
    v_lshlrev_b32 v254, 4, v255                 ; lane*16
    v_lshrrev_b32 v253, 5, v255                 ; h
    v_and_b32 v252, 31, v255
    v_lshlrev_b32 v250, 3, v255                 ; lane*8
    """)

def set_flag(a, idx_s):
    sk = a.uid('PFL')
    a(f"""
    s_waitcnt vmcnt(0)
    s_barrier
    s_cmp_lg_u32 s17, 0
    s_cbranch_scc1 {sk}
    s_lshl_b32 s40, s16, 7
    s_lshl_b32 s41, s{idx_s}, 2
    s_add_u32 s40, s40, s41
    s_add_u32 s40, s40, {PF_OFF}
    v_mov_b32 v1, s40
    v_mov_b32 v2, 1
    buffer_store_dword v2, v1, s[12:15], s93 offen sc1
    """)
    a.label(sk)

def p_item(a, pfx, mid=None):
    QF, KF, MFR = 0, 48, 96
    SX, SM = 144, 160
    T = 176
    cs = DH ** -0.5 * math.log2(math.e)
    common(a)
    a(f"""
    v_and_b32 v251, 7, v255
    v_lshlrev_b32 v251, 4, v251
    v_lshl_add_u32 v251, v253, 7, v251
    v_lshlrev_b32 v249, 2, v253
    v_sub_u32 v249, v252, v249
    v_mov_b32 v248, 0xff800000
    s_mov_b32 s53, {f32(cs)}
    s_lshl_b32 s20, s19, 3
    s_add_u32 s20, s20, s17                     ; head
    s_mul_i32 s21, s16, {P_SEG}
    s_mul_i32 s40, s20, {PH}
    s_add_u32 s21, s21, s40
    s_add_u32 s22, s21, {K_OFF}
    s_add_u32 s21, s21, {Q_OFF}
    s_mul_i32 s23, s16, {KM_SEG}
    s_mul_i32 s40, s20, {KMH}
    s_add_u32 s23, s23, s40
    s_add_u32 s23, s23, {KM_OFF}
    s_mul_i32 s24, s16, {PP_SEG}
    s_mul_i32 s40, s20, {PPH}
    s_add_u32 s24, s24, s40
    s_add_u32 s24, s24, {PP_OFF}
    """)
    for b in range(12):
        if b % 4 == 0 and b:
            a(f"s_add_u32 s21, s21, 4096\ns_add_u32 s22, s22, 4096")
        a(f"buffer_load_dwordx4 v[{QF+4*b}:{QF+4*b+3}], v254, s[12:15], s21 offen offset:{1024*(b%4)}")
        a(f"buffer_load_dwordx4 v[{KF+4*b}:{KF+4*b+3}], v254, s[12:15], s22 offen offset:{1024*(b%4)}")
    for b in range(12):
        a(f"s_waitcnt vmcnt({2*(11-b)})")
        c = '0' if b == 0 else f"v[{SX}:{SX+15}]"
        a(f"v_mfma_f32_32x32x16_bf16 v[{SX}:{SX+15}], v[{KF+4*b}:{KF+4*b+3}], v[{QF+4*b}:{QF+4*b+3}], {c}")
    mid()
    for b in range(12):
        a(f"buffer_load_dwordx4 v[{MFR+4*b}:{MFR+4*b+3}], v251, s[12:15], s23 offen offset:{256*b}")
    for b in range(12):
        a(f"s_waitcnt vmcnt({11-b})")
        c = '0' if b == 0 else f"v[{SM}:{SM+15}]"
        a(f"v_mfma_f32_32x32x16_bf16 v[{SM}:{SM+15}], v[{MFR+4*b}:{MFR+4*b+3}], v[{QF+4*b}:{QF+4*b+3}], {c}")
    a("s_nop 15")
    for r in range(16):
        key = 8 * (r >> 2) + (r & 3)
        a(f"v_cmp_le_i32 vcc, {key}, v249")
        a("s_nop 1")
        a(f"v_cndmask_b32 v{SX+r}, v248, v{SX+r}, vcc")
    vals = [SX + r for r in range(16)] + [SM + j for j in range(4)]
    mx, t2, sm = T, T + 1, T + 2
    a(f"v_max3_f32 v{mx}, v{vals[0]}, v{vals[1]}, v{vals[2]}")
    for i in range(3, 19, 2):
        a(f"v_max3_f32 v{mx}, v{mx}, v{vals[i]}, v{vals[i+1]}")
    a(f"""
    v_max_f32 v{mx}, v{mx}, v{vals[19]}
    v_mov_b32 v{t2}, v{mx}
    s_nop 1
    v_permlane32_swap_b32 v{mx}, v{t2}
    v_max_f32 v{mx}, v{mx}, v{t2}
    v_mul_f32 v{mx}, s53, v{mx}
    """)
    for v in vals: a(f"v_fma_f32 v{v}, v{v}, s53, -v{mx}")
    for v in vals: a(f"v_exp_f32 v{v}, v{v}")
    a(f"v_add_f32 v{sm}, v{vals[0]}, v{vals[1]}")
    for v in vals[2:]: a(f"v_add_f32 v{sm}, v{sm}, v{v}")
    a(f"""
    v_mov_b32 v{t2}, v{sm}
    s_nop 1
    v_permlane32_swap_b32 v{sm}, v{t2}
    v_add_f32 v{sm}, v{sm}, v{t2}
    v_rcp_f32 v{sm}, v{sm}
    s_nop 0
    """)
    for v in vals: a(f"v_mul_f32 v{v}, v{v}, v{sm}")
    PO = T + 4
    for i in range(10):
        a(f"v_cvt_pk_bf16_f32 v{PO+i}, v{vals[2*i]}, v{vals[2*i+1]}")
    a(f"""
    buffer_store_dwordx4 v[{PO}:{PO+3}], v254, s[12:15], s24 offen sc1
    buffer_store_dwordx4 v[{PO+4}:{PO+7}], v254, s[12:15], s24 offen offset:1024 sc1
    buffer_store_dwordx2 v[{PO+8}:{PO+9}], v250, s[12:15], s24 offen offset:2048 sc1
    """)
    set_flag(a, 19)

def g_item(a, pfx):
    L = lambda n: f"{pfx}_{n}"
    common(a)
    a(f"""
    s_load_dwordx2 s[32:33], s[0:1], {KA['b2']}
    s_mov_b32 s34, {DM*2}
    s_mov_b32 s35, 0x00020000
    v_lshlrev_b32 v242, 3, v253
    s_mov_b32 s41, {f32(-math.log2(math.e))}
    s_mov_b32 s28, s17
    s_waitcnt lgkmcnt(0)
    """)
    GB = 0; RW = 16; BB = 128; E = 136
    a.label(L('gl'))
    a(f"""
    s_mul_i32 s21, s16, {G_SEG}
    s_lshl_b32 s40, s28, 11
    s_add_u32 s21, s21, s40
    s_add_u32 s21, s21, {G_OFF}
    s_lshl_b32 s22, s28, 6
    s_mul_i32 s23, s16, {GT_SEG}
    s_lshl_b32 s40, s28, 11
    s_add_u32 s23, s23, s40
    s_add_u32 s23, s23, {GT_OFF}
    """)
    for sl in range(8):
        a(f"s_add_u32 s40, s21, {sl*GH}")
        for p in range(2):
            a(f"buffer_load_dwordx4 v[{RW+8*sl+4*p}:{RW+8*sl+4*p+3}], v254, s[12:15], s40 offen offset:{1024*p}")
    for q in range(4):
        a(f"buffer_load_dwordx2 v[{BB+2*q}:{BB+2*q+1}], v242, s[32:35], s22 offen offset:{16*q}")
    for sl in range(8):
        a(f"s_waitcnt vmcnt({4+2*(7-sl)})")
        for i in range(8):
            d = GB + 2 * i if sl == 0 else E
            a(f"v_lshlrev_b32 v{d}, 16, v{RW+8*sl+i}")
            a(f"v_and_b32 v{d+1}, 0xffff0000, v{RW+8*sl+i}")
            if sl: a(f"v_pk_add_f32 v[{GB+2*i}:{GB+2*i+1}], v[{GB+2*i}:{GB+2*i+1}], v[{E}:{E+1}]")
    a("s_waitcnt vmcnt(0)")
    for i in range(8):
        g0, g1 = GB + 2 * i, GB + 2 * i + 1
        a(f"""
        v_cvt_pk_bf16_f32 v{E}, v{g0}, v{g1}
        v_lshlrev_b32 v{g0}, 16, v{E}
        v_and_b32 v{g1}, 0xffff0000, v{E}
        v_lshlrev_b32 v{E+1}, 16, v{BB+i}
        v_and_b32 v{E+2}, 0xffff0000, v{BB+i}
        v_add_f32 v{g0}, v{g0}, v{E+1}
        v_add_f32 v{g1}, v{g1}, v{E+2}
        v_cvt_pk_bf16_f32 v{E}, v{g0}, v{g1}
        v_lshlrev_b32 v{g0}, 16, v{E}
        v_and_b32 v{g1}, 0xffff0000, v{E}
        v_mul_f32 v{E+1}, s41, v{g0}
        v_mul_f32 v{E+2}, s41, v{g1}
        v_exp_f32 v{E+1}, v{E+1}
        v_exp_f32 v{E+2}, v{E+2}
        s_nop 0
        v_add_f32 v{E+1}, 1.0, v{E+1}
        v_add_f32 v{E+2}, 1.0, v{E+2}
        v_rcp_f32 v{E+1}, v{E+1}
        v_rcp_f32 v{E+2}, v{E+2}
        s_nop 0
        v_mul_f32 v{g0}, v{g0}, v{E+1}
        v_mul_f32 v{g1}, v{g1}, v{E+2}
        v_cvt_pk_bf16_f32 v{E+4+i}, v{g0}, v{g1}
        """)
    a(f"""
    buffer_store_dwordx4 v[{E+4}:{E+7}], v254, s[12:15], s23 offen sc1
    buffer_store_dwordx4 v[{E+8}:{E+11}], v254, s[12:15], s23 offen offset:1024 sc1
    s_add_u32 s28, s28, 8
    s_cmp_lt_u32 s28, 20
    s_cbranch_scc1 {L('gl')}
    s_mov_b32 s19, 4
    """)
    set_flag(a, 19)

def z_item(a, pfx, mid=None):
    L = lambda n: f"{pfx}_{n}"
    common(a)
    a(f"""
    s_load_dwordx2 s[8:9], s[0:1], {KA['x']}
    s_load_dwordx2 s[36:37], s[0:1], {KA['out']}
    s_and_b32 s28, s17, 1
    s_lshl_b32 s40, s19, 1
    s_add_u32 s28, s28, s40
    s_lshr_b32 s29, s17, 1
    s_lshl_b32 s20, s29, 3
    s_mul_i32 s21, s16, {U_SEG}
    s_mul_i32 s40, s20, {UH}
    s_add_u32 s21, s21, s40
    s_lshl_b32 s40, s28, 11
    s_add_u32 s21, s21, s40
    s_add_u32 s21, s21, {U_OFF}
    s_mul_i32 s22, s16, {Y_SEG}
    s_mul_i32 s40, s20, {YH}
    s_add_u32 s22, s22, s40
    s_lshl_b32 s40, s28, 9
    s_add_u32 s22, s22, s40
    s_add_u32 s22, s22, {Y_OFF}
    s_mul_i32 s24, s16, {PP_SEG}
    s_mul_i32 s40, s20, {PPH}
    s_add_u32 s24, s24, s40
    s_add_u32 s24, s24, {PP_OFF}
    """)
    ACC = 0; ZB = 16
    for hd in range(8):
        b = ZB + 24 * hd
        a(f"v_mov_b32 v{b+10}, 0\nv_mov_b32 v{b+11}, 0\nv_mov_b32 v{b+22}, 0\nv_mov_b32 v{b+23}, 0")
        a(f"buffer_load_dwordx4 v[{b}:{b+3}], v254, s[12:15], s21 offen")
        a(f"buffer_load_dwordx4 v[{b+4}:{b+7}], v254, s[12:15], s21 offen offset:1024")
        a(f"s_add_u32 s21, s21, {UH}")
    mid()
    for hd in range(8):
        b = ZB + 24 * hd
        a(f"buffer_load_dwordx2 v[{b+8}:{b+9}], v250, s[12:15], s22 offen")
        a(f"buffer_load_dwordx4 v[{b+12}:{b+15}], v254, s[12:15], s24 offen")
        a(f"buffer_load_dwordx4 v[{b+16}:{b+19}], v254, s[12:15], s24 offen offset:1024")
        a(f"buffer_load_dwordx2 v[{b+20}:{b+21}], v250, s[12:15], s24 offen offset:2048")
        a(f"s_add_u32 s22, s22, {YH}\ns_add_u32 s24, s24, {PPH}")
    XB, GTB = 216, 218
    a(f"""
    s_waitcnt lgkmcnt(0)
    s_mov_b32 s10, {S*DM*2}
    s_mov_b32 s11, 0x00020000
    s_mov_b32 s38, {S*DM*2}
    s_mov_b32 s39, 0x00020000
    s_lshl_b32 s40, s16, 5
    v_add_u32 v243, s40, v252
    v_mul_u32_u24 v243, 1280, v243
    v_lshl_add_u32 v243, v253, 3, v243
    s_lshl_b32 s22, s28, 6
    s_lshl_b32 s40, s29, 4
    s_add_u32 s22, s22, s40
    s_mul_i32 s23, s16, {GT_SEG}
    s_lshl_b32 s40, s28, 11
    s_add_u32 s23, s23, s40
    s_lshr_b32 s40, s29, 1
    s_lshl_b32 s40, s40, 10
    s_add_u32 s23, s23, s40
    s_and_b32 s40, s29, 1
    s_lshl_b32 s40, s40, 3
    s_add_u32 s23, s23, s40
    s_add_u32 s23, s23, {GT_OFF}
    buffer_load_dwordx2 v[{XB}:{XB+1}], v243, s[8:11], s22 offen
    buffer_load_dwordx2 v[{GTB}:{GTB+1}], v254, s[12:15], s23 offen
    s_lshl_b32 s40, s17, 12
    v_add_u32 v245, s40, v254
    s_and_b32 s40, s17, 1
    s_lshl_b32 s40, s40, 12
    s_lshl_b32 s41, s29, 10
    s_add_u32 s40, s40, s41
    v_add_u32 v244, s40, v254
    """)
    for hd in range(8):
        b = ZB + 24 * hd
        a(f"s_waitcnt vmcnt({4*(7-hd)+2})")
        for q in range(3):
            c = '0' if (hd == 0 and q == 0) else f"v[{ACC}:{ACC+15}]"
            a(f"v_mfma_f32_32x32x16_bf16 v[{ACC}:{ACC+15}], v[{b+4*q}:{b+4*q+3}], v[{b+12+4*q}:{b+15+4*q}], {c}")
    a("s_nop 11")
    for q in range(4):
        a(f"ds_write_b128 v245, v[{ACC+4*q}:{ACC+4*q+3}] offset:{1024*q}")
    a("s_waitcnt lgkmcnt(0)\ns_barrier")
    R = 16; E = 40
    for k in range(4):
        a(f"ds_read_b128 v[{R+4*k}:{R+4*k+3}], v244 offset:{8192*k}")
    a(f"""
    s_waitcnt lgkmcnt(0) vmcnt(0)
    v_pk_add_f32 v[{R}:{R+1}], v[{R}:{R+1}], v[{R+4}:{R+5}]
    v_pk_add_f32 v[{R+2}:{R+3}], v[{R+2}:{R+3}], v[{R+6}:{R+7}]
    v_pk_add_f32 v[{R+8}:{R+9}], v[{R+8}:{R+9}], v[{R+12}:{R+13}]
    v_pk_add_f32 v[{R+10}:{R+11}], v[{R+10}:{R+11}], v[{R+14}:{R+15}]
    v_pk_add_f32 v[{R}:{R+1}], v[{R}:{R+1}], v[{R+8}:{R+9}]
    v_pk_add_f32 v[{R+2}:{R+3}], v[{R+2}:{R+3}], v[{R+10}:{R+11}]
    """)
    for i in range(2):
        s0, s1 = R + 2 * i, R + 2 * i + 1
        a(f"""
        v_cvt_pk_bf16_f32 v{E}, v{s0}, v{s1}
        v_lshlrev_b32 v{s0}, 16, v{E}
        v_and_b32 v{s1}, 0xffff0000, v{E}
        v_lshlrev_b32 v{E+1}, 16, v{GTB+i}
        v_and_b32 v{E+2}, 0xffff0000, v{GTB+i}
        v_mul_f32 v{s0}, v{s0}, v{E+1}
        v_mul_f32 v{s1}, v{s1}, v{E+2}
        v_cvt_pk_bf16_f32 v{E}, v{s0}, v{s1}
        v_lshlrev_b32 v{s0}, 16, v{E}
        v_and_b32 v{s1}, 0xffff0000, v{E}
        v_lshlrev_b32 v{E+1}, 16, v{XB+i}
        v_and_b32 v{E+2}, 0xffff0000, v{XB+i}
        v_add_f32 v{s0}, v{s0}, v{E+1}
        v_add_f32 v{s1}, v{s1}, v{E+2}
        v_cvt_pk_bf16_f32 v{E+4+i}, v{s0}, v{s1}
        """)
    a(f"buffer_store_dwordx2 v[{E+4}:{E+5}], v243, s[36:39], s22 offen")
```

```python
from asmlib import *
from layout import *
import math, struct
from k_ln import cwindow
import k_init

def f32(x):
    return hex(struct.unpack('<I', struct.pack('<f', x))[0])

L_MEMX = 0
L_SX = 10240
L_PX = 10240
L_PM = 14336
L_ZM = 22528
L_Y = 26624
L_KM = 30720
L_B = 32768
NBL = 32
NBR = 80 - NBL
RP = 208
OOB = 0x7f000000
import os
NST = int(os.environ.get('REC_NST', NSEG))

STAMP = int(os.environ.get('REC_STAMP', -1))
def stamp(a, i):
    if STAMP < 0: return
    sk = a.uid('STMP')
    a(f"s_cmp_lg_u32 s27, {STAMP}\ns_cbranch_scc1 {sk}\ns_memtime s[98:99]\ns_waitcnt lgkmcnt(0)\ns_mov_b32 s{64+i}, s98")
    a.label(sk)

class R:
    def __init__(self, base): self.n = base
    def __call__(self, k=1, align=1):
        self.n = (self.n + align - 1) // align * align
        r = self.n; self.n += k
        assert self.n <= 250
        return r

def lane_fields(a):
    a("""
    v_and_b32 v250, 15, v255
    v_lshrrev_b32 v251, 4, v255
    v_and_b32 v252, 7, v255
    v_bfe_u32 v253, v255, 3, 1
    """)

def cphys(a, v, t):
    a(f"""
    v_lshrrev_b32 v{t}, 13, v{v}
    v_lshlrev_b32 v{t}, 13, v{t}
    v_add_u32 v{v}, v{v}, v{t}
    """)

def check_poison(a, regs, t):
    regs = list(regs)
    if len(regs) == 2:
        a(f"v_max_u32 v{t}, v{regs[0]}, v{regs[1]}")
    else:
        a(f"v_max3_u32 v{t}, v{regs[0]}, v{regs[1]}, v{regs[2]}")
        i = 3
        while i < len(regs):
            if i + 1 < len(regs):
                a(f"v_max3_u32 v{t}, v{t}, v{regs[i]}, v{regs[i+1]}"); i += 2
            else:
                a(f"v_max_u32 v{t}, v{t}, v{regs[i]}"); i += 1
    a(f"v_cmp_eq_u32 vcc, -1, v{t}")

def poll(a, pfx, loads, regs, t):
    lp = a.uid(pfx + '_poll'); dn = a.uid(pfx + '_pdone')
    a.label(lp)
    for ld in loads: a(ld)
    a(f"s_sub_u32 s46, s46, 1\ns_cbranch_scc1 {dn}_x")
    a("s_waitcnt vmcnt(0)")
    check_poison(a, regs, t)
    a(f"s_cbranch_vccnz {lp}")
    a(f"s_branch {dn}")
    a.label(dn + '_x')
    a("s_mov_b32 s46, 0\ns_waitcnt vmcnt(0)")
    a.label(dn)

def poll2(a, pfx, loadsA, regsA, loadsB, regsB, t, useA, useB, gap):
    lp = a.uid(pfx + '_pp'); n = len(loadsA)
    for ld in loadsA: a(ld)
    if gap: a(f"s_sleep {gap}")
    a.label(lp)
    for ld in loadsB: a(ld)
    a(f"s_waitcnt vmcnt({n})")
    check_poison(a, regsA, t)
    a(f"s_cbranch_vccz {lp}_A")
    for ld in loadsA: a(ld)
    a(f"s_sub_u32 s46, s46, 1\ns_cbranch_scc1 {lp}_x\ns_waitcnt vmcnt({n})")
    check_poison(a, regsB, t)
    a(f"s_cbranch_vccnz {lp}")
    a.label(lp + '_B')
    useB()
    a(f"s_branch {lp}_d")
    a.label(lp + '_x')
    a(f"s_mov_b32 s46, 0\ns_waitcnt vmcnt(0)")
    a.label(lp + '_A')
    useA()
    a.label(lp + '_d')

def load_tile(a, kaoff, nbytes, sbase, raw, T):
    a(f"s_load_dwordx2 s[8:9], s[0:1], {kaoff}\ns_mov_b32 s10, {nbytes}\ns_mov_b32 s11, 0x00020000")
    a(f"""
    v_lshrrev_b32 v{T}, 1, v255
    v_mul_u32_u24 v{T}, 12288, v{T}
    v_and_b32 v{T+1}, 1, v255
    v_lshl_add_u32 v{T}, v{T+1}, 4, v{T}
    s_mov_b32 s40, s{sbase}
    s_waitcnt lgkmcnt(0)
    """)
    for n in range(20):
        a(f"buffer_load_dwordx4 v[{raw+4*n}:{raw+4*n+3}], v{T}, s[8:11], s40 offen")
        a(f"s_add_u32 s40, s40, {32*12288}")

def load_slice(a, kaoff, nbytes, sbase, pitch, nrows, raw, T):
    a(f"s_load_dwordx2 s[8:9], s[0:1], {kaoff}\ns_mov_b32 s10, {nbytes}\ns_mov_b32 s11, 0x00020000\ns_mov_b32 s40, {pitch}\ns_waitcnt lgkmcnt(0)")
    for n in range(nrows * 6 // 64):
        a(f"""
        v_add_u32 v{T}, {64*n}, v255
        v_mul_u32_u24 v{T+1}, 43691, v{T}
        v_lshrrev_b32 v{T+1}, 18, v{T+1}
        v_mul_u32_u24 v{T+2}, 6, v{T+1}
        v_sub_u32 v{T+2}, v{T}, v{T+2}
        v_mul_lo_u32 v{T+1}, v{T+1}, s40
        v_lshl_add_u32 v{T+1}, v{T+2}, 4, v{T+1}
        buffer_load_dwordx4 v[{raw+4*n}:{raw+4*n+3}], v{T+1}, s[8:11], s{sbase} offen
        """)


def slot_bases(a):
    a(f"""
    s_and_b32 s40, s27, 3
    s_add_u32 s41, s27, 2
    s_and_b32 s41, s41, 3
    s_mul_i32 s28, s40, {A_SLOT}
    s_add_u32 s28, s28, s47
    s_mul_i32 s29, s41, {A_SLOT}
    s_add_u32 s29, s29, s47
    s_mul_i32 s30, s40, {C_SLOT}
    s_add_u32 s30, s30, s24
    s_mul_i32 s31, s41, {C_SLOT}
    s_add_u32 s31, s31, s24
    s_mul_i32 s32, s40, {D_SLOT}
    s_add_u32 s32, s32, s48
    s_add_u32 s41, s27, 1
    s_and_b32 s41, s41, 3
    s_mul_i32 s33, s41, {D_SLOT}
    s_add_u32 s33, s33, s48
    s_add_u32 s41, s27, 3
    s_and_b32 s41, s41, 3
    s_mul_i32 s34, s41, {D_SLOT}
    s_add_u32 s34, s34, s48
    """)

def s3_setup(a, vCld, vDst, T):
    a(f"""
    v_lshrrev_b32 v{T}, 3, v255                 ; vgl
    v_mul_u32_u24 v{vCld}, 10240, v{T}
    s_lshl_b32 s40, s55, 9
    s_lshl_b32 s41, s23, 7
    s_add_u32 s41, s41, s40
    v_add_u32 v{vCld}, s41, v{vCld}
    v_lshl_add_u32 v{vCld}, v252, 4, v{vCld}
    """)
    cphys(a, vCld, T + 1)
    a(f"""
    v_lshrrev_b32 v{T}, 2, v252
    s_lshl_b32 s41, s23, 1
    v_add_u32 v{T}, s41, v{T}                   ; cq
    v_and_b32 v{T+1}, 3, v{T}
    v_lshlrev_b32 v{vDst}, 7, v{T+1}
    v_lshrrev_b32 v{T+1}, 2, v{T}
    v_lshl_add_u32 v{vDst}, v{T+1}, 3, v{vDst}
    v_and_b32 v{T+1}, 3, v255
    v_lshl_add_u32 v{vDst}, v{T+1}, 5, v{vDst}
    v_lshrrev_b32 v{T+1}, 5, v255
    v_lshl_add_u32 v{vDst}, v{T+1}, 4, v{vDst}
    v_bfe_u32 v{T+1}, v255, 4, 1
    v_lshl_add_u32 v{vDst}, v{T+1}, 2, v{vDst}
    v_add_u32 v{vDst}, s40, v{vDst}
    v_cmp_eq_u32 vcc, 0, v253
    s_nop 1
    v_cndmask_b32 v{vDst}, v242, v{vDst}, vcc
    """)

def s3_run(a, pfx, vCld, vDst, T, lsc=''):
    poll(a, pfx, [f"buffer_load_dwordx4 v[{T}:{T+3}], v{vCld}, s[12:15], s30 offen sc1"], range(T, T + 4), T + 4)
    V = T + 4
    for j in (0, 2, 1, 3):
        a(f"v_lshlrev_b32 v{V+2*j}, 16, v{T+j}")
        a(f"v_and_b32 v{V+2*j+1}, 0xffff0000, v{T+j}")
    for j in range(4):
        a(f"v_permlane32_swap_b32 v{V+j}, v{V+4+j}")
    a(f"v_pk_add_f32 v[{V}:{V+1}], v[{V}:{V+1}], v[{V+4}:{V+5}]")
    a(f"v_pk_add_f32 v[{V+2}:{V+3}], v[{V+2}:{V+3}], v[{V+6}:{V+7}]")
    a(f"""
    s_nop 1
    v_permlane16_swap_b32 v{V}, v{V+2}
    v_permlane16_swap_b32 v{V+1}, v{V+3}
    v_pk_add_f32 v[{V}:{V+1}], v[{V}:{V+1}], v[{V+2}:{V+3}]
    s_nop 1
    v_add_f32_dpp v{V}, v{V}, v{V} row_ror:8 row_mask:0xf bank_mask:0xf
    v_add_f32_dpp v{V+1}, v{V+1}, v{V+1} row_ror:8 row_mask:0xf bank_mask:0xf
    v_cvt_pk_bf16_f32 v{T}, v{V}, v{V+1}
    v_min_u32 v{T}, s49, v{T}
    buffer_store_dword v{T}, v{vDst}, s[12:15], s33 offen{lsc}
    """)

CSLEEP = int(os.environ.get('REC_CSLEEP', 11))
CSLEEP0 = int(os.environ.get('REC_CSLEEP0', 4))
ASLEEP = int(os.environ.get('REC_ASLEEP', 6))
SSLEEP = int(os.environ.get('REC_SSLEEP', 3))
A_X2 = 1024
A_M = 1536
A_V = 2048
DSLEEP = int(os.environ.get('REC_DSLEEP', 16))
DUAL = int(os.environ.get('REC_DUAL', 1))
CS2 = int(os.environ.get('REC_CS2', 7))
YDELAY = int(os.environ.get('REC_YDELAY', 0))
ULATE = int(os.environ.get('REC_ULATE', 0))
PIPE = int(os.environ.get('REC_PIPE', 0))
PGAP = int(os.environ.get('REC_PGAP', 2))
LSYNC = int(os.environ.get('REC_LSYNC', 0))
L_FLG = 10240 + 9216 + 128
EARLY = int(os.environ.get('REC_EARLY', 0))
PRIO = int(os.environ.get('REC_PRIO', 0))
NOU = int(os.environ.get('REC_NOU', 0))
NOST = int(os.environ.get('REC_NOST', 0))

def rec_body(a, pfx, fused=False, lsc='', alt=None):
    L = lambda n: f"{pfx}_{n}"
    lane_fields(a)
    cwindow(a, 24, 4)
    a(f"""
    s_cmp_ge_u32 s16, 12
    s_cselect_b32 s19, 1, 0              ; vgl
    s_mul_i32 s40, s19, 12
    s_sub_u32 s20, s16, s40              ; m (0..11)
    s_mul_i32 s55, s19, 10
    s_add_u32 s55, s55, s20
    s_lshl_b32 s40, s18, 1
    s_add_u32 s19, s19, s40              ; vg
    s_mul_i32 s21, s20, 11
    s_lshr_b32 s21, s21, 5               ; hh = m/3
    s_mul_i32 s40, s21, 3
    s_sub_u32 s22, s20, s40              ; c = m%3
    s_and_b32 s23, s17, 3                ; kq
    s_lshl_b32 s25, s19, 2
    s_add_u32 s26, s25, s23              ; head2
    s_add_u32 s25, s25, s21              ; H1
    s_mul_i32 s47, s19, {A_VG}
    s_add_u32 s47, s47, {A_OFF}
    s_mul_i32 s48, s18, {D_X}
    s_add_u32 s48, s48, {D_OFF}
    s_mov_b32 s49, 0xfffffffe
    s_mov_b32 s46, 4000000
    s_lshl_b32 s56, s22, 2
    s_add_u32 s56, s56, s23
    s_mul_i32 s50, s25, 384
    s_lshl_b32 s40, s56, 5
    s_add_u32 s50, s50, s40
    s_mul_i32 s51, s17, 20480
    v_lshlrev_b32 v249, 4, v255
    v_add_u32 v248, s51, v249
    v_bfe_u32 v247, v255, 2, 2           ; r
    v_and_b32 v245, 3, v255
    v_lshl_add_u32 v246, v251, 2, v247   ; 4g + r
    v_lshlrev_b32 v246, 5, v246
    v_lshl_add_u32 v246, v245, 3, v246
    v_add_u32 v246, s51, v246
    v_lshl_add_u32 v244, v251, 3, v247   ; 8g + r
    v_lshlrev_b32 v244, 7, v244
    v_lshl_add_u32 v244, v245, 3, v244
    v_add_u32 v244, s51, v244
    v_lshlrev_b32 v243, 7, v251
    v_lshl_add_u32 v243, v252, 4, v243   ; g*128 + row*16
    v_mov_b32 v242, {OOB}
    s_mov_b32 s27, 0
    """)
    WB = DM * H * DH * 2
    T = 236
    inlds = lambda ks, t: ks >= 12
    regidx = {}; ldsidx = {}
    for ks in range(20):
        for t in range(4):
            if inlds(ks, t): ldsidx[(ks, t)] = len(ldsidx)
            else: regidx[(ks, t)] = len(regidx)
    assert len(ldsidx) == NBL and len(regidx) == NBR
    MBOX = 8 * 1024
    a(f"""
    s_mul_i32 s58, s23, {NBL*1024}
    s_add_u32 s58, s58, {L_B}
    s_lshl_b32 s51, s23, 13
    s_mov_b32 s76, s51
    s_add_u32 s77, s58, {20*1024}
    s_add_u32 s78, s58, {26*1024}
    s_mov_b32 s44, 0x00ff00ff
    s_mov_b32 s45, 0x00ff00ff
    s_cmp_ge_u32 s17, 4
    s_cbranch_scc1 {L('yw')}
    s_cmp_ge_u32 s20, 10
    s_cbranch_scc1 {L('qkw')}
    """)
    if os.environ.get("X_ST"): a("s_memtime s[98:99]\ns_waitcnt lgkmcnt(0)\ns_mov_b32 s64, s98")
    a(f"""
    s_load_dwordx2 s[8:9], s[0:1], {KA['wo']}
    s_mov_b32 s10, {WB}
    s_mov_b32 s11, 0x00020000
    s_mul_i32 s54, s26, {DH*DM*2}
    s_lshl_b32 s40, s20, 7
    s_add_u32 s54, s54, s40
    v_lshrrev_b32 v{T}, 3, v255
    v_mul_u32_u24 v{T}, 1280, v{T}
    v_lshl_add_u32 v{T}, v252, 4, v{T}
    s_waitcnt lgkmcnt(0)
    """)
    for n in range(24):
        a(f"buffer_load_dwordx4 v[{4*n}:{4*n+3}], v{T}, s[8:11], s54 offen")
        a(f"s_add_u32 s54, s54, {8*1280}")
    if os.environ.get("X_ST"): a("s_memtime s[98:99]\ns_waitcnt lgkmcnt(0)\ns_mov_b32 s65, s98")
    AB, BA, RB, HOLD = 96, 144, 240, 176
    a(f"""
    v_mul_u32_u24 v{T+1}, 384, v250
    v_xor_b32 v{T+2}, v251, v252
    v_lshl_add_u32 v{RB}, v{T+2}, 4, v{T+1}
    v_or_b32 v{T+2}, 4, v251
    v_xor_b32 v{T+2}, v{T+2}, v252
    v_lshl_add_u32 v{RB+1}, v{T+2}, 4, v{T+1}
    v_add_u32 v248, s58, v249
    v_lshl_add_u32 v244, v251, 3, v247
    v_lshlrev_b32 v244, 7, v244
    v_lshl_add_u32 v244, v245, 3, v244
    v_add_u32 v244, s58, v244
    s_waitcnt vmcnt(0)
    """)
    if os.environ.get("X_ST"): a("s_memtime s[98:99]\ns_waitcnt lgkmcnt(0)\ns_mov_b32 s66, s98")
    for half in range(2):
        for n in range(12):
            k = 12 * half + n
            a(f"ds_write_b128 v248, v[{4*k}:{4*k+3}] offset:{1024*n}")
        a("s_waitcnt lgkmcnt(0)")
        for e3 in range(3):
            for t in range(4):
                for hr in range(2):
                    rr = ((3 * half + e3) * 4 + t) * 4 + 2 * hr
                    a(f"ds_read_b64_tr_b16 v[{rr}:{rr+1}], v244 offset:{e3*4096+hr*512+t*32}")
        a("s_waitcnt lgkmcnt(0)")
    def chunk_read(buf):
        a("s_barrier")
        a(f"v_add_u32 v246, s76, v{RB}\nv_add_u32 v244, s76, v{RB+1}")
        a("s_mov_b32 s40, s76\ns_mov_b32 s76, s77\ns_mov_b32 s77, s78\ns_mov_b32 s78, s40")
        ab = AB + 24 * buf
        for es in range(6):
            a(f"ds_read_b128 v[{ab+4*es}:{ab+4*es+3}], v{(246, 244)[es&1]} offset:{128*(es>>1)}")
    def chunk_mfma(tt):
        if os.environ.get('X_NOMFMA'): return
        ab = AB + 24 * tt
        for es in range(6):
            for t in range(4):
                ac = BA + (tt * 4 + t) * 4; w = (es * 4 + t) * 4
                cc = '0' if es == 0 else f"v[{ac}:{ac+3}]"
                a(f"v_mfma_f32_16x16x32_bf16 v[{ac}:{ac+3}], v[{ab+4*es}:{ab+4*es+3}], v[{w}:{w+3}], {cc}")
    if os.environ.get("X_ST"): a("s_memtime s[98:99]\ns_waitcnt lgkmcnt(0)\ns_mov_b32 s67, s98")
    chunk_read(0)
    if os.environ.get("X_ST"): a("s_memtime s[98:99]\ns_waitcnt lgkmcnt(0)\ns_mov_b32 s68, s98")
    a("s_memtime s[80:81]")
    a("s_waitcnt lgkmcnt(0)\ns_mov_b32 s53, 0")
    a.label(L('bloop'))
    chunk_read(1)
    chunk_mfma(0)
    a(f"s_waitcnt lgkmcnt(0)\ns_cmp_eq_u32 s53, 19\ns_cbranch_scc1 {L('blast')}")
    chunk_read(0)
    a.label(L('blast'))
    chunk_mfma(1)
    a(f"""
    s_and_b32 s40, s53, 1
    s_lshl_b32 s40, s40, 12
    s_add_u32 s40, s40, {MBOX}
    s_sub_u32 s41, s53, 12
    s_lshl_b32 s41, s41, 12
    s_cmp_lt_u32 s53, 12
    s_cselect_b32 s40, s40, s41
    v_add_u32 v{RB+2 if False else 242}, s40, v248
    s_nop 3
    """)
    for t in range(4):
        o = 224 + 4 * t
        for t2 in range(2):
            ac = BA + (t2 * 4 + t) * 4
            a(f"v_cvt_pk_bf16_f32 v{o+2*t2}, v{ac}, v{ac+1}")
            a(f"v_cvt_pk_bf16_f32 v{o+2*t2+1}, v{ac+2}, v{ac+3}")
    a(f"s_cmp_ge_u32 s53, 17\ns_cbranch_scc1 {L('bhold')}")
    for t in range(4):
        a(f"ds_write_b128 v242, v[{224+4*t}:{227+4*t}] offset:{1024*t}")
    a(f"s_branch {L('bnext')}")
    a.label(L('bhold'))
    for h in range(3):
        a(f"s_cmp_lg_u32 s53, {17+h}\ns_cbranch_scc1 {L(f'bh{h}')}")
        for r in range(16): a(f"v_mov_b32 v{HOLD+16*h+r}, v{224+r}")
        a.label(L(f'bh{h}'))
    a.label(L('bnext'))
    a(f"s_waitcnt lgkmcnt(0)\ns_add_u32 s53, s53, 1\ns_cmp_lt_u32 s53, 20\ns_cbranch_scc1 {L('bloop')}")
    a(f"v_mov_b32 v242, {OOB}")
    for ks in range(17, 20):
        for t in range(4):
            o = HOLD + ((ks - 17) * 4 + t) * 4
            a(f"ds_write_b128 v248, v[{o}:{o+3}] offset:{1024*ldsidx[(ks,t)]}")
    a("s_waitcnt lgkmcnt(0)")

    a.label(L('qkw'))
    if os.environ.get("X_ST"): a("s_memtime s[98:99]\ns_waitcnt lgkmcnt(0)\ns_mov_b32 s69, s98")
    a(f"""
    v_lshl_add_u32 v246, v251, 2, v247           ; 4g + rr
    v_bfe_u32 v244, v246, 1, 2
    v_xor_b32 v244, s23, v244
    v_lshlrev_b32 v246, 7, v246
    v_lshl_add_u32 v246, v244, 5, v246
    v_lshl_add_u32 v246, v245, 3, v246
    s_barrier
    """)
    for kq in range(4):
        if kq < 3: a(f"s_cmp_lg_u32 s23, {kq}\ns_cbranch_scc1 {L(f'qk{kq+1}')}")
        for r in range(20):
            a("s_barrier")
            for k4 in range(2):
                ks = 2 * (r % 10) + k4
                p = (ks - 5 * kq) % 20
                for hr in range(2):
                    rg = 80 * (r // 10) + 4 * p + 2 * hr
                    a(f"ds_read_b64_tr_b16 v[{rg}:{rg+1}], v246 offset:{(r&3)*8192 + k4*4096 + hr*2048}")
            a("s_waitcnt lgkmcnt(0)")
        if kq < 3:
            a(f"s_branch {L('qkd')}")
            a.label(L(f'qk{kq+1}'))
    a.label(L('qkd'))
    if os.environ.get("X_ST"): a("s_memtime s[98:99]\ns_waitcnt lgkmcnt(0)\ns_mov_b32 s72, s98")
    NFB = 5
    MF, MO, FB, AC = 160, 172, 176 + 4, 200
    QF, KF = 192, 194
    SD, SR = 160, 172
    SC, SL = 160, 172
    PF = 192
    PXR, ZR, PMR, OA = 160, 176, 180, 184
    TT = 198
    UF = 208
    KX = 244
    al = R(224)
    vD, vD3, vCld, vDst, vK0, vSXw, vSst, vKM, vQ1, vQ2, vQ3, vAx, vA2, vAm, vU, vCst, vPMw = [al() for _ in range(17)]
    T = 160
    vZero, vKM2 = 250, 251
    a(f"""
    s_mul_i32 s40, s23, 2560
    v_add_u32 v{vD3}, s40, v243
    v_lshl_add_u32 v{vD}, v253, 9, v{vD3}
    s_lshl_b32 s41, s56, 10
    v_lshl_add_u32 v{T}, v253, 4, v252
    v_lshlrev_b32 v{vK0}, 4, v{T}
    v_and_b32 v{T+1}, 1, v251
    v_lshrrev_b32 v{T+2}, 1, v251
    v_lshl_add_u32 v{vK0}, v{T+1}, 9, v{vK0}
    v_lshl_add_u32 v{vK0}, v{T+2}, 3, v{vK0}
    v_add_u32 v{vK0}, s41, v{vK0}
    s_lshl_b32 s41, s23, 8
    s_add_u32 s41, s41, {L_KM}
    v_lshlrev_b32 v{vKM}, 7, v{T+1}
    v_lshl_add_u32 v{vKM}, v252, 4, v{vKM}
    v_lshl_add_u32 v{vKM}, v{T+2}, 3, v{vKM}
    v_add_u32 v{vKM}, s41, v{vKM}
    v_cmp_eq_u32 vcc, 0, v253
    s_lshl_b32 s40, s17, 10
    v_add_u32 v{vSXw}, s40, v249
    s_mul_i32 s40, s17, 3072
    v_add_u32 v248, s40, v249
    s_lshl_b32 s40, s17, 2
    v_add_u32 v{vPMw}, s40, v249
    s_mul_i32 s40, s21, {A_HEAD}
    s_cmp_ge_u32 s17, 2
    s_cbranch_scc1 {L('sst2')}
    v_lshl_add_u32 v{vSst}, v251, 4, v252
    s_lshl_b32 s41, s17, 3
    v_add_u32 v{vSst}, s41, v{vSst}
    s_cmp_eq_u32 s22, 2
    s_cbranch_scc1 {L('sstc2')}
    s_lshl_b32 s41, s22, 3
    s_add_u32 s40, s40, s41
    v_lshlrev_b32 v{vSst}, 4, v{vSst}
    s_branch {L('sstc')}
    """)
    a.label(L('sstc2'))
    a(f"s_add_u32 s40, s40, {A_X2}\nv_lshlrev_b32 v{vSst}, 3, v{vSst}")
    a.label(L('sstc'))
    a(f"""
    v_add_u32 v{vSst}, s40, v{vSst}
    v_cndmask_b32 v{vSst}, v242, v{vSst}, vcc
    s_branch {L('sstd')}
    """)
    a.label(L('sst2'))
    a(f"""
    s_lshl_b32 s41, s22, 2
    s_add_u32 s40, s40, s41
    s_add_u32 s40, s40, {A_M}
    v_lshlrev_b32 v{vSst}, 4, v252
    v_lshl_add_u32 v{vSst}, v251, 8, v{vSst}
    v_add_u32 v{vSst}, s40, v{vSst}
    v_cndmask_b32 v{vSst}, v242, v{vSst}, vcc
    v_cmp_gt_u32 vcc, 2, v251
    s_nop 1
    v_cndmask_b32 v{vSst}, v242, v{vSst}, vcc
    """)
    a.label(L('sstd'))
    for qq, vq in ((1, vQ1), (2, vQ2), (3, vQ3)):
        a(f"s_add_u32 s40, s23, {qq}\ns_and_b32 s40, s40, 3\ns_mul_i32 s40, s40, 2560\ns_add_u32 s40, s40, {L_MEMX}\nv_add_u32 v{vq}, s40, v243")
    cs = DH ** -0.5 * math.log2(math.e)
    a(f"""
    s_mul_i32 s40, s23, {A_HEAD}
    v_add_u32 v{vAx}, s40, v249
    v_lshlrev_b32 v{vA2}, 3, v255
    v_add_u32 v{vA2}, s40, v{vA2}
    v_add_u32 v{vAm}, s40, v243
    v_lshlrev_b32 v{vU}, 9, v251
    v_lshl_add_u32 v{vU}, v250, 4, v{vU}
    s_lshl_b32 s36, s19, 2
    s_mul_i32 s36, s36, {UH}
    s_add_u32 s36, s36, {U_OFF}
    s_min_u32 s40, s20, 9
    s_lshl_b32 s40, s40, 12
    s_add_u32 s36, s36, s40
    s_lshr_b32 s40, s23, 1
    s_lshl_b32 s40, s40, 11
    s_add_u32 s36, s36, s40
    s_and_b32 s40, s23, 1
    s_lshl_b32 s40, s40, 8
    s_add_u32 s36, s36, s40
    s_mul_i32 s40, s19, 10240
    s_lshl_b32 s41, s20, 10
    s_add_u32 s40, s40, s41
    s_lshl_b32 s41, s23, 8
    s_add_u32 s40, s40, s41
    v_lshlrev_b32 v{vCst}, 6, v251
    v_lshl_add_u32 v{vCst}, v252, 3, v{vCst}
    v_add_u32 v{vCst}, s40, v{vCst}
    v_lshrrev_b32 v{T}, 13, v{vCst}
    v_lshlrev_b32 v{T}, 13, v{T}
    v_add_u32 v{vCst}, v{vCst}, v{T}
    v_cmp_eq_u32 vcc, 0, v253
    s_nop 1
    v_cndmask_b32 v{vCst}, v242, v{vCst}, vcc
    s_mov_b32 s53, {f32(cs)}
    """)
    s3_setup(a, vCld, vDst, T)
    if os.environ.get("X_ST"): a("s_memtime s[98:99]\ns_waitcnt lgkmcnt(0)\ns_mov_b32 s73, s98")
    if LSYNC: a(f"v_mov_b32 v{vZero}, 0\nds_write_b32 v{vPMw}, v{vZero} offset:{L_FLG}" if False else f"v_mov_b32 v{vZero}, 0\ns_mov_b64 exec, 1\nds_write_b32 v{vPMw}, v{vZero} offset:{L_FLG}\ns_mov_b64 exec, -1\ns_waitcnt lgkmcnt(0)")
    k_init.census(a, 160, 39)
    k_init.wait_init(a, 160, out_par=41)
    a("s_and_b32 s41, s41, 8192\ns_add_u32 s24, s24, s41")
    if os.environ.get('A_NEAR'): a(f"s_xor_b32 s41, s41, {8192 if os.environ['A_NEAR'] == '1' else 0}\ns_add_u32 s47, s47, s41")
    if STAMP >= 0:
        for i in range(12): a(f"s_mov_b32 s{64+i}, 0")
    a(f"""
    s_mul_i32 s35, s25, {PH}
    s_add_u32 s35, s35, {K_OFF}
    s_memtime s[88:89]
    s_barrier
    s_memtime s[96:97]
    s_waitcnt lgkmcnt(0)
    s_cmp_eq_u32 s17, 1
    s_cselect_b32 s88, s80, s88
    s_waitcnt lgkmcnt(0)
    s_setprio 3
    """)
    if alt: a(f"s_cmp_eq_u32 s39, {int(os.environ.get('FORCE_IMPURE', 0))}\ns_cbranch_scc1 {alt}_loopA")
    a.label(L('loopA'))
    slot_bases(a)
    if LSYNC: a(f"s_add_u32 s40, s27, 1\nv_mov_b32 v241, s40\ns_and_b32 s57, s27, 1\ns_lshl_b32 s57, s57, 10\nv_add_u32 v{vKM2}, s57, v{vKM}")
    stamp(a, 0)
    if EARLY:
        a(f"buffer_load_dwordx2 v[{KX}:{KX+1}], v{vK0}, s[12:15], s35 offen")
        a(f"buffer_load_dwordx2 v[{KX+2}:{KX+3}], v{vK0}, s[12:15], s35 offen offset:128")
        a(f"s_add_u32 s35, s35, {P_SEG}")
        for hd in range(4):
            a(f"s_add_u32 s40, s36, {hd*UH}\nbuffer_load_dwordx4 v[{UF+4*hd}:{UF+4*hd+3}], v{vU}, s[12:15], s40 offen")
        a(f"s_add_u32 s36, s36, {U_SEG}")
    poll(a, pfx, [f"buffer_load_dwordx4 v[{MF}:{MF+3}], v{vD}, s[12:15], s32 offen sc1",
                  f"buffer_load_dwordx4 v[{MF+4}:{MF+7}], v{vD}, s[12:15], s32 offen offset:1024 sc1",
                  f"buffer_load_dwordx4 v[{MF+8}:{MF+11}], v{vD3}, s[12:15], s32 offen offset:2048 sc1"],
         range(MF, MF + 12), TT)
    stamp(a, 1)
    def mm(p, f):
        for ti, wb in enumerate((0, 80)):
            c = '0' if p == 0 else f"v[{AC+4*ti}:{AC+4*ti+3}]"
            a(f"v_mfma_f32_16x16x32_bf16 v[{AC+4*ti}:{AC+4*ti+3}], v[{wb+4*p}:{wb+4*p+3}], v[{f}:{f+3}], {c}")
    def rd(p):
        nb = FB + 4 * ((p - 5) % NFB)
        a(f"ds_read_b128 v[{nb}:{nb+3}], v{(vQ1, vQ2, vQ3)[p//5-1]} offset:{512*(p%5)}")
    a(f"""
    ds_write_b128 v{vD}, v[{MF}:{MF+3}] offset:{L_MEMX}
    ds_write_b128 v{vD}, v[{MF+4}:{MF+7}] offset:{L_MEMX+1024}
    ds_write_b128 v{vD3}, v[{MF+8}:{MF+11}] offset:{L_MEMX+2048}
    """)
    mm(0, MF)
    for j in range(4): a(f"v_mov_b32_dpp v{MO+j}, v{MF+j} row_ror:8 row_mask:0xf bank_mask:0xf")
    mm(2, MF + 4)
    for j in range(4, 8): a(f"v_mov_b32_dpp v{MO+j}, v{MF+j} row_ror:8 row_mask:0xf bank_mask:0xf")
    a("s_waitcnt lgkmcnt(0)\ns_barrier")
    stamp(a, 2)
    for p in range(5, 5 + NFB - 1): rd(p)
    mm(4, MF + 8); mm(1, MO); mm(3, MO + 4)
    late = [f"buffer_load_dwordx2 v[{KX}:{KX+1}], v{vK0}, s[12:15], s35 offen",
            f"buffer_load_dwordx2 v[{KX+2}:{KX+3}], v{vK0}, s[12:15], s35 offen offset:128",
            f"s_add_u32 s35, s35, {0 if NOU else P_SEG}"]
    if not ULATE:
        for hd in range(4):
            late.append(f"s_add_u32 s40, s36, {hd*UH}\nbuffer_load_dwordx4 v[{UF+4*hd}:{UF+4*hd+3}], v{vU}, s[12:15], s40 offen")
        late.append(f"s_add_u32 s36, s36, {0 if NOU else U_SEG}")
    if EARLY: late = []
    for p in range(5, 20):
        a(f"s_waitcnt lgkmcnt({min(NFB-2, 19-p)})")
        mm(p, FB + 4 * ((p - 5) % NFB))
        if p + NFB - 1 < 20: rd(p + NFB - 1)
        if late: a(late.pop(0))
    stamp(a, 3)
    a(f"""
    s_nop 6
    v_cvt_pk_bf16_f32 v{QF}, v{AC}, v{AC+1}
    v_cvt_pk_bf16_f32 v{QF+1}, v{AC+2}, v{AC+3}
    v_cvt_pk_bf16_f32 v{KF}, v{AC+4}, v{AC+5}
    v_cvt_pk_bf16_f32 v{KF+1}, v{AC+6}, v{AC+7}
    s_waitcnt vmcnt({0 if ULATE else 4})
    v_mfma_f32_16x16x16_bf16 v[{SD}:{SD+3}], v[{KX}:{KX+1}], v[{QF}:{QF+1}], 0
    v_mfma_f32_16x16x16_bf16 v[{SD+4}:{SD+7}], v[{KX+2}:{KX+3}], v[{QF}:{QF+1}], 0
    v_mfma_f32_16x16x16_bf16 v[{SD+8}:{SD+11}], v[{KF}:{KF+1}], v[{QF}:{QF+1}], 0
    s_nop 5
    """)
    if not LSYNC:
        a(f"""
        ds_write_b128 v248, v[{SD}:{SD+3}] offset:{L_SX}
        ds_write_b128 v248, v[{SD+4}:{SD+7}] offset:{L_SX+1024}
        ds_write_b128 v248, v[{SD+8}:{SD+11}] offset:{L_SX+2048}
        s_waitcnt lgkmcnt(0)
        s_barrier
        """)
    else:
        lp = a.uid(pfx + '_ls')
        a(f"""
        s_mov_b64 exec, s[44:45]
        ds_write_b128 v248, v[{SD}:{SD+3}] offset:{L_SX}
        ds_write_b128 v248, v[{SD+4}:{SD+7}] offset:{L_SX+1024}
        ds_write_b128 v248, v[{SD+8}:{SD+11}] offset:{L_SX+2048}
        s_mov_b64 exec, 1
        ds_write_b32 v{vPMw}, v241 offset:{L_FLG}
        s_mov_b64 exec, -1
        s_cmp_eq_u32 s17, 3
        s_cbranch_scc1 {L('std')}
        """)
        a.label(lp)
        a(f"""
        ds_read_b128 v[{SR}:{SR+3}], v{vZero} offset:{L_FLG}
        s_waitcnt lgkmcnt(0)
        v_min3_u32 v{SR}, v{SR}, v{SR+1}, v{SR+2}
        v_min_u32 v{SR}, v{SR}, v{SR+3}
        v_cmp_ne_u32 vcc, v{SR}, v241
        s_cbranch_vccnz {lp}
        """)
    stamp(a, 4)
    a(f"""
    s_cmp_eq_u32 s17, 3
    s_cbranch_scc1 {L('std')}
    ds_read_b128 v[{SD}:{SD+3}], v{vSXw} offset:{L_SX}
    ds_read_b128 v[{SD+4}:{SD+7}], v{vSXw} offset:{L_SX+3072}
    ds_read_b128 v[{SR}:{SR+3}], v{vSXw} offset:{L_SX+6144}
    ds_read_b128 v[{SR+4}:{SR+7}], v{vSXw} offset:{L_SX+9216}
    s_waitcnt lgkmcnt(2)
    v_add_f32 v{SD}, v{SD}, v{SD+4}
    v_add_f32 v{SD+1}, v{SD+1}, v{SD+5}
    v_add_f32 v{SD+2}, v{SD+2}, v{SD+6}
    v_add_f32 v{SD+3}, v{SD+3}, v{SD+7}
    s_waitcnt lgkmcnt(0)
    v_add_f32 v{SR}, v{SR}, v{SR+4}
    v_add_f32 v{SR+1}, v{SR+1}, v{SR+5}
    v_add_f32 v{SR+2}, v{SR+2}, v{SR+6}
    v_add_f32 v{SR+3}, v{SR+3}, v{SR+7}
    v_add_f32 v{SD}, v{SD}, v{SR}
    v_add_f32 v{SD+1}, v{SD+1}, v{SR+1}
    v_add_f32 v{SD+2}, v{SD+2}, v{SR+2}
    v_add_f32 v{SD+3}, v{SD+3}, v{SR+3}
    v_cvt_pk_bf16_f32 v{SR}, v{SD}, v{SD+1}
    v_cvt_pk_bf16_f32 v{SR+1}, v{SD+2}, v{SD+3}
    v_min_u32 v{SR}, s49, v{SR}
    v_min_u32 v{SR+1}, s49, v{SR+1}
    s_cmp_eq_u32 s17, 2
    s_cbranch_scc1 {L('st2')}
    buffer_store_dwordx2 v[{SR}:{SR+1}], v{vSst}, s[12:15], s28 offen{lsc}
    s_branch {L('std')}
    """)
    a.label(L('st2'))
    a(f"""
    buffer_store_dword v{SR}, v{vSst}, s[12:15], s28 offen{lsc}
    buffer_store_dword v{SR+1}, v{vSst}, s[12:15], s28 offen offset:128{lsc}
    """)
    a.label(L('std'))
    stamp(a, 5)
    a(f"s_mov_b64 exec, s[44:45]\nds_write_b64 v{vKM2 if LSYNC else vKM}, v[{KF}:{KF+1}]\ns_mov_b64 exec, -1")
    a(f"s_cmp_ge_u32 s20, 10\ns_cbranch_scc1 {L('endA')}")
    if ULATE:
        for hd in range(4):
            a(f"s_add_u32 s40, s36, {hd*UH}\nbuffer_load_dwordx4 v[{UF+4*hd}:{UF+4*hd+3}], v{vU}, s[12:15], s40 offen")
        a(f"s_add_u32 s36, s36, {0 if NOU else U_SEG}")
    if PRIO: a("s_setprio 0")
    if SSLEEP: a(f"s_sleep {SSLEEP}")
    def sloads(b):
        return [f"buffer_load_dwordx4 v[{b}:{b+3}], v{vAx}, s[12:15], s28 offen sc1",
                f"buffer_load_dwordx2 v[{b+4}:{b+5}], v{vA2}, s[12:15], s28 offen offset:{A_X2} sc1",
                f"buffer_load_dwordx3 v[{b+6}:{b+8}], v{vAm}, s[12:15], s28 offen offset:{A_M} sc1"]
    def unpack(b):
        def f():
            if PRIO: a("s_setprio 3")
            for j in range(9):
                a(f"v_lshlrev_b32 v{SL+2*j}, 16, v{b+j}")
                a(f"v_and_b32 v{SL+2*j+1}, 0xffff0000, v{b+j}")
        return f
    SC2 = 196 if PIPE else None
    if PIPE:
        poll2(a, pfx, sloads(SC), range(SC, SC + 9), sloads(SC2), range(SC2, SC2 + 9), 206, unpack(SC), unpack(SC2), PGAP)
    else:
        poll(a, pfx, sloads(SC), range(SC, SC + 9), TT)
        unpack(SC)()
    stamp(a, 7)
    pk = lambda d, x, y: a(f"v_add_f32 v{d}, v{x}, v{y}\nv_add_f32 v{d+1}, v{x+1}, v{y+1}")
    pk(SL, SL, SL + 4); pk(SL + 2, SL + 2, SL + 6); pk(SL + 4, SL + 12, SL + 14)
    pk(SL, SL, SL + 8); pk(SL + 2, SL + 2, SL + 10); pk(SL + 4, SL + 4, SL + 16)
    mx, t2, sm = (206, 207, 190) if PIPE else (TT, TT + 1, TT + 2)
    if PIPE: PF = 178
    a(f"""
    v_max3_f32 v{mx}, v{SL}, v{SL+1}, v{SL+2}
    v_max3_f32 v{t2}, v{SL+3}, v{SL+4}, v{SL+5}
    v_max_f32 v{mx}, v{mx}, v{t2}
    s_nop 1
    v_max_f32_dpp v{mx}, v{mx}, v{mx} row_ror:8 row_mask:0xf bank_mask:0xf
    v_mov_b32 v{t2}, v{mx}
    s_nop 1
    v_permlane32_swap_b32 v{mx}, v{t2}
    v_max_f32 v{mx}, v{mx}, v{t2}
    v_mov_b32 v{t2}, v{mx}
    s_nop 1
    v_permlane16_swap_b32 v{mx}, v{t2}
    v_max_f32 v{mx}, v{mx}, v{t2}
    v_mul_f32 v{mx}, s53, v{mx}
    """)
    for j in range(6):
        a(f"v_fma_f32 v{SL+j}, v{SL+j}, s53, -v{mx}")
    for j in range(6):
        a(f"v_exp_f32 v{SL+j}, v{SL+j}")
    a(f"""
    v_add_f32 v{sm}, v{SL}, v{SL+2}
    v_add_f32 v{sm+1}, v{SL+1}, v{SL+3}
    v_add_f32 v{t2}, v{SL+4}, v{SL+5}
    v_add_f32 v{sm}, v{sm}, v{sm+1}
    v_fmac_f32 v{sm}, 0.5, v{t2}
    s_nop 1
    v_add_f32_dpp v{sm}, v{sm}, v{sm} row_ror:8 row_mask:0xf bank_mask:0xf
    v_mov_b32 v{t2}, v{sm}
    s_nop 1
    v_permlane32_swap_b32 v{sm}, v{t2}
    v_add_f32 v{sm}, v{sm}, v{t2}
    v_mov_b32 v{t2}, v{sm}
    s_nop 1
    v_permlane16_swap_b32 v{sm}, v{t2}
    v_add_f32 v{sm}, v{sm}, v{t2}
    v_rcp_f32 v{sm}, v{sm}
    s_nop 0
    v_mul_f32 v{SL}, v{SL}, v{sm}
    v_mul_f32 v{SL+1}, v{SL+1}, v{sm}
    v_mul_f32 v{SL+2}, v{SL+2}, v{sm}
    v_mul_f32 v{SL+3}, v{SL+3}, v{sm}
    v_mul_f32 v{SL+4}, v{SL+4}, v{sm}
    v_mul_f32 v{SL+5}, v{SL+5}, v{sm}
    v_cvt_pk_bf16_f32 v{PF}, v{SL}, v{SL+1}
    v_cvt_pk_bf16_f32 v{PF+1}, v{SL+2}, v{SL+3}
    v_cvt_pk_bf16_f32 v{PF+4}, v{SL+4}, v{SL+5}
    v_mov_b32_dpp v{PF+2}, v{PF} row_ror:8 row_mask:0xf bank_mask:0xf
    v_mov_b32_dpp v{PF+3}, v{PF+1} row_ror:8 row_mask:0xf bank_mask:0xf
    ds_write_b32 v{vPMw}, v{PF+4} offset:{L_PM}
    ds_write_b128 v{vSXw}, v[{PF}:{PF+3}] offset:{L_PX}
    """)
    stamp(a, 8)
    a("s_waitcnt lgkmcnt(0) vmcnt(0)\ns_barrier")
    stamp(a, 9)
    for hd in range(4):
        a(f"ds_read_b128 v[{PXR+4*hd}:{PXR+4*hd+3}], v249 offset:{L_PX+1024*hd}")
    a(f"ds_read_b128 v[{PMR}:{PMR+3}], v249 offset:{L_PM}")
    a(f"ds_read_b128 v[{ZR}:{ZR+3}], v{vSXw} offset:{L_ZM}")
    for hd in range(4):
        a(f"s_waitcnt lgkmcnt({5-hd})")
        c = '0' if hd == 0 else f"v[{OA}:{OA+3}]"
        a(f"v_mfma_f32_16x16x32_bf16 v[{OA}:{OA+3}], v[{UF+4*hd}:{UF+4*hd+3}], v[{PXR+4*hd}:{PXR+4*hd+3}], {c}")
    a(f"""
    s_waitcnt lgkmcnt(0)
    v_mfma_f32_16x16x32_bf16 v[{OA}:{OA+3}], v[{ZR}:{ZR+3}], v[{PMR}:{PMR+3}], v[{OA}:{OA+3}]
    s_nop 7
    v_cvt_pk_bf16_f32 v{TT}, v{OA}, v{OA+1}
    v_cvt_pk_bf16_f32 v{TT+1}, v{OA+2}, v{OA+3}
    v_min_u32 v{TT}, s49, v{TT}
    v_min_u32 v{TT+1}, s49, v{TT+1}
    buffer_store_dwordx2 v[{TT}:{TT+1}], v{vCst}, s[12:15], s30 offen sc1
    """)
    stamp(a, 10)
    if DUAL:
        a(f"s_sleep {CS2}")
        a(f"s_cmp_eq_u32 s27, {NST-1}\ns_cbranch_scc1 {L('endA')}")
        s3_run(a, pfx, vCld, vDst, 160, lsc)
    else:
        a(f"s_sleep {DSLEEP}")
    a.label(L('endA'))
    stamp(a, 11)
    a(f"""
    s_add_u32 s27, s27, 1
    s_cmp_lt_u32 s27, {NST}
    s_cbranch_scc1 {L('loopA')}
    s_waitcnt lgkmcnt(0)
    s_barrier
    """)
    if fused: a("s_barrier")
    a(f"s_branch {L('done')}")

    a.label(L('yw'))
    a(f"""
    s_cmp_ge_u32 s20, 10
    s_cbranch_scc1 {L('norecv')}
    v_add_u32 v248, s58, v249
    s_load_dwordx2 s[8:9], s[0:1], {KA['wv']}
    s_mov_b32 s10, {WB}
    s_mov_b32 s11, 0x00020000
    s_mul_i32 s52, s26, 384
    """)
    DV = 200; T = 236
    for n in range(6):
        a(f"""
        v_add_u32 v{T+1}, {64*n}, v255
        v_mul_u32_u24 v{T+2}, 2731, v{T+1}
        v_lshrrev_b32 v{T+2}, 16, v{T+2}
        v_mul_u32_u24 v{T+3}, 24, v{T+2}
        v_sub_u32 v{T+3}, v{T+1}, v{T+3}
        v_and_b32 v{T+4}, 7, v{T+2}
        v_xor_b32 v{T+3}, v{T+3}, v{T+4}
        v_mul_u32_u24 v{T+2}, 12288, v{T+2}
        v_lshl_add_u32 v{DV+n}, v{T+3}, 4, v{T+2}
        """)
    a("s_waitcnt lgkmcnt(0)")
    def bdma(c):
        if os.environ.get('X_NODMA'): return
        a(f"s_mov_b32 s43, s{76+c%3}")
        for n in range(6):
            a(f"s_mov_b32 m0, s43\ns_add_u32 s43, s43, 1024")
            a(f"buffer_load_dwordx4 v{DV+n}, s[8:11], s52 offen lds")
        a(f"s_add_u32 s52, s52, {16*12288}")
    bdma(0); bdma(1)
    for c in range(40):
        a(f"s_waitcnt vmcnt({6 if c < 39 else 0})\ns_barrier")
        if c + 2 < 40: bdma(c + 2)
        if c >= 3 and c % 2 == 1 and (c - 3) // 2 < 12:
            ks = (c - 3) // 2
            for t in range(4):
                if (ks, t) in regidx:
                    f = regidx[(ks, t)]
                    a(f"ds_read_b128 v[{4*f}:{4*f+3}], v248 offset:{MBOX + (ks&1)*4096 + 1024*t}")
            a("s_waitcnt lgkmcnt(0)")
    a.label(L('norecv'))
    a(f"s_cmp_lg_u32 s16, 11\ns_cbranch_scc1 {L('nopb')}\ns_cmp_lg_u32 s18, 0\ns_cbranch_scc1 {L('nopb')}\ns_cmp_lg_u32 s17, 7\ns_cbranch_scc1 {L('nopb')}")
    k_init.probe(a)
    a.label(L('nopb'))
    a("s_memtime s[88:89]\ns_waitcnt lgkmcnt(0)")
    a(f"""
    s_load_dwordx2 s[8:9], s[0:1], {KA['wq']}
    s_load_dwordx2 s[60:61], s[0:1], {KA['wk']}
    s_mov_b32 s10, {WB}
    s_mov_b32 s11, 0x00020000
    s_mov_b32 s62, {WB}
    s_mov_b32 s63, 0x00020000
    v_lshrrev_b32 v200, 3, v255
    v_bfe_u32 v201, v200, 1, 2
    v_lshlrev_b32 v201, 1, v201
    v_xor_b32 v201, v201, v252
    v_mul_u32_u24 v200, 12288, v200
    v_lshl_add_u32 v200, v201, 4, v200
    s_mul_i32 s54, s25, 384
    s_lshl_b32 s40, s22, 7
    s_add_u32 s54, s54, s40
    s_mul_i32 s40, s23, {16*12288}
    s_add_u32 s54, s54, s40
    s_lshl_b32 s57, s23, 11
    s_waitcnt lgkmcnt(0)
    s_barrier
    """)
    def qdma(r):
        sr = 8 if r < 10 else 60
        a(f"s_add_u32 s52, s54, {(r%10)*64*12288}\ns_add_u32 s43, s57, {(r&3)*8192}")
        for n in range(2):
            a(f"s_mov_b32 m0, s43\ns_add_u32 s43, s43, 1024")
            a(f"buffer_load_dwordx4 v200, s[{sr}:{sr+3}], s52 offen lds")
            a(f"s_add_u32 s52, s52, {8*12288}")
    qdma(0); qdma(1); qdma(2)
    for r in range(20):
        a(f"s_waitcnt vmcnt({2*min(2, 19-r)})\ns_barrier")
        if r + 3 < 20: qdma(r + 3)
    YFB = 4 * NBR
    YWB = YFB + 16
    YA = YWB + 16
    vZw, vYw, vCld, vDst, vBl = 244, 245, 246, 247, 248
    vRd, vYr, vMem = 250, 251, 252
    T = YFB
    a(f"""
    v_lshlrev_b32 v{vZw}, 9, v251
    v_lshl_add_u32 v{vZw}, v250, 4, v{vZw}
    s_lshl_b32 s40, s23, 2
    s_add_u32 s40, s40, {L_ZM}
    v_add_u32 v{vZw}, s40, v{vZw}
    v_lshlrev_b32 v{vYw}, 8, v251
    v_lshl_add_u32 v{vYw}, v250, 3, v{vYw}
    s_lshl_b32 s40, s23, 10
    s_add_u32 s40, s40, {L_Y}
    v_add_u32 v{vYw}, s40, v{vYw}
    s_mov_b32 s79, s40
    v_add_u32 v{vBl}, s58, v249
    s_mul_i32 s40, s21, {A_HEAD}
    s_lshl_b32 s61, s22, 3
    s_cmp_eq_u32 s22, 2
    s_cselect_b32 s61, {A_X2}, s61
    s_cselect_b32 s62, 3, 4
    s_add_u32 s61, s61, s40
    s_lshl_b32 s63, s22, 2
    s_add_u32 s63, s63, s40
    s_add_u32 s63, s63, {A_M}
    s_lshl_b32 s52, s55, 9
    s_mul_i32 s54, s19, 10240
    s_lshl_b32 s42, s20, 10
    s_add_u32 s54, s54, s42
    s_lshr_b32 s42, s54, 13
    s_lshl_b32 s42, s42, 13
    s_add_u32 s54, s54, s42
    """)
    s3_setup(a, vCld, vDst, T)
    a(f"""
    v_mov_b32 v{vMem}, v243
    v_add_u32 v{vYr}, s79, v249
    v_and_b32 v{vRd}, 31, v255
    v_lshlrev_b32 v{vRd}, 2, v{vRd}
    s_lshl_b32 s40, s18, 7
    s_add_u32 s59, s40, {PROG_OFF}
    s_add_u32 s40, s40, {RDY_OFF}
    v_add_u32 v{vRd}, s40, v{vRd}
    s_mul_i32 s60, s18, 24
    s_add_u32 s60, s60, s16
    s_lshl_b32 s60, s60, 6
    s_add_u32 s60, s60, {PR_OFF}
    s_mul_i32 s38, s26, {YH}
    s_add_u32 s38, s38, {Y_OFF - Y_SEG}
    s_lshl_b32 s40, s20, 10
    s_add_u32 s38, s38, s40
    s_mul_i32 s37, s25, {KMH}
    s_add_u32 s37, s37, {KM_OFF - KM_SEG}
    s_lshl_b32 s40, s22, 10
    s_add_u32 s37, s37, s40
    """)
    TT = YA
    def ready(need_expr):
        if not fused: return
        lp = a.uid(pfx + '_rlp'); ok = a.uid(pfx + '_rok')
        a(need_expr)
        a.label(lp)
        a(f"""
        buffer_load_dword v{TT}, v{vRd}, s[12:15], s93 offen sc1
        s_sub_u32 s46, s46, 1
        s_cbranch_scc1 {ok}_x
        s_waitcnt vmcnt(0)
        v_cmp_gt_u32 vcc, s57, v{TT}
        s_cbranch_vccz {ok}
        s_sleep 2
        s_branch {lp}
        """)
        a.label(ok + '_x')
        a("s_mov_b32 s46, 0")
        a.label(ok)
    def flush(FT):
        sk = a.uid(pfx + '_fl')
        a(f"ds_read_b128 v[{FT}:{FT+3}], v{vYr}")
        if LSYNC:
            a(f"s_add_u32 s40, s27, 1\ns_and_b32 s40, s40, 1\ns_lshl_b32 s40, s40, 10\nv_add_u32 v{FT+8}, s40, v249")
            a(f"ds_read_b128 v[{FT+4}:{FT+7}], v{FT+8} offset:{L_KM}")
        else:
            a(f"ds_read_b128 v[{FT+4}:{FT+7}], v249 offset:{L_KM}")
        a(f"s_waitcnt lgkmcnt(0)\ns_cmp_ge_u32 s20, 10\ns_cbranch_scc1 {sk}_a")
        a(f"buffer_store_dwordx4 v[{FT}:{FT+3}], v249, s[12:15], s38 offen sc1")
        a.label(sk + '_a')
        a(f"s_cmp_lg_u32 s17, 4\ns_cbranch_scc1 {sk}_b")
        a(f"buffer_store_dwordx4 v[{FT+4}:{FT+7}], v249, s[12:15], s37 offen sc1")
        a.label(sk + '_b')
        a(f"s_add_u32 s38, s38, {Y_SEG}\ns_add_u32 s37, s37, {KM_SEG}")
    def word_store(val_s, addr_s, t):
        a(f"v_mov_b32 v{t}, s{val_s}\nv_mov_b32 v{t+1}, s{addr_s}\nbuffer_store_dword v{t}, v{t+1}, s[12:15], s93 offen sc1")
    k_init.census(a, YA, 39)
    k_init.wait_init(a, YA, out_par=41)
    a("s_and_b32 s41, s41, 8192\ns_add_u32 s24, s24, s41")
    if os.environ.get('A_NEAR'): a(f"s_xor_b32 s41, s41, {8192 if os.environ['A_NEAR'] == '1' else 0}\ns_add_u32 s47, s47, s41")
    if STAMP >= 0:
        for i in range(12): a(f"s_mov_b32 s{64+i}, 0")
    ready(f"s_mov_b32 s57, {2 if EARLY else 1}")
    a("s_barrier\ns_memtime s[96:97]\ns_waitcnt lgkmcnt(0)\ns_setprio 1")
    if alt: a(f"s_cmp_eq_u32 s39, {int(os.environ.get('FORCE_IMPURE', 0))}\ns_cbranch_scc1 {alt}_loopS")
    a.label(L('loopS'))
    slot_bases(a)
    stamp(a, 0)
    a("s_barrier")
    stamp(a, 2)
    flush(YA)
    if fused:
        a(f"s_cmp_lg_u32 s17, 7\ns_cbranch_scc1 {L('nopr')}\ns_cmp_lt_u32 s27, 2\ns_cbranch_scc1 {L('nopr')}\ns_sub_u32 s40, s27, 1")
        word_store(40, 60, YA + 8)
        a.label(L('nopr'))
    a(f"s_cmp_lg_u32 s17, 6\ns_cbranch_scc1 {L('nopois')}")
    PO = YA + 12
    for j in range(4): a(f"v_mov_b32 v{PO+j}, -1")
    a(f"""
    v_lshlrev_b32 v{YA+8}, s62, v255
    v_and_b32 v{YA+9}, 0x1ff, v249
    s_add_u32 s40, s29, s61
    s_add_u32 s41, s29, s63
    buffer_store_dwordx2 v[{PO}:{PO+1}], v{YA+8}, s[12:15], s40 offen{lsc}
    buffer_store_dword v{PO}, v{YA+9}, s[12:15], s41 offen{lsc}
    s_cmp_ge_u32 s20, 10
    s_cbranch_scc1 {L('nopois')}
    s_add_u32 s40, s31, s54
    s_add_u32 s41, s34, s52
    buffer_store_dwordx4 v[{PO}:{PO+3}], v249, s[12:15], s40 offen sc1
    buffer_store_dwordx4 v[{PO}:{PO+3}], v{YA+9}, s[12:15], s41 offen{lsc}
    """)
    a.label(L('nopois'))
    a(f"s_cmp_lg_u32 s17, 5\ns_cbranch_scc1 {L('noprog')}\ns_cmp_lg_u32 s16, 11\ns_cbranch_scc1 {L('noprog')}\ns_add_u32 s40, s27, 1")
    word_store(40, 59, YA + 8)
    if os.environ.get('MAIN_DUMP'):
        a(f"""
        s_memtime s[98:99]
        s_memrealtime s[100:101]
        s_waitcnt lgkmcnt(0)
        v_mov_b32 v{YA+2}, s98
        v_mov_b32 v{YA+3}, s100
        s_lshl_b32 s40, s18, 6
        s_add_u32 s40, s40, s27
        s_lshl_b32 s40, s40, 3
        s_add_u32 s40, s40, {WS_END+140000//16*16}
        v_mov_b32 v{YA+1}, 0
        buffer_store_dwordx2 v[{YA+2}:{YA+3}], v{YA+1}, s[12:15], s40 offen
        """)
    a.label(L('noprog'))
    a(f"s_cmp_lt_u32 s20, 10\ns_cbranch_scc1 {L('yjob')}\n{'' if LSYNC else 's_barrier'}\ns_branch {L('endS')}")
    a.label(L('yjob'))
    B1AT = int(os.environ.get('REC_B1S', 4))
    issued = []
    def lds(tag, ins): a(ins); issued.append(tag)
    def need(tag):
        k = len(issued) - 1 - issued.index(tag)
        a(f"s_waitcnt lgkmcnt({min(k, 15)})")
    pairs_ = [(0, 12), (1, 13), (2, 14), (3, 15), (4, 16), (5, 17), (6, 18), (7, 19), (8, 9), (10, 11)]
    seq = []
    for (ka, kb) in pairs_[:8]:
        for t in range(4): seq += [(ka, t), (kb, t)]
    for t in range(4):
        seq += [(k, t) for k in (8, 9, 10, 11)]
    kseq = [k for p in pairs_ for k in p]
    mbuf = {k: YFB + 4 * (n % 4) for n, k in enumerate(kseq)}
    def rmem(ks): lds(('m', ks), f"ds_read_b128 v[{mbuf[ks]}:{mbuf[ks]+3}], v{vMem} offset:{L_MEMX+512*ks}")
    lkeys = [k for k in seq if k in ldsidx]
    lbuf = {k: YWB + 4 * (n % 4) for n, k in enumerate(lkeys)}
    nxt = [0]
    def rb_upto(n):
        while nxt[0] < min(n, len(lkeys)):
            k = lkeys[nxt[0]]
            lds(('b', k), f"ds_read_b128 v[{lbuf[k]}:{lbuf[k]+3}], v{vBl} offset:{1024*ldsidx[k]}"); nxt[0] += 1
    rmem(kseq[0]); rmem(kseq[1]); rb_upto(4)
    seen = set()
    ZO = YWB
    def zout(t):
        a(f"v_cvt_pk_bf16_f32 v{ZO+2*t}, v{YA+4*t}, v{YA+4*t+1}")
        a(f"v_cvt_pk_bf16_f32 v{ZO+2*t+1}, v{YA+4*t+2}, v{YA+4*t+3}")
        a("s_mov_b32 exec_hi, 0")
        a(f"ds_write_b32 v{vZw}, v{ZO+2*t} offset:{1024*t}")
        a(f"ds_write_b32 v{vZw}, v{ZO+2*t+1} offset:{1024*t+256}")
        a("s_mov_b32 exec_hi, -1")
    for n, (ks, t) in enumerate(seq):
        pi = n // 8
        if n % 8 == 0:
            if not LSYNC and (2 * pi == B1AT or 2 * pi == B1AT + 1 and B1AT % 2): a("s_barrier")
            if LSYNC and pi == 0 and YDELAY: a(f"s_sleep {YDELAY}")
            if pi + 1 < len(pairs_): rmem(kseq[2 * pi + 2]); rmem(kseq[2 * pi + 3])
        if ('m', ks) not in seen:
            need(('m', ks)); seen.add(('m', ks))
        if (ks, t) in ldsidx:
            need(('b', (ks, t))); w = lbuf[(ks, t)]
        else:
            w = 4 * regidx[(ks, t)]
        fb = mbuf[ks]
        c = '0' if n < 8 and n % 2 == 0 else f"v[{YA+4*t}:{YA+4*t+3}]"
        a(f"v_mfma_f32_16x16x32_bf16 v[{YA+4*t}:{YA+4*t+3}], v[{fb}:{fb+3}], v[{w}:{w+3}], {c}")
        if (ks, t) in ldsidx: rb_upto(lkeys.index((ks, t)) + 5)
        if n >= 64 and ks == 11 and t >= 1:
            a("s_nop 3")
            zout(t - 1)
    stamp(a, 7)
    a("s_nop 1")
    zout(3)
    a("s_mov_b32 exec_hi, 0")
    stamp(a, 8)
    a("s_waitcnt lgkmcnt(0)\ns_barrier")
    stamp(a, 9)
    for t in range(4):
        a(f"ds_write_b64 v{vYw}, v[{ZO+2*t}:{ZO+2*t+1}] offset:{(t>>1)*512+(t&1)*128}")
    a("s_mov_b32 exec_hi, -1\ns_waitcnt lgkmcnt(0)")
    a(f"s_cmp_eq_u32 s27, {NST-1}\ns_cbranch_scc1 {L('endS')}\ns_sleep {CSLEEP}")
    s3_run(a, pfx, vCld, vDst, YA, lsc)
    a.label(L('endS'))
    stamp(a, 11)
    ready(f"s_add_u32 s57, s27, {3 if EARLY else 2}\ns_min_u32 s57, s57, {NSEG}")
    a(f"s_add_u32 s27, s27, 1\ns_cmp_lt_u32 s27, {NST}\ns_cbranch_scc1 {L('loopS')}")
    a("s_barrier")
    flush(YA)
    if fused:
        a(f"s_cmp_lg_u32 s17, 5\ns_cbranch_scc1 {L('nofp')}\ns_cmp_lg_u32 s16, 11\ns_cbranch_scc1 {L('nofp')}\ns_mov_b32 s40, {NSEG+2}")
        word_store(40, 59, YA + 8)
        a.label(L('nofp'))
        a(f"s_waitcnt vmcnt(0)\ns_barrier\ns_cmp_lg_u32 s17, 7\ns_cbranch_scc1 {L('done')}")
        word_store(27, 60, YA + 8)
    a.label(L('done'))

def weight_prefetch(a, pfx):
    WB = DM * H * DH * 2
    a(f"""
    s_sub_u32 s19, s16, 24
    s_lshl_b32 s19, s19, 3
    s_add_u32 s19, s19, s17              ; gw 0..63
    s_mul_i32 s20, s19, 12288
    s_mul_i32 s40, s18, 3072
    s_add_u32 s20, s20, s40
    v_lshlrev_b32 v1, 4, v255
    s_mov_b32 s10, {WB}
    s_mov_b32 s11, 0x00020000
    """)
    def sweep(nm, nrows_per_wave, stride_rows):
        a(f"s_load_dwordx2 s[8:9], s[0:1], {KA[nm]}\ns_mov_b32 s21, s20\ns_mov_b32 s22, 0\ns_waitcnt lgkmcnt(0)")
        lp = a.uid(pfx + '_sw')
        a.label(lp)
        for r in range(10):
            for j in range(3):
                k = r * 3 + j
                a(f"buffer_load_dwordx4 v[{8+4*k}:{11+4*k}], v1, s[8:11], s21 offen offset:{1024*j}")
            a(f"s_add_u32 s21, s21, {stride_rows*12288}")
        a(f"s_waitcnt vmcnt(0)\ns_add_u32 s22, s22, 10\ns_cmp_lt_u32 s22, {nrows_per_wave}\ns_cbranch_scc1 {lp}")
    done = a.uid(pfx + '_dn'); lp = a.uid(pfx + '_wt'); qk = a.uid(pfx + '_qk')
    a(f"s_cmp_ge_u32 s16, 28\ns_cbranch_scc1 {qk}")
    sweep('wv', 20, 32)
    k_init.wait_init(a, 8)
    a(f"s_branch {done}")
    a.label(qk)
    k_init.wait_init(a, 8)
    a(f"""
    s_sub_u32 s20, s20, {32*12288}
    s_mov_b32 s46, 2000000
    v_mov_b32 v2, {PB_OFF + 48*64}
    """)
    a.label(lp)
    a(f"""
    buffer_load_dword v3, v2, s[12:15], s93 offen sc1
    s_sub_u32 s46, s46, 1
    s_cbranch_scc1 {lp}_go
    s_waitcnt vmcnt(0)
    v_cmp_eq_u32 vcc, 0, v3
    s_cbranch_vccz {lp}_go
    s_sleep 32
    s_branch {lp}
    """)
    a.label(lp + '_go')
    sweep('wq', 20, 32)
    sweep('wk', 20, 32)
    a.label(done)

def helper_body(a, pfx, fused=False):
    L = lambda n: f"{pfx}_{n}"
    PFD = int(os.environ.get('REC_PFD', 4))
    k_init.census(a, 8, 39)
    a(f"""
    s_sub_u32 s19, s16, 24
    s_lshl_b32 s19, s19, 3
    s_add_u32 s19, s19, s17              ; gw 0..31
    s_lshl_b32 s20, s18, 3
    s_mul_i32 s21, s20, {UH}
    s_mul_i32 s40, s19, 10240
    s_add_u32 s21, s21, s40
    s_add_u32 s21, s21, {U_OFF}
    s_mul_i32 s22, s20, {PH}
    s_mul_i32 s40, s19, 3072
    s_add_u32 s22, s22, s40
    s_add_u32 s22, s22, {K_OFF}
    v_lshlrev_b32 v1, 4, v255
    v_add_u32 v2, 4096, v1
    v_add_u32 v3, 8192, v1
    s_lshl_b32 s40, s18, 7
    s_add_u32 s40, s40, {PROG_OFF}
    v_mov_b32 v4, s40
    s_mov_b32 s27, 0
    s_mov_b32 s46, 4000000
    s_lshr_b32 s23, s19, 2
    s_add_u32 s23, s23, s20              ; head
    s_lshl_b32 s40, s23, 6
    s_add_u32 s40, s40, {PS_OFF}
    v_and_b32 v6, 7, v255
    v_lshlrev_b32 v6, 2, v6
    v_add_u32 v6, s40, v6
    s_mul_i32 s40, s23, 6
    s_sub_u32 s40, s40, 8
    v_add_u32 v7, s40, v255
    v_lshrrev_b32 v7, 3, v7
    v_lshlrev_b32 v7, 6, v7
    v_add_u32 v7, {PB_OFF + 24*64}, v7
    v_cmp_gt_u32 vcc, 8, v255
    v_cmp_lt_u32 s[42:43], 13, v255
    s_or_b64 vcc, vcc, s[42:43]
    s_nop 1
    v_cndmask_b32 v6, v7, v6, vcc
    s_lshl_b32 s40, s18, 7
    s_lshl_b32 s41, s19, 2
    s_add_u32 s40, s40, s41
    s_add_u32 s40, s40, {RDY_OFF}
    v_mov_b32 v7, s40
    """)
    a.label(L('hloop'))
    a(f"s_cmp_lt_u32 s27, {PFD}\ns_cbranch_scc1 {L('hgo')}")
    a.label(L('hwait'))
    a(f"""
    buffer_load_dword v5, v4, s[12:15], s93 offen sc1
    s_sub_u32 s46, s46, 1
    s_cbranch_scc1 {L('hdone')}
    s_waitcnt vmcnt(0)
    v_readfirstlane_b32 s40, v5
    s_add_u32 s40, s40, {PFD}
    s_cmp_gt_u32 s40, s27
    s_cbranch_scc1 {L('hgo')}
    s_sleep 8
    s_branch {L('hwait')}
    """)
    a.label(L('hgo'))
    if fused:
        a(f"""
        buffer_load_dword v5, v6, s[12:15], s93 offen sc1
        s_sub_u32 s46, s46, 1
        s_cbranch_scc1 {L('hdone')}
        s_waitcnt vmcnt(0)
        v_cmp_ge_u32 vcc, s27, v5
        s_cbranch_vccz {L('hgo2')}
        s_sleep 8
        s_branch {L('hgo')}
        """)
        a.label(L('hgo2'))
    k = 0
    for j in range(3):
        a(f"buffer_load_dwordx4 v[{8+4*k}:{11+4*k}], v1, s[12:15], s22 offen offset:{1024*j}"); k += 1
    for j in range(10):
        a(f"buffer_load_dwordx4 v[{8+4*k}:{11+4*k}], v{1+j//4}, s[12:15], s21 offen offset:{1024*(j%4)}"); k += 1
    a(f"""
    s_add_u32 s21, s21, {U_SEG}
    s_add_u32 s22, s22, {P_SEG}
    s_add_u32 s27, s27, 1
    v_mov_b32 v5, s27
    s_waitcnt vmcnt(0)
    s_cmp_eq_u32 s39, {int(os.environ.get('FORCE_IMPURE', 0))}
    s_cbranch_scc1 {L('himp')}
    buffer_store_dword v5, v7, s[12:15], s93 offen
    s_branch {L('hnx')}
    """)
    a.label(L('himp'))
    a("buffer_store_dword v5, v7, s[12:15], s93 offen sc1")
    a.label(L('hnx'))
    a(f"""
    s_cmp_lt_u32 s27, {NST}
    s_cbranch_scc1 {L('hloop')}
    """)
    a.label(L('hdone'))

def gen_rec(a, name='rec_kernel'):
    a.raw(kernel_header(name))
    a(f"""
    s_cmp_ge_u32 s2, 256
    s_cbranch_scc1 REC_end
    s_load_dwordx2 s[4:5], s[0:1], {KA['ws']}
    s_getreg_b32 s18, hwreg(HW_REG_XCC_ID)
    s_and_b32 s18, s18, 7
    v_lshrrev_b32 v1, 6, v0
    v_and_b32 v255, 63, v0
    s_nop 0
    v_readfirstlane_b32 s17, v1
    s_memtime s[60:61]
    s_waitcnt lgkmcnt(0)
    """)
    srd(a, 12, 4, WS_BYTES)
    a(f"""
    v_mov_b32 v3, 1
    s_lshl_b32 s16, s18, 7
    s_add_u32 s16, s16, {TK_OFF}
    v_mov_b32 v4, s16
    v_mov_b32 v5, 0
    v_cmp_eq_u32 vcc, 0, v0
    s_and_saveexec_b64 s[26:27], vcc
    s_cbranch_execz REC_notk
    buffer_atomic_add v3, v4, s[12:15], 0 offen sc0
    s_waitcnt vmcnt(0)
    ds_write_b32 v5, v3
    s_waitcnt lgkmcnt(0)
    """)
    a.label('REC_notk')
    a(f"""
    s_mov_b64 exec, s[26:27]
    s_barrier
    ds_read_b32 v3, v5
    s_waitcnt lgkmcnt(0)
    v_readfirstlane_b32 s16, v3
    s_barrier
    s_cmp_ge_u32 s18, 4
    s_cbranch_scc1 REC_end
    s_cmp_ge_u32 s16, 28
    s_cbranch_scc1 REC_end
    s_cmp_lt_u32 s16, 24
    s_cbranch_scc1 REC_main
    """)
    if not NOU: helper_body(a, 'HLP')
    a("s_branch REC_end")
    a.label('REC_main')
    if STAMP >= 0:
        for i in range(12): a(f"s_mov_b32 s{64+i}, 0")
    rec_body(a, 'REC')
    if STAMP >= 0:
        a(f"""
        s_lshl_b32 s61, s18, 5
        s_add_u32 s61, s61, s16
        s_lshl_b32 s61, s61, 3
        s_add_u32 s61, s61, s17
        s_lshl_b32 s61, s61, 6
        s_add_u32 s61, s61, {WS_END}
        v_mov_b32 v3, 0
        """)
        for i in range(12): a(f"v_mov_b32 v{4+i}, s{64+i}")
        for i in range(3): a(f"buffer_store_dwordx4 v[{4+4*i}:{7+4*i}], v3, s[12:15], s61 offen offset:{16*i}")
    a(f"""
    s_memtime s[62:63]
    s_load_dwordx2 s[56:57], s[0:1], {KA['dbg']}
    s_waitcnt lgkmcnt(0)
    s_sub_u32 s62, s62, s60
    s_mov_b32 s58, 256
    s_mov_b32 s59, 0x00020000
    v_mov_b32 v4, s62
    s_sub_u32 s96, s96, s60
    v_mov_b32 v5, s96
    s_lshl_b32 s60, s17, 3
    s_lshl_b32 s61, s18, 5
    s_add_u32 s61, s61, s16
    s_cmp_eq_u32 s61, 0
    s_cselect_b32 s60, s60, 256
    v_mov_b32 v3, s60
    buffer_store_dwordx2 v[4:5], v3, s[56:59], 0 offen
    """)
    a.label('REC_end')
    a("s_endpgm")
    return kernel_desc(name)
```

```python
from asmlib import *
from layout import *
import os

SSLOT = 40 * KB
NSLOT = 4
VSLOT = 12 * KB
WF = 0
AF = 144
ACC = (192, 208)
VT = 224
V_L16 = 240
V_LDSRD = 241
V_DMA = 242

def small_body(a, pfx, fused=False):
    L = lambda n: f"{pfx}_{n}"
    a(f"""
    s_load_dwordx2 s[4:5], s[0:1], {KA['ws']}
    s_cmp_ge_u32 s16, 32
    s_cbranch_scc1 {L('rg')}
    s_load_dwordx2 s[6:7], s[0:1], {KA['wo']}
    s_mov_b32 s10, {H*DH*DM*2}
    s_mov_b32 s27, s16
    s_mul_i32 s20, s16, {PH}
    s_add_u32 s20, s20, {V_OFF}
    s_mov_b32 s23, {P_SEG}
    s_mul_i32 s21, s16, {UH}
    s_add_u32 s21, s21, {U_OFF}
    s_mov_b32 s22, {U_SEG}
    s_mov_b32 s26, 2048
    s_mul_i32 s46, s16, 6
    s_mov_b32 s51, 3
    s_mov_b32 s52, 48
    s_branch {L('rdone')}
    """)
    a.label(L('rg'))
    a(f"""
    s_load_dwordx2 s[6:7], s[0:1], {KA['w2']}
    s_mov_b32 s10, {F*DM*2}
    s_sub_u32 s27, s16, 32
    s_mul_i32 s20, s27, {PH}
    s_add_u32 s20, s20, {HID_OFF}
    s_mov_b32 s23, {HID_SEG}
    s_mul_i32 s21, s27, {GH}
    s_add_u32 s21, s21, {G_OFF}
    s_mov_b32 s22, {G_SEG}
    s_mov_b32 s26, 2048
    s_mul_i32 s46, s27, 6
    s_mov_b32 s51, 2
    s_mov_b32 s52, 72
    """)
    a.label(L('rdone'))
    a(f"""
    s_mul_i32 s19, s27, {DH*DM*2}
    s_mul_i32 s28, s17, 3
    s_lshl_b32 s29, s17, 1
    s_add_u32 s29, s29, 4
    s_cmp_lt_u32 s17, 4
    s_cselect_b32 s28, s28, s29
    s_mul_i32 s29, s28, s26
    s_add_u32 s21, s21, s29
    s_waitcnt lgkmcnt(0)
    s_mov_b32 s8, s6
    s_mov_b32 s9, s7
    s_mov_b32 s11, 0x00020000
    """)
    srd(a, 12, 4, WS_BYTES)
    SV = AF
    for n in range(5):
        a(f"""
        s_lshl_b32 s30, s17, 6
        s_add_u32 s30, s30, {512*n}
        v_add_u32 v{VT}, s30, v255
        v_mul_u32_u24 v{VT+1}, 52429, v{VT}
        v_lshrrev_b32 v{VT+1}, 22, v{VT+1}
        v_mul_u32_u24 v{VT+2}, 80, v{VT+1}
        v_sub_u32 v{VT+2}, v{VT}, v{VT+2}
        v_and_b32 v{VT+3}, 3, v{VT+1}
        v_lshlrev_b32 v{VT+3}, 2, v{VT+3}
        v_xor_b32 v{VT+2}, v{VT+2}, v{VT+3}
        v_mul_u32_u24 v{VT+1}, 1280, v{VT+1}
        v_lshl_add_u32 v{SV+n}, v{VT+2}, 4, v{VT+1}
        """)
    TB = AF + 8
    a(f"""
    v_lshrrev_b32 v{VT}, 5, v255
    v_lshlrev_b32 v{VT}, 2, v{VT}
    v_bfe_u32 v{VT+1}, v255, 2, 2
    v_add_u32 v{VT}, v{VT}, v{VT+1}
    v_mul_u32_u24 v{VT}, 1280, v{VT}
    v_bfe_u32 v{VT+2}, v255, 4, 1
    v_lshl_add_u32 v{VT}, v{VT+2}, 5, v{VT}
    v_and_b32 v{VT+2}, 3, v255
    v_lshl_add_u32 v{VT}, v{VT+2}, 3, v{VT}
    """)
    for t in range(3):
        a(f"""
        s_add_u32 s30, s28, {t}
        s_min_u32 s30, s30, 19
        v_xor_b32 v{VT+2}, s30, v{VT+1}
        v_lshl_add_u32 v{TB+t}, v{VT+2}, 6, v{VT}
        """)
    def stage_issue(q):
        a(f"s_add_u32 s33, s19, {q*SSLOT}")
        for n in range(5):
            a(f"s_lshl_b32 s34, s17, 10\ns_add_u32 s34, s34, {(q % NSLOT)*SSLOT + n*8192}\ns_mov_b32 m0, s34\ns_nop 0")
            a(f"buffer_load_dwordx4 v{SV+n}, s[8:11], s33 offen lds")
    for q in range(NSLOT):
        stage_issue(q)
    for q in range(6):
        outstanding = 5 * (min(q + NSLOT, 6) - q - 1)
        a(f"s_waitcnt vmcnt({outstanding})\ns_barrier")
        for t in range(3):
            a(f"v_add_u32 v{VT+4}, {(q % NSLOT)*SSLOT}, v{TB+t}")
            for p in range(2):
                for hr in range(2):
                    r = WF + (t * 12 + 2 * q + p) * 4 + 2 * hr
                    a(f"ds_read_b64_tr_b16 v[{r}:{r+1}], v{VT+4} offset:{p*20480+hr*10240}")
        a("s_waitcnt lgkmcnt(0)\ns_barrier")
        if q + NSLOT < 6:
            stage_issue(q + NSLOT)
    if not fused: a("s_memtime s[52:53]")
    elif os.environ.get('MAIN_DUMP'): a("s_memtime s[96:97]\ns_waitcnt lgkmcnt(0)")
    sc = ' sc1' if fused else ''
    V_FA, V_FL, V_PA, V_PV, V_FL2 = 243, 244, 245, 246, 247
    a(f"""
    v_min_u32 v{V_FA}, 5, v255
    v_add_u32 v{V_FA}, s46, v{V_FA}
    v_lshrrev_b32 v{V_FA}, s51, v{V_FA}
    v_add_u32 v{V_FA}, s52, v{V_FA}
    v_lshlrev_b32 v{V_FA}, 6, v{V_FA}
    v_add_u32 v{V_FA}, {PB_OFF}, v{V_FA}
    v_mov_b32 v{V_FL}, 0
    s_lshl_b32 s47, s16, 4
    s_add_u32 s47, s47, s17
    s_lshl_b32 s47, s47, 2
    s_add_u32 s47, s47, {PS_OFF}
    v_mov_b32 v{V_PA}, s47
    s_mov_b32 s48, 8000000
    """)
    if fused:
        import k_init
        k_init.wait_init(a, AF)
    def need_flags(need_s):
        if not fused: return
        ok = a.uid(pfx + '_fok'); lp = a.uid(pfx + '_flp')
        a(f"v_cmp_gt_u32 vcc, s{need_s}, v{V_FL}\ns_cbranch_vccz {ok}")
        a.label(lp)
        a(f"""
        buffer_load_dword v{V_FL}, v{V_FA}, s[12:15], s93 offen sc1
        s_sub_u32 s48, s48, 1
        s_cbranch_scc1 {ok}_x
        s_waitcnt vmcnt(0)
        v_cmp_gt_u32 vcc, s{need_s}, v{V_FL}
        s_cbranch_vccz {ok}
        s_sleep 6
        s_branch {lp}
        """)
        a.label(ok + '_x')
        a("s_mov_b32 s48, 0")
        a.label(ok)
    def publish():
        if not fused: return
        a(f"v_mov_b32 v{V_PV}, s42\nbuffer_store_dword v{V_PV}, v{V_PA}, s[12:15], s93 offen sc1")
    a(f"""
    v_lshlrev_b32 v{V_L16}, 4, v255
    s_lshl_b32 s30, s17, 10
    v_add_u32 v{V_DMA}, s30, v{V_L16}
    """)
    def dma(nt):
        a(f"s_lshl_b32 s34, s17, 10\ns_add_u32 s34, s34, s35\ns_mov_b32 m0, s34\ns_nop 0")
        a(f"buffer_load_dwordx4 v{V_DMA}, s[12:15], s43 offen{sc} lds")
        if nt == 3:
            a(f"s_add_u32 s34, s34, 8192\ns_mov_b32 m0, s34\ns_add_u32 s33, s43, 8192")
            a(f"buffer_load_dwordx4 v{V_DMA}, s[12:15], s33 offen{sc} lds")
    PD = 2
    def epi(acc, gmode, soff, toff):
        ops = []
        if True:
            for i in range(8):
                ops.append(f"v_cvt_pk_bf16_f32 v{VT+i}, v{acc+2*i}, v{acc+2*i+1}")
            ops.append(f"s_add_u32 s33, s{soff}, {toff*2048}")
            ops.append(f"buffer_store_dwordx4 v[{VT}:{VT+3}], v{V_L16}, s[12:15], s33 offen{sc}")
            ops.append(f"buffer_store_dwordx4 v[{VT+4}:{VT+7}], v{V_L16}, s[12:15], s33 offen offset:1024{sc}")
        else:
            ops.append(f"s_add_u32 s33, s{soff}, {toff*4096}")
            for q in range(4):
                ops.append(f"buffer_store_dwordx4 v[{acc+4*q}:{acc+4*q+3}], v{V_L16}, s[12:15], s33 offen offset:{1024*q}{sc}")
        return ops
    def mfma(acc, t, ks, gmode, first):
        w = WF + (t * 12 + ks) * 4; f = AF + 4 * ks
        c = '0' if first else f"v[{acc}:{acc+15}]"
        if gmode:
            a(f"v_mfma_f32_32x32x16_bf16 v[{acc}:{acc+15}], v[{w}:{w+3}], v[{f}:{f+3}], {c}")
        else:
            a(f"v_mfma_f32_32x32x16_bf16 v[{acc}:{acc+15}], v[{f}:{f+3}], v[{w}:{w+3}], {c}")
    for gmode in (0, 1):
        for nt in (3, 2):
            tag = f"{gmode}{nt}"
            a.label(L('v' + tag)) if (gmode, nt) != (0, 3) else None
            if (gmode, nt) == (0, 3):
                a(f"""
                s_cmp_ge_u32 s16, 32
                s_cbranch_scc1 {L('gsel')}
                s_cmp_ge_u32 s17, 4
                s_cbranch_scc1 {L('v02')}
                """)
            a("s_mov_b32 s43, s20\ns_mov_b32 s35, 0\ns_mov_b32 s49, 1")
            need_flags(49)
            dma(nt)
            a("s_add_u32 s43, s43, s23\ns_mov_b32 s42, 0\ns_mov_b32 s44, s21")
            a("s_waitcnt vmcnt(0)")
            lp = L('loop' + tag)
            a.label(lp)
            a("s_barrier" if fused else "s_waitcnt vmcnt(0)\ns_barrier")
            a(f"s_and_b32 s35, s42, {NSLOT-1}\ns_mul_i32 s35, s35, {VSLOT}\nv_add_u32 v{V_LDSRD}, s35, v{V_L16}")
            for ks in range(12):
                a(f"ds_read_b128 v[{AF+4*ks}:{AF+4*ks+3}], v{V_LDSRD} offset:{1024*ks}")
            sk = a.uid(pfx + '_nopf')
            a(f"""
            s_mov_b32 s50, 1
            s_add_u32 s35, s42, 1
            s_cmp_ge_u32 s35, {NSEG}
            s_cbranch_scc1 {sk}
            s_add_u32 s49, s42, 2
            """)
            if fused:
                a(f"s_mov_b32 s50, 0\nv_cmp_gt_u32 vcc, s49, v{V_FL}\ns_cbranch_vccnz {sk}\ns_mov_b32 s50, 1")
            a(f"s_and_b32 s35, s35, {NSLOT-1}\ns_mul_i32 s35, s35, {VSLOT}")
            dma(nt)
            a("s_add_u32 s43, s43, s23")
            a.label(sk)
            if fused: a(f"buffer_load_dword v{V_FL2}, v{V_FA}, s[12:15], s93 offen sc1")
            for t in range(nt):
                acc = ACC[t & 1]; prev = ACC[(t + 1) & 1]
                ep = epi(prev, gmode, 44, t - 1) if t else []
                for ks in range(12):
                    if t == 0:
                        a(f"s_waitcnt lgkmcnt({11-ks})")
                    mfma(acc, t, ks, gmode, ks == 0)
                    if ks >= 3:
                        if t > 0 and ks == 3:
                            a("s_nop 7")
                        for _ in range(2):
                            if ep: a(ep.pop(0))
                assert not ep
            a("s_nop 11")
            for op in epi(ACC[(nt - 1) & 1], gmode, 44, nt - 1): a(op)
            if fused:
                sk2 = a.uid(pfx + '_pfd'); sk3 = a.uid(pfx + '_blk')
                a(f"s_cmp_eq_u32 s50, 0\ns_cbranch_scc1 {sk3}")
                a(f"s_waitcnt vmcnt({2*nt})\nv_mov_b32 v{V_FL}, v{V_FL2}")
                publish()
                a(f"s_add_u32 s42, s42, 1\ns_add_u32 s44, s44, s22\ns_branch {sk2}")
                a.label(sk3)
                a(f"s_add_u32 s42, s42, 1\ns_add_u32 s44, s44, s22\ns_waitcnt vmcnt(0)\nv_mov_b32 v{V_FL}, v{V_FL2}")
                publish()
                need_flags(49)
                a(f"s_and_b32 s35, s42, {NSLOT-1}\ns_mul_i32 s35, s35, {VSLOT}")
                dma(nt)
                a("s_add_u32 s43, s43, s23\ns_waitcnt vmcnt(0)")
                a.label(sk2)
            else:
                a("s_add_u32 s42, s42, 1\ns_add_u32 s44, s44, s22")
            a(f"s_cmp_lt_u32 s42, {NSEG}\ns_cbranch_scc1 {lp}")
            if fused:
                a("s_waitcnt vmcnt(0)")
                publish()
            a(f"s_branch {L('done')}")
            if (gmode, nt) == (0, 2):
                a.label(L('gsel'))
                a(f"s_cmp_ge_u32 s17, 4\ns_cbranch_scc1 {L('v12')}")
    a.label(L('done'))

def gen_small(a, name='small_kernel'):
    a.raw(kernel_header(name))
    a(f"""
    s_cmp_ge_u32 s2, 40
    s_cbranch_scc1 SM_end
    s_mov_b32 s16, s2
    v_lshrrev_b32 v1, 6, v0
    v_and_b32 v255, 63, v0
    s_nop 0
    v_readfirstlane_b32 s17, v1
    s_nop 3
    s_memtime s[50:51]
    """)
    small_body(a, 'SM')
    a(f"""
    s_memtime s[54:55]
    s_load_dwordx2 s[56:57], s[0:1], {KA['dbg']}
    s_waitcnt lgkmcnt(0)
    s_sub_u32 s54, s54, s52
    s_sub_u32 s52, s52, s50
    s_mov_b32 s58, 256
    s_mov_b32 s59, 0x00020000
    v_mov_b32 v4, s52
    v_mov_b32 v5, s54
    s_cmp_eq_u32 s16, 0
    s_cselect_b32 s60, 0, 256
    s_cmp_eq_u32 s16, 35
    s_cselect_b32 s60, 8, s60
    v_mov_b32 v3, s60
    buffer_store_dwordx2 v[4:5], v3, s[56:59], 0 offen
    """)
    a.label('SM_end')
    a("s_endpgm")
    return kernel_desc(name)
```

```python
S, DM, H, DH, M, SEG, F = 2048, 640, 32, 192, 8, 32, 1536
NSEG = 64
WS_BYTES = 268435456
KB = 1024
XN_SEG = 40 * KB
XN_OFF = 4 << 20
YN_OFF = XN_OFF + NSEG * XN_SEG
PH = 12 * KB
P_SEG = H * PH
Q_OFF = YN_OFF + NSEG * XN_SEG
K_OFF = Q_OFF + NSEG * P_SEG
V_OFF = K_OFF + NSEG * P_SEG
HID_SEG = 8 * PH
HID_OFF = V_OFF + NSEG * P_SEG
UH = 40 * KB
U_SEG = H * UH
U_OFF = HID_OFF + NSEG * HID_SEG
GH = 40 * KB
G_SEG = 8 * GH
G_OFF = U_OFF + NSEG * U_SEG
KMH = 3 * KB
KM_SEG = H * KMH
KM_OFF = G_OFF + NSEG * G_SEG + KM_SEG
YH = 10 * KB
Y_SEG = H * YH
Y_OFF = KM_OFF + NSEG * KM_SEG + Y_SEG
PPH = 2560
PP_SEG = H * PPH
PP_OFF = Y_OFF + NSEG * Y_SEG
GT_SEG = 40 * KB
GT_OFF = PP_OFF + NSEG * PP_SEG
WS_END = GT_OFF + NSEG * GT_SEG
assert WS_END <= WS_BYTES, WS_END
KA = dict(x=0, mem0=8, wq=16, wk=24, wv=32, wo=40, seglen=48, bx=56, w1=64, b1=72, w2=80, b2=88, out=96, dbg=104, ws=112)
if __name__ == '__main__':
    print(WS_END / 2**20)

NRING = 4
C_SLOT_L = 8 * 32 * 320
C_SLOT = 2 * C_SLOT_L
C_BYTES = NRING * C_SLOT
CTL_OFF = 3 << 20
A_HEAD = 2048
A_VG = 4 * A_HEAD
A_SLOT = 8 * A_VG
A_OFF = CTL_OFF
D_X = 10240
D_SLOT = 4 * D_X
D_OFF = A_OFF + NRING * A_SLOT
TK_OFF = D_OFF + NRING * D_SLOT
PAR_OFF = TK_OFF + 1024
PROG_OFF = TK_OFF + 2048
FLAG_OFF = TK_OFF + 4096
assert FLAG_OFF + 65536 <= (4 << 20), FLAG_OFF

PB_OFF = FLAG_OFF
PS_OFF = FLAG_OFF + 4096
PR_OFF = FLAG_OFF + 40960
RDY_OFF = FLAG_OFF + 12288
QUE_OFF = FLAG_OFF + 16384
STAMP_OFF = FLAG_OFF + 32768
PF_OFF = FLAG_OFF + 20480
assert WS_END + (256 << 10) <= WS_BYTES

CTL2 = 0x370000
FLAG_OFF = CTL2
FLAG_BYTES = 32768
PB_OFF = CTL2
PS_OFF = CTL2 + 3072
QUE_OFF = CTL2 + 4608
PROG_OFF = CTL2 + 5120
RDY_OFF = CTL2 + 6144
PR_OFF = CTL2 + 8192
PF_OFF = CTL2 + 16384

FLAG_BYTES = 49152
PB_OFF = CTL2 + 32768
PS_OFF = CTL2
```

```python
S, DM, H, DH, M, SEG, F = 2048, 640, 32, 192, 8, 32, 1536
NSEG = 64
WS_BYTES = 268435456
KB = 1024
XN_SEG = 40 * KB
XN_OFF = 4 << 20
YN_OFF = XN_OFF + NSEG * XN_SEG
PH = 12 * KB
P_SEG = H * PH
Q_OFF = YN_OFF + NSEG * XN_SEG
K_OFF = Q_OFF + NSEG * P_SEG
V_OFF = K_OFF + NSEG * P_SEG
HID_SEG = 8 * PH
HID_OFF = V_OFF + NSEG * P_SEG
UH = 40 * KB
U_SEG = H * UH
U_OFF = HID_OFF + NSEG * HID_SEG
GH = 40 * KB
G_SEG = 8 * GH
G_OFF = U_OFF + NSEG * U_SEG
KMH = 3 * KB
KM_SEG = H * KMH
KM_OFF = G_OFF + NSEG * G_SEG + KM_SEG
YH = 10 * KB
Y_SEG = H * YH
Y_OFF = KM_OFF + NSEG * KM_SEG + Y_SEG
PPH = 2560
PP_SEG = H * PPH
PP_OFF = Y_OFF + NSEG * Y_SEG
GT_SEG = 40 * KB
GT_OFF = PP_OFF + NSEG * PP_SEG
WS_END = GT_OFF + NSEG * GT_SEG
assert WS_END <= WS_BYTES, WS_END
KA = dict(x=0, mem0=8, wq=16, wk=24, wv=32, wo=40, seglen=48, bx=56, w1=64, b1=72, w2=80, b2=88, out=96, dbg=104, ws=112)
if __name__ == '__main__':
    print(WS_END / 2**20)

NRING = 4
C_SLOT_L = 8 * 32 * 320
C_SLOT = 2 * C_SLOT_L
C_BYTES = NRING * C_SLOT
CTL_OFF = 3 << 20
A_HEAD = 2048
A_VG = 4 * A_HEAD
A_SLOT = 8 * A_VG
A_OFF = CTL_OFF
D_X = 10240
D_SLOT = 4 * D_X
D_OFF = A_OFF + NRING * A_SLOT
TK_OFF = D_OFF + NRING * D_SLOT
PAR_OFF = TK_OFF + 1024
PROG_OFF = TK_OFF + 2048
FLAG_OFF = TK_OFF + 4096
assert FLAG_OFF + 65536 <= (4 << 20), FLAG_OFF

PB_OFF = FLAG_OFF
PS_OFF = FLAG_OFF + 4096
PR_OFF = FLAG_OFF + 40960
RDY_OFF = FLAG_OFF + 12288
QUE_OFF = FLAG_OFF + 16384
STAMP_OFF = FLAG_OFF + 32768
PF_OFF = FLAG_OFF + 20480
assert WS_END + (256 << 10) <= WS_BYTES

CTL2 = 0x370000
FLAG_OFF = CTL2
FLAG_BYTES = 32768
PB_OFF = CTL2
PS_OFF = CTL2 + 3072
QUE_OFF = CTL2 + 4608
PROG_OFF = CTL2 + 5120
RDY_OFF = CTL2 + 6144
PR_OFF = CTL2 + 8192
PF_OFF = CTL2 + 16384

FLAG_BYTES = 49152
PB_OFF = CTL2 + 32768
PS_OFF = CTL2

import os
if os.environ.get('A_NEAR'):
    A_VG = 16384
    A_SLOT = 8 * A_VG
    A_OFF = 0x380000
```

```python
import sys
sys.path.insert(0, 'gen')
from asmlib import *
from layout import *
import k_ln, k_big

HEADER = open('recurrent_scan__memory_aug_recurrent_mem_tr__mixer_channel_mlp__prompt.s.ref').read().split('; Override launch')[0]

def build(parts):
    a = Asm()
    launches = []
    descs = []
    if 'ln' in parts:
        launches.append("; @launch kernel=ln_kernel grid=(129,1,1) block=(256,1,1) lds=0")
        descs.append(k_ln.gen_ln(a))
    if 'big' in parts:
        launches.append("; @launch kernel=big_kernel grid=(84,1,1) block=(512,1,1) lds=163840")
        descs.append(k_big.gen_big(a))
    if 'small' in parts:
        import k_small
        launches.append("; @launch kernel=small_kernel grid=(40,1,1) block=(512,1,1) lds=163840")
        descs.append(k_small.gen_small(a))
    if 'rec' in parts:
        import k_rec
        launches.append("; @launch kernel=rec_kernel grid=(256,1,1) block=(512,1,1) lds=163840")
        descs.append(k_rec.gen_rec(a))
    if 'post' in parts:
        import k_post
        launches.append("; @launch kernel=post_kernel grid=(64,1,1) block=(512,1,1) lds=163840")
        descs.append(k_post.gen_post(a))
    if 'main' in parts:
        import k_main
        launches.append("; @launch kernel=main_kernel grid=(256,1,1) block=(512,1,1) lds=163840")
        descs.append(k_main.gen_main(a))
    import os, re
    if not os.environ.get('MAIN_DUMP') and parts == ['main']:
        keep = []
        for ln in a.lines:
            if re.search(r's_mem(real)?time s\[(80|84|88|90|96):', ln): continue
            if 's_cselect_b32 s88, s80, s88' in ln: continue
            keep.append(ln)
        a.lines = keep
    txt = HEADER + '\n'.join(launches) + '\n.amdgcn_target "amdgcn-amd-amdhsa--gfx950"\n.text\n' + a.text()
    txt += '.section .rodata,"a"\n' + ''.join('.p2align 6\n' + d for d in descs)
    return txt

if __name__ == '__main__':
    parts = sys.argv[2].split(',')
    open(sys.argv[1], 'w').write(build(parts))
```
